```python
import torch

def _softmax(x, axis=-1):
    return torch.softmax(x, dim=axis)
def _gelu(x):
    return torch.nn.functional.gelu(x, approximate="tanh")
def _silu(x):
    return torch.nn.functional.silu(x)
def _sigmoid(x):
    return torch.sigmoid(x)
def _layernorm(x, axis=-1, eps=1e-5):
    m = x.mean(dim=axis, keepdim=True)
    v = x.var(dim=axis, keepdim=True, unbiased=False)
    return (x - m) / torch.sqrt(v + eps)
def _scatter_add(tgt, idx, src, axis=0):
    return tgt.clone().index_add_(axis, idx, src)
def _segment_sum(src, seg, n):
    out = torch.zeros((n,) + src.shape[1:], dtype=src.dtype)
    return out.index_add_(0, seg, src)
def _pad(x, pw):
    flat = tuple(v for pair in reversed(pw) for v in pair)
    return torch.nn.functional.pad(x, flat)

kernel_name = 'sequential_preLN__mha_block__mixer_token_mlp__prompt'

def setup_inputs():

    _w = (lambda a: (lambda t: t.to(torch.bfloat16) if t.is_floating_point() else t)(torch.as_tensor(a)))
    def _A_setup():
        B, S, D, H = 1, 2048, 640, 32
        return {
            "x": _w((lambda *s: torch.randn(*s, dtype=torch.bfloat16) * 0.05)(B, S, D)),
            "wqkv": _w((lambda *s: torch.randn(*s, dtype=torch.bfloat16) * 0.05)(D, 3 * D)),
            "wo": _w((lambda *s: torch.randn(*s, dtype=torch.bfloat16) * 0.05)(D, D)),
        }
    _A_in = _A_setup()

    def _B_setup():
        B, S, D, F = 1, 2048, 640, 1536
        return {
            "x": _w((lambda *s: torch.randn(*s, dtype=torch.bfloat16) * 0.05)(B, S, D)),
            "w1": _w((lambda *s: torch.randn(*s, dtype=torch.bfloat16) * 1.6)(S, F) * (S ** -0.5)),
            "b1": _w((lambda *s: torch.randn(*s, dtype=torch.bfloat16) * 1.6)(F) * 0.02),
            "w2": _w((lambda *s: torch.randn(*s, dtype=torch.bfloat16) * 0.2)(F, S) * (F ** -0.5)),
            "b2": _w((lambda *s: torch.randn(*s, dtype=torch.bfloat16) * 0.2)(S) * 0.02),
        }
    _B_in = _B_setup()

    return {
        "A_x": _A_in["x"],
        "A_wqkv": _A_in["wqkv"],
        "A_wo": _A_in["wo"],
        "B_x": _B_in["x"],
        "B_w1": _B_in["w1"],
        "B_b1": _B_in["b1"],
        "B_w2": _B_in["w2"],
        "B_b2": _B_in["b2"],
    }

def reference(A_x, A_wqkv, A_wo, B_x, B_w1, B_b1, B_w2, B_b2):
    def _A_ref(x, wqkv, wo):
        B, S, D = x.shape
        H = 32
        Dh = D // H
        qkv = (lambda x, *d: x.permute(*d))((x @ wqkv).reshape(B, S, 3, H, Dh), 2, 0, 3, 1, 4)
        q, k, v = qkv[0], qkv[1], qkv[2]
        scores = torch.einsum("bhqd,bhkd->bhqk", q, k) * (Dh ** -0.5)
        p = _softmax(scores, axis=-1)
        o = torch.einsum("bhqk,bhkd->bhqd", p, v)
        return (lambda x, *d: x.permute(*d))(o, 0, 2, 1, 3).reshape(B, S, D) @ wo

    def _B_ref(x, w1, b1, w2, b2):
        B, S, D = x.shape
        h = _layernorm(x, axis=-1)
        u = torch.einsum("bsd,sf->bdf", h, w1) + b1
        u = _gelu(u)
        y = torch.einsum("bdf,fs->bds", u, w2) + b2
        return (lambda x, *d: x.permute(*d))(y, 0, 2, 1)

    x = A_x
    h = x + _A_ref(_layernorm(x, axis=-1), A_wqkv, A_wo)
    h2 = h + _B_ref(_layernorm(h, axis=-1), B_w1, B_b1, B_w2, B_b2)
    return h2
```

```python
import sys
sys.path.insert(0, "gen")
from common import *
from kA import kernel_A
from kB import kernel_B
from kC import kernel_C
from kD import kernel_D
from kE import kernel_E
HDR = open("cdna_kernels/" + NAME + ".s.ref").read().split("; Override launch")[0]
def build(TS=False, force_slow=False, **kw):
    ks = [kernel_A(TS), kernel_B(TS, force_slow, **kw), kernel_C(TS), kernel_D(TS), kernel_E(TS)]
    return assemble_file(ks, HDR)
if __name__ == "__main__":
    open("cdna_kernels/" + NAME + ".s", "w").write(build())
    open("ts.s", "w").write(build(TS=True))
    open("slow.s", "w").write(build(force_slow=True))
    open("ts_noprio.s", "w").write(build(TS=True, prio=False))
```

```python
NAME = "sequential_preLN__mha_block__mixer_token_mlp__prompt"
S, D, H, DH, F = 2048, 640, 32, 20, 1536
KA = dict(x=0, wqkv=8, wo=16, bx=24, w1=32, b1=40, w2=48, b2=56, out=64, dbg=72, ws=80)
SZ = dict(x=S*D*2, wqkv=D*3*D*2, wo=D*D*2, w1=S*F*2, b1=F*2, w2=F*S*2, b2=S*2, out=S*D*2, dbg=256)
WS_QP = 0x000000
WS_KP = 0x280000
WS_VP = 0x500000
WS_OI = 0x780000
WS_HB = 0xA00000
WS_UI = 0xC80000
WS_ST = 0xE60000
WS_WO = 0xE80000
WS_TS = 0xF80000
WS_SIZE = 0x1100000

def vr(a, n=1):
    return f"v{a}" if n == 1 else f"v[{a}:{a+n-1}]"
def sr(a, n=1):
    return f"s{a}" if n == 1 else f"s[{a}:{a+n-1}]"

class K:
    def __init__(self, name, grid, block, lds, vgpr, sgpr=102):
        self.name, self.grid, self.block, self.lds, self.vgpr, self.sgpr = name, grid, block, lds, vgpr, sgpr
        self.lines = []
        self.uid = 0
    def e(self, s):
        for l in s.strip("\n").split("\n"):
            l = l.strip()
            if not l: continue
            if l.endswith(":") or l.startswith(".") or l.startswith(";"):
                self.lines.append(l)
            else:
                self.lines.append("    " + l)
    def L(self, n): return f"L_{self.name}_{n}"
    def label(self, n): self.lines.append(self.L(n) + ":")
    def srd(self, dst, ptr, nbytes, add=0):
        if add:
            self.e(f"s_add_u32 s{dst}, s{ptr}, {add}\ns_addc_u32 s{dst+1}, s{ptr+1}, 0")
        else:
            if dst != ptr:
                self.e(f"s_mov_b32 s{dst}, s{ptr}\ns_mov_b32 s{dst+1}, s{ptr+1}")
        self.e(f"s_mov_b32 s{dst+2}, {nbytes}\ns_mov_b32 s{dst+3}, 0x00020000")
    def launch_line(self):
        return f"; @launch kernel={self.name} grid=({self.grid},1,1) block=({self.block},1,1) lds={self.lds}"
    def text(self):
        acc = (self.vgpr + 3)//4*4
        return (f".text\n.globl {self.name}\n.p2align 8\n.type {self.name},@function\n{self.name}:\n" + "\n".join(self.lines) + "\n")
    def desc(self):
        acc = (self.vgpr + 3)//4*4
        return f""".p2align 6
.amdhsa_kernel {self.name}
  .amdhsa_next_free_vgpr {self.vgpr}
  .amdhsa_next_free_sgpr {self.sgpr}
  .amdhsa_accum_offset {acc}
  .amdhsa_group_segment_fixed_size 0
  .amdhsa_kernarg_size 88
  .amdhsa_user_sgpr_count 2
  .amdhsa_user_sgpr_kernarg_segment_ptr 1
  .amdhsa_system_sgpr_workgroup_id_x 1
.end_amdhsa_kernel
"""

def f2u(x):
    import struct
    return "0x%08x" % struct.unpack("<I", struct.pack("<f", x))[0]

def assemble_file(kernels, header_comment=""):
    out = []
    out.append(header_comment.rstrip("\n")) if header_comment else None
    for k in kernels: out.append(k.launch_line())
    out.append('.amdgcn_target "amdgcn-amd-amdhsa--gfx950"')
    seen = []
    for k in kernels:
        if k not in seen:
            out.append(k.text()); seen.append(k)
    out.append('.section .rodata,"a"')
    for k in seen: out.append(k.desc())
    return "\n".join(out)

def stamp(k, idx, sreg):
    k.e(f"s_memrealtime s[{sreg}:{sreg+1}]")
```

```python
from common import *
from ts import *
import math

def kernel_A(TS=False):
    k = K("qkv_kernel", 256, 768, 131072 + 4096, 168)
    STAT = 131072
    L = k.L
    ts_begin(k, TS)
    k.e(f"""s_cmp_ge_u32 s2, 256
s_cbranch_scc1 {L('end')}
s_load_dwordx4 s[4:7], s[0:1], {KA['x']}
s_load_dwordx2 s[12:13], s[0:1], {KA['ws']}
s_load_dwordx2 s[40:41], s[0:1], {KA['wo']}
v_lshrrev_b32 v2, 6, v0
v_and_b32 v1, 63, v0
v_readfirstlane_b32 s18, v2
s_and_b32 s20, s2, 7
s_lshr_b32 s21, s2, 3
s_lshr_b32 s22, s20, 1
s_lshl_b32 s22, s22, 2
s_and_b32 s23, s21, 3
s_add_u32 s22, s22, s23
s_lshl_b32 s16, s22, 7
s_lshr_b32 s23, s21, 2
s_and_b32 s24, s20, 1
s_lshl_b32 s24, s24, 3
s_add_u32 s19, s23, s24
s_lshl_b32 s17, s19, 7
s_cmp_eq_u32 s19, 15
s_cbranch_scc1 {L('spare')}
s_cmp_lt_u32 s18, 8
s_cbranch_scc1 {L('notloader')}""")
    k.e(f"""s_sub_u32 s25, s18, 8
; vX = (row0 + 8j + l/8)*1280 + ((l%8) ^ ((4j + l/16)&7))*16
v_lshrrev_b32 v2, 3, v1
s_lshl_b32 s26, s25, 3
s_add_u32 s26, s26, s16
v_add_u32 v2, s26, v2
v_mul_u32_u24 v2, 1280, v2
v_lshrrev_b32 v4, 4, v1
s_lshl_b32 s26, s25, 2
v_add_u32 v5, s26, v4
v_and_b32 v6, 7, v5
v_and_b32 v7, 7, v1
v_xor_b32 v6, v6, v7
v_lshl_add_u32 v2, v6, 4, v2
; vW = (4j + l/16)*3840 + col0*2 + ((l%16) ^ ((l/16)<<2))*16
v_mul_u32_u24 v3, 3840, v5
v_and_b32 v6, 15, v1
v_lshlrev_b32 v7, 2, v4
v_xor_b32 v6, v6, v7
v_lshl_add_u32 v3, v6, 4, v3
s_lshl_b32 s26, s17, 1
v_add_u32 v3, s26, v3
s_lshl_b32 s30, s25, 10
s_mov_b32 s28, 0
s_mov_b32 s29, 0
s_mov_b32 s33, 0
s_waitcnt lgkmcnt(0)
s_mov_b32 s8, s6
s_mov_b32 s9, s7""")
    k.srd(4, 4, SZ['x']); k.srd(8, 8, SZ['wqkv'])
    if TS: k.srd(12, 12, WS_SIZE)
    k.label('lloop')
    for i in range(4):
        k.e(f"""s_add_u32 m0, s30, {i*4096}
s_add_u32 s32, s28, {i*40960}
buffer_load_dwordx4 v2, s[4:7], s32 offen lds
s_add_u32 m0, s30, {16384 + i*4096}
s_add_u32 s32, s29, {i*61440}
buffer_load_dwordx4 v3, s[8:11], s32 offen lds""")
    k.e(f"""s_add_u32 s28, s28, 128
s_add_u32 s29, s29, {64*3840}
s_add_u32 s30, s30, 32768
s_and_b32 s30, s30, 0x1ffff
s_add_u32 s33, s33, 1
s_cmp_lt_u32 s33, 3
s_cbranch_scc1 {L('lloop')}
s_waitcnt vmcnt(16)
s_barrier
s_cmp_lt_u32 s33, 10
s_cbranch_scc1 {L('lloop')}
s_waitcnt vmcnt(8)
s_barrier
s_waitcnt vmcnt(0)
s_barrier
s_barrier""")
    ts_end(k, TS, 0, 12, 40)
    k.e("s_endpgm")
    k.label('spare')
    k.e("s_waitcnt lgkmcnt(0)")
    k.srd(12, 12, WS_SIZE); k.srd(40, 40, SZ['wo'])
    k.e(f"s_mul_i32 s20, s22, {40*1280}\ns_mul_i32 s21, s22, {40*160}\ns_add_u32 s21, s21, {WS_WO}\ns_mov_b32 s23, 102400")
    for u in range(3840): assert (u*52429) >> 22 == u//80
    for n in range(5):
        k.e(f"""v_add_u32 v2, {768*n}, v0
v_min_u32 v2, 3199, v2
v_lshlrev_b32 v3, 4, v2
buffer_load_dwordx4 v[{16+4*n}:{19+4*n}], v3, s[40:43], s20 offen
v_mul_u32_u24 v4, 52429, v2
v_lshrrev_b32 v4, 22, v4
v_mul_u32_u24 v5, 80, v4
v_sub_u32 v5, v2, v5
v_mul_u32_u24 v6, 6554, v5
v_lshrrev_b32 v6, 16, v6
v_mul_u32_u24 v7, 10, v6
v_sub_u32 v7, v5, v7
v_mul_u32_u24 v4, 160, v4
v_lshl_add_u32 v4, v7, 4, v4
v_mad_u32_u24 v{8+n}, v6, s23, v4""")
    for n in range(5):
        k.e(f"s_waitcnt vmcnt(4)\nbuffer_store_dwordx4 v[{16+4*n}:{19+4*n}], v{8+n}, s[12:15], s21 offen")
    k.e(f"""s_cmp_lg_u32 s18, 0
s_cbranch_scc1 {L('end')}
v_lshlrev_b32 v2, 4, v1
s_lshl_b32 s20, s22, 10
s_add_u32 s20, s20, {WS_ST}
v_mov_b32 v4, 0
v_mov_b32 v5, 0
v_mov_b32 v6, 0
v_mov_b32 v7, 0
buffer_store_dwordx4 v[4:7], v2, s[12:15], s20 offen
s_endpgm""")
    k.label('notloader')
    def addr_regs(xrow_s, wblk_s):
        k.e(f"""v_add_u32 v4, {xrow_s}, v10
v_lshlrev_b32 v4, 7, v4
v_lshrrev_b32 v5, 1, v10
v_and_b32 v5, 7, v5
v_xor_b32 v5, v5, v11
v_lshl_add_u32 v12, v5, 4, v4
v_xor_b32 v13, 32, v12
v_xor_b32 v14, 64, v12
v_xor_b32 v15, 96, v12
v_bfe_u32 v4, v1, 2, 2
v_lshl_add_u32 v5, v11, 3, v4
v_lshlrev_b32 v5, 8, v5
v_bfe_u32 v6, v1, 4, 1
v_lshlrev_b32 v6, 1, v6
v_bfe_u32 v7, v1, 1, 1
v_add_u32 v6, v6, v7
v_add_u32 v6, {wblk_s}, v6
v_lshlrev_b32 v4, 2, v4
v_xor_b32 v6, v6, v4
v_lshl_add_u32 v5, v6, 4, v5
v_and_b32 v6, 1, v1
v_lshl_add_u32 v5, v6, 3, v5
v_add_u32 v16, 16384, v5""")
    k.e(f"""v_and_b32 v10, 31, v1
v_lshrrev_b32 v11, 5, v1
s_waitcnt lgkmcnt(0)""")
    k.srd(12, 12, WS_SIZE)
    k.e(f"""s_cmp_lt_u32 s18, 4
s_cbranch_scc1 {L('compute')}""")
    k.e("s_sub_u32 s25, s18, 4\ns_lshl_b32 s26, s25, 5\ns_lshl_b32 s27, s25, 2")
    addr_regs("s26", "s27")
    k.e(f"""v_mov_b32 v24, 0x3f803f80
v_mov_b32 v26, 0
v_mov_b32 v27, 0
v_mov_b32 v28, 0
v_mov_b32 v29, 0
v_mov_b32 v30, 0
v_mov_b32 v31, 0
s_mov_b32 s33, 0
s_mov_b32 s34, 0""")
    k.label('sloop')
    k.e("""v_add_u32 v18, s34, v12
v_add_u32 v19, s34, v13
v_add_u32 v20, s34, v14
v_add_u32 v21, s34, v15
v_add_u32 v22, s34, v16
s_barrier""")
    for ks in range(4):
        k.e(f"ds_read_b128 v[{32+4*ks}:{35+4*ks}], v{18+ks}")
    for t in range(8):
        k.e(f"ds_read_b64_tr_b16 v[{48+2*t}:{49+2*t}], v22 offset:{(16*(t//2)+4*(t%2))*256}")
    for ks in range(4):
        k.e(f"s_waitcnt lgkmcnt({11-ks})")
        for d in range(4):
            r = 32+4*ks+d
            k.e(f"v_dot2c_f32_bf16 v{26+(d&1)}, v{r}, v24\nv_dot2c_f32_bf16 v{28+(d&1)}, v{r}, v{r}")
    k.e("s_waitcnt lgkmcnt(0)")
    for d in range(16):
        k.e(f"v_dot2c_f32_bf16 v{30+(d&1)}, v{48+d}, v24")
    k.e(f"""s_add_u32 s34, s34, 32768
s_and_b32 s34, s34, 0x1ffff
s_add_u32 s33, s33, 1
s_cmp_lt_u32 s33, 10
s_cbranch_scc1 {L('sloop')}""")
    csc = (DH ** -0.5) * math.log2(math.e)
    k.e(f"""v_add_f32 v26, v26, v27
v_add_f32 v28, v28, v29
v_add_f32 v30, v30, v31
v_mov_b32 v27, v26
v_mov_b32 v29, v28
v_mov_b32 v31, v30
s_nop 1
v_permlane32_swap_b32 v26, v27
v_permlane32_swap_b32 v28, v29
v_permlane32_swap_b32 v30, v31
s_nop 1
v_add_f32 v26, v26, v27
v_add_f32 v28, v28, v29
v_add_f32 v30, v30, v31
v_mul_f32 v26, {f2u(-1.0/D)}, v26
v_mul_f32 v28, {f2u(1.0/D)}, v28
v_fma_f32 v28, -v26, v26, v28
v_max_f32 v28, 0, v28
v_add_f32 v28, {f2u(1e-5)}, v28
v_rsq_f32 v27, v28
s_cmp_lt_u32 s19, 5
s_cselect_b32 s27, {f2u(csc)}, 1.0
v_mul_f32 v27, s27, v27
v_add_u32 v4, s26, v10
v_lshlrev_b32 v5, 2, v4
v_add_u32 v5, {STAT}, v5
v_lshlrev_b32 v6, 3, v4
v_add_u32 v6, {STAT}, v6
ds_write_b32 v5, v27
ds_write_b32 v5, v26 offset:512
ds_write_b32 v5, v30 offset:1024
ds_write_b64 v6, v[26:27] offset:2048
s_waitcnt lgkmcnt(0)
s_barrier""")
    ts_end(k, TS, 0, 12, 40)
    k.e("s_endpgm")
    k.label('compute')
    k.e("s_setprio 2\ns_lshr_b32 s25, s18, 1\ns_and_b32 s26, s18, 1\ns_lshl_b32 s27, s25, 6\ns_lshl_b32 s28, s26, 3")
    addr_regs("s27", "s28")
    k.e("v_xor_b32 v17, 64, v16")
    ACC = 96; FR = 32
    for r in range(64): k.e(f"v_mov_b32 v{ACC+r}, 0")
    def reads(ks):
        b = FR + 16*ks
        return [f"ds_read_b128 v[{b}:{b+3}], v{18+ks}",
                f"ds_read_b64_tr_b16 v[{b+8}:{b+9}], v22 offset:{16*ks*256}",
                f"ds_read_b64_tr_b16 v[{b+10}:{b+11}], v22 offset:{(16*ks+4)*256}",
                f"ds_read_b128 v[{b+4}:{b+7}], v{18+ks} offset:4096",
                f"ds_read_b64_tr_b16 v[{b+12}:{b+13}], v23 offset:{16*ks*256}",
                f"ds_read_b64_tr_b16 v[{b+14}:{b+15}], v23 offset:{(16*ks+4)*256}"]
    def mfmas(ks, vmode):
        b = FR + 16*ks
        out = []
        for (mb, nb) in ((0,0),(1,0),(0,1),(1,1)):
            a = ACC + (mb*2+nb)*16
            X = f"v[{b+4*mb}:{b+4*mb+3}]"; W = f"v[{b+8+4*nb}:{b+8+4*nb+3}]"
            A, B = (X, W) if vmode else (W, X)
            out.append(f"v_mfma_f32_32x32x16_bf16 v[{a}:{a+15}], {A}, {B}, v[{a}:{a+15}]")
        return out
    k.e("s_mov_b32 s33, 0\ns_mov_b32 s34, 0")
    for t in range(6): k.e(f"v_mov_b32 v{18+t}, v{12+t}")
    ts_mark(k, TS, 0)
    k.e("s_barrier")
    ts_mark(k, TS, 1); ts_cyc(k, TS, 4)
    if TS: k.e("s_waitcnt lgkmcnt(0)")
    for r in reads(0) + reads(1): k.e(r)
    k.e(f"""s_cmp_ge_u32 s19, 10
s_cbranch_scc1 {L('cloopV')}""")
    for vmode in (0, 1):
        k.label('cloopV' if vmode else 'cloopQ')
        for ks in range(4):
            rd = reads((ks+2) % 4); mf = mfmas(ks, vmode)
            if ks == 2:
                k.e("s_waitcnt lgkmcnt(6)"); k.e(mf[0])
                k.e("s_add_u32 s34, s34, 32768\ns_and_b32 s34, s34, 0x1ffff")
                for t in range(6): k.e(f"v_add_u32 v{18+t}, s34, v{12+t}")
                k.e(mf[1]); k.e("s_waitcnt lgkmcnt(0)\ns_barrier")
                k.e(rd[0]); k.e(rd[1]); k.e(mf[2]); k.e(rd[2]); k.e(rd[3]); k.e(mf[3]); k.e(rd[4]); k.e(rd[5])
            else:
                if ks != 3: k.e("s_waitcnt lgkmcnt(6)")
                k.e(mf[0]); k.e(rd[0]); k.e(rd[1])
                k.e(mf[1]); k.e(rd[2]); k.e(rd[3])
                k.e(mf[2]); k.e(rd[4]); k.e(rd[5])
                if ks == 3: k.e("s_add_u32 s33, s33, 1\ns_cmp_lt_u32 s33, 10")
                k.e(mf[3])
        k.e(f"""s_cbranch_scc1 {L('cloopV' if vmode else 'cloopQ')}
s_waitcnt lgkmcnt(0)""")
        ts_mark(k, TS, 2); ts_cyc(k, TS, 5)
        if TS: k.e("s_waitcnt lgkmcnt(0)")
        E0 = 32
        if not vmode:
            k.e(f"""s_lshl_b32 s27, s26, 8
v_lshlrev_b32 v4, 4, v11
v_add_u32 v4, s27, v4
v_add_u32 v4, {STAT+1024}, v4
s_lshl_b32 s27, s25, 6
v_add_u32 v6, s27, v10
v_lshlrev_b32 v5, 3, v6
v_add_u32 v5, {STAT+2048}, v5
ds_read_b64 v[{E0+32}:{E0+33}], v5
ds_read_b64 v[{E0+34}:{E0+35}], v5 offset:256""")
            for nb in range(2):
                for g in range(4):
                    r = E0 + nb*16 + g*4
                    k.e(f"ds_read_b128 v[{r}:{r+3}], v4 offset:{nb*128 + g*32}")
            k.e(f"""v_add_u32 v6, s16, v6
v_lshlrev_b32 v6, 4, v6
v_lshl_add_u32 v6, v11, 15, v6
s_lshl_b32 s27, s19, 4
s_lshl_b32 s28, s26, 3
s_add_u32 s27, s27, s28
s_lshl_b32 s27, s27, 15""")
            assert WS_KP == WS_QP + 80*32768 and WS_QP == 0
            n = 0
            for nb in range(2):
                for gp in range(2):
                    k.e(f"s_add_u32 s28, s27, {(nb*4+gp*2)*32768}")
                    k.e(f"s_waitcnt lgkmcnt({6 - nb*4 - gp*2})")
                    for mb in range(2):
                        a = ACC + (mb*2+nb)*16 + gp*8
                        c = E0 + nb*16 + gp*8
                        m = E0 + 32 + 2*mb
                        o = E0 + 36 + 4*(n % 3); n += 1
                        for p in range(0, 8, 2):
                            k.e(f"v_pk_fma_f32 v[{a+p}:{a+p+1}], v[{c+p}:{c+p+1}], v[{m}:{m+1}], v[{a+p}:{a+p+1}] op_sel_hi:[1,0,1]")
                        for p in range(0, 8, 2):
                            k.e(f"v_pk_mul_f32 v[{a+p}:{a+p+1}], v[{a+p}:{a+p+1}], v[{m}:{m+1}] op_sel:[0,1] op_sel_hi:[1,1]")
                        for p in (0, 4, 2, 6):
                            k.e(f"v_cvt_pk_bf16_f32 v{o+p//2}, v{a+p}, v{a+p+1}")
                        k.e(f"s_nop 0\nv_permlane32_swap_b32 v{o}, v{o+2}\nv_permlane32_swap_b32 v{o+1}, v{o+3}")
                        k.e(f"buffer_store_dwordx4 v[{o}:{o+3}], v6, s[12:15], s28 offen offset:{mb*512}")
            ts_mark(k, TS, 3)
            ts_end(k, TS, 0, 12, 40)
            k.e("s_endpgm")
        else:
            for nv in range(640): assert (nv*3277) >> 16 == nv//20
            k.e(f"""s_lshl_b32 s27, s25, 8
v_lshlrev_b32 v4, 4, v11
v_add_u32 v4, s27, v4
v_add_u32 v4, {STAT}, v4
s_lshl_b32 s27, s26, 6
v_add_u32 v6, s27, v10
v_lshlrev_b32 v5, 2, v6
v_add_u32 v5, {STAT+1024}, v5
ds_read_b32 v24, v5
ds_read_b32 v26, v5 offset:128""")
            for mb in range(2):
                for g in range(4):
                    b = E0 + mb*32
                    k.e(f"ds_read_b128 v[{b+g*4}:{b+g*4+3}], v4 offset:{mb*128 + g*32}")
                    k.e(f"ds_read_b128 v[{b+16+g*4}:{b+16+g*4+3}], v4 offset:{512 + mb*128 + g*32}")
                if mb == 0:
                    k.e(f"""s_sub_u32 s27, s17, 1280
v_add_u32 v6, s27, v6
v_mul_u32_u24 v7, 320, v11
v_add_u32 v7, {WS_VP}, v7
s_mov_b32 s28, 81920""")
                    for nb in range(2):
                        if nb: k.e("v_add_u32 v6, 32, v6")
                        k.e(f"""v_mul_u32_u24 v8, 3277, v6
v_lshrrev_b32 v8, 16, v8
v_mul_u32_u24 v9, 20, v8
v_sub_u32 v9, v6, v9
v_lshl_add_u32 v9, v9, 4, v7
v_mad_u32_u24 v{18+nb}, v8, s28, v9""")
                    k.e(f"""s_lshr_b32 s27, s16, 5
s_lshl_b32 s28, s25, 1
s_add_u32 s27, s27, s28
s_mul_i32 s27, s27, 1280
s_waitcnt lgkmcnt(4)""")
            n = 0
            for mb in range(2):
                k.e(f"s_waitcnt lgkmcnt({8 - 8*mb})")
                b = E0 + mb*32
                for nb in range(2):
                    cs = 24 + 2*nb
                    for aa in range(2):
                        a = ACC + (mb*2+nb)*16 + aa*8
                        o = 160 + 4*(n % 2); n += 1
                        for p in range(0, 8, 2):
                            k.e(f"v_pk_fma_f32 v[{a+p}:{a+p+1}], v[{b+16+aa*8+p}:{b+16+aa*8+p+1}], v[{cs}:{cs+1}], v[{a+p}:{a+p+1}] op_sel_hi:[1,0,1]")
                        for p in range(0, 8, 2):
                            k.e(f"v_pk_mul_f32 v[{a+p}:{a+p+1}], v[{a+p}:{a+p+1}], v[{b+aa*8+p}:{b+aa*8+p+1}]")
                        for p in range(0, 8, 2):
                            k.e(f"v_cvt_pk_bf16_f32 v{o+p//2}, v{a+p}, v{a+p+1}")
                        k.e(f"buffer_store_dwordx4 v[{o}:{o+3}], v{18+nb}, s[12:15], s27 offen offset:{mb*1280 + aa*640}")
            ts_mark(k, TS, 3)
            ts_end(k, TS, 0, 12, 40)
            k.e("s_endpgm")
    k.label('end')
    k.e("s_endpgm")
    return k
```

```python
from common import *
from ts import ts_begin, ts_end, ts_mark, ts_cyc

def kernel_B(TS=False, force_slow=False, prio=True):
    GCH = 12288
    SLOT = 2*GCH
    NSLOT = 4
    ONES = NSLOT*SLOT
    FLAG = ONES + 5120
    k = K("attn_kernel", 256, 512, FLAG + 64, 200)
    L = k.L
    Q = 12
    KF = [22, 28]
    VF = [36, 44]
    P = 52
    O = 68
    SB = [100, 132]
    CM = 164
    vK1, vK2, vV = 2, 3, 4
    bK1, bK2, bV, mV = 8, 9, 10, 11
    vD = 5
    ts_begin(k, TS)
    k.e(f"""s_cmp_ge_u32 s2, 256
s_cbranch_scc1 {L('end')}
s_load_dwordx2 s[12:13], s[0:1], {KA['ws']}
v_lshrrev_b32 v2, 6, v0
v_and_b32 v1, 63, v0
v_readfirstlane_b32 s18, v2
s_and_b32 s20, s2, 7
s_lshr_b32 s21, s2, 3
s_lshl_b32 s16, s20, 2
s_lshr_b32 s22, s21, 3
s_add_u32 s16, s16, s22
s_and_b32 s17, s21, 7
s_lshl_b32 s17, s17, 8
s_lshr_b32 s22, s16, 1
s_and_b32 s23, s16, 1
s_mul_i32 s24, s22, 5
s_add_u32 s25, s24, 2
s_mul_i32 s26, s23, 3
s_add_u32 s24, s24, s26
s_lshl_b32 s24, s24, 15
s_lshl_b32 s25, s25, 15
s_lshl_b32 s23, s23, 3
s_and_b32 s19, s18, 3
s_lshr_b32 s20, s18, 2
v_and_b32 v6, 31, v1
v_lshrrev_b32 v7, 5, v1
v_lshlrev_b32 v{vD}, 4, v1
; DMA sources: n = 3j+i ; n<6: plane (n/2), half n%2 ; n>=6: V piece n-6
s_lshl_b32 s21, s20, 14
s_add_u32 s21, s21, {WS_KP}
s_add_u32 s26, s24, s21
s_add_u32 s27, s25, s21
s_mul_i32 s28, s16, 81920
s_mul_i32 s29, s20, 40960
s_add_u32 s28, s28, s29
s_add_u32 s28, s28, {WS_VP}
s_mov_b32 s46, s26
s_add_u32 s47, s26, 1024
s_add_u32 s48, s26, 32768
s_cmp_eq_u32 s19, 1
s_cbranch_scc0 {L('nj1')}
s_add_u32 s46, s26, {32768+1024}
s_mov_b32 s47, s27
s_add_u32 s48, s27, 1024""")
    k.label('nj1')
    k.e(f"""s_mov_b32 s49, 2048
s_cmp_ge_u32 s19, 2
s_cbranch_scc0 {L('nj2')}
s_sub_u32 s29, s19, 2
s_mul_i32 s29, s29, 3072
s_add_u32 s46, s28, s29
s_add_u32 s47, s46, 1024
s_add_u32 s48, s46, 2048
s_mov_b32 s49, 5120""")
    k.label('nj2')
    k.e(f"""s_mul_i32 s50, s20, {GCH}
s_mul_i32 s29, s19, 3072
s_add_u32 s50, s50, s29
s_lshl_b32 s29, s19, 6
s_add_u32 s17, s17, s29
s_lshl_b32 s29, s17, 4
s_add_u32 s30, s24, s29
s_add_u32 s31, s25, s29
s_add_u32 s31, s31, s23
v_lshlrev_b32 v{bK2}, 4, v6
v_lshl_add_u32 v34, v7, 15, v{bK2}
s_waitcnt lgkmcnt(0)""")
    k.srd(12, 12, WS_SIZE)
    assert WS_QP == 0
    k.e(f"""buffer_load_dwordx4 v[{Q}:{Q+3}], v34, s[12:15], s30 offen
buffer_load_dwordx4 v[{Q+4}:{Q+7}], v34, s[12:15], s30 offen offset:512
buffer_load_dwordx2 v[{Q+8}:{Q+9}], v{vD}, s[12:15], s31 offen""")
    for r in range(32): k.e(f"v_mov_b32 v{CM+r}, 0")
    k.e("s_mov_b32 s37, 0")
    k.e(f"""s_mul_i32 s29, s20, {GCH}
v_lshl_add_u32 v{bK1}, v7, 11, v{bK2}
v_add_u32 v{bK1}, s29, v{bK1}
v_mul_u32_u24 v{bV}, 320, v7
v_add_u32 v{bV}, v{bV}, v{bK2}
s_add_u32 s21, s29, 6144
v_add_u32 v{bV}, s21, v{bV}
s_add_u32 s21, s29, 4096
s_add_u32 s21, s21, s23
v_add_u32 v{bK2}, s21, v{bK2}
v_cmp_gt_u32 vcc, 20, v6
v_mov_b32 v35, {ONES}
v_mov_b32 v{mV}, 0
v_cndmask_b32 v{bV}, v35, v{bV}, vcc
v_cndmask_b32 v{mV}, 0, 1, vcc
v_mov_b32 v{O}, 0x3f803f80
v_mov_b32 v{O+1}, 0x3f803f80
v_mov_b32 v{O+2}, 0x3f803f80
v_mov_b32 v{O+3}, 0
v_mul_u32_u24 v35, 12, v0
v_min_u32 v35, 5108, v35
v_add_u32 v35, {ONES}, v35
ds_write_b32 v35, v{O}
ds_write_b32 v35, v{O} offset:4
ds_write_b32 v35, v{O} offset:8
v_mov_b32 v35, {FLAG}
ds_write_b32 v35, v{O+3}""")
    def issue():
        out = []
        for i in range(3):
            out += [f"s_add_u32 m0, s51, {i*1024}", f"s_add_u32 s{52+i}, s{52+i}, s49",
                    f"buffer_load_dwordx4 v{vD}, s[12:15], s{52+i} offen lds"]
        out += [f"s_add_u32 s51, s51, {SLOT}", f"s_cmp_ge_u32 s51, {NSLOT*SLOT}", f"s_cselect_b32 s51, s50, s51"]
        return out
    k.label('main')
    k.e(f"""s_mov_b32 s51, s50
s_sub_u32 s52, s46, s49
s_sub_u32 s53, s47, s49
s_sub_u32 s54, s48, s49""")
    for c in range(3):
        for s_ in issue(): k.e(s_)
    def m2b(kf, s):  return f"v_mfma_f32_32x32x4_2b_bf16 v[{s}:{s+31}], v[{kf+4}:{kf+5}], v[{Q+8}:{Q+9}], v[{CM}:{CM+31}]"
    def k16(kf, b, s): return f"v_mfma_f32_32x32x16_bf16 v[{s+16*b}:{s+16*b+15}], v[{kf}:{kf+3}], v[{Q+4*b}:{Q+4*b+3}], v[{s+16*b}:{s+16*b+15}]"
    def pv(vf, b, a):
        o = O + 16*b; p = P + 8*b + 4*a
        return f"v_mfma_f32_32x32x16_bf16 v[{o}:{o+15}], v[{vf+4*a}:{vf+4*a+3}], v[{p}:{p+3}], v[{o}:{o+15}]"
    def group(s, gi):
        b = s + 8*gi; p = P + 4*gi
        E = lambda i: f"v_exp_f32 v{b+i}, v{b+i}"
        C = lambda i: f"v_cvt_pk_bf16_f32 v{p+i}, v{b+2*i}, v{b+2*i+1}"
        return [E(0), E(1), E(2), C(0), E(3), E(4), C(1), E(5), E(6), C(2), E(7)], C(3)
    def rdK(kf, tile): return [f"ds_read_b128 v[{kf}:{kf+3}], v{vK1} offset:{tile*512}", f"ds_read_b64 v[{kf+4}:{kf+5}], v{vK2} offset:{tile*512}"]
    def rdV(vf, tile): return [f"ds_read_b128 v[{vf}:{vf+3}], v{vV} offset:{tile*1280}", f"ds_read_b128 v[{vf+4}:{vf+7}], v{vV} offset:{tile*1280+640}"]
    for r in range(32): k.e(f"v_mov_b32 v{O+r}, 0")
    for r in range(4): k.e(f"v_mov_b32 v{P+12+r}, 0\nv_mov_b32 v{VF[1]+4+r}, 0")
    k.e(f"v_mov_b32 v{SB[1]+30}, 0\nv_mov_b32 v{SB[1]+31}, 0")
    k.e(f"""v_mov_b32 v{vK1}, v{bK1}
v_mov_b32 v{vK2}, v{bK2}
v_mov_b32 v{vV}, v{bV}
s_mov_b32 s55, 0
s_mov_b32 s36, 0
s_waitcnt vmcnt(6) lgkmcnt(0)""")
    ts_mark(k, TS, 0)
    k.e("s_barrier")
    ts_mark(k, TS, 1); ts_cyc(k, TS, 4)
    for s_ in rdK(KF[0], 0) + rdK(KF[1], 1) + rdV(VF[0], 0): k.e(s_)
    k.e("s_waitcnt lgkmcnt(4)" if not TS else "s_waitcnt lgkmcnt(0)")
    k.e(m2b(KF[0], SB[0])); k.e("s_nop 15\ns_nop 3")
    k.e(k16(KF[0], 0, SB[0])); k.e(k16(KF[0], 1, SB[0])); k.e("s_nop 9")
    k.e(".p2align 3")
    k.label('chunk')
    cost = lambda x: 8 if "v_exp" in x else 4
    for t in range(4):
        cur, nxt = SB[t & 1], SB[(t+1) & 1]
        kf = KF[(t+1) & 1]; kn = KF[t & 1]
        vf = VF[t & 1]; vn = VF[(t+1) & 1]
        G = [group(cur, i) for i in range(4)]
        V = [group(nxt, 3)[1]] + G[0][0] + G[1][0][:1] + [G[0][1]] + G[1][0][1:] + G[2][0][:1] + [G[1][1]] + G[2][0][1:] + G[3][0][:1] + [G[2][1]] + G[3][0][1:]
        rk = rdK(kn, (t+2) % 4); rv = rdV(vn, (t+1) % 4)
        seq = []
        if t == 2: seq += ["s_waitcnt vmcnt(3) lgkmcnt(0)", "s_barrier"]
        else: seq += ["s_waitcnt lgkmcnt(0)"]
        if prio: seq += [f"s_setprio {3 - (t+2) % 4}"]
        ev = [(4, [m2b(kf, nxt), rk[0]]), (76, [pv(vn, 1, 1), rk[1]]), (116, [pv(vf, 0, 0), rv[0]]), (156, [k16(kf, 0, nxt), rv[1]]),
              (196, [pv(vf, 0, 1)]), (236, [k16(kf, 1, nxt)]), (280, [pv(vf, 1, 0)])]
        if t == 1:
            ev[6][1].extend([f"s_add_u32 s55, s55, {SLOT}", f"s_cmp_ge_u32 s55, {NSLOT*SLOT}", "s_cselect_b32 s55, 0, s55"])
            V += [f"v_add_u32 v{vK1}, s55, v{bK1}", f"v_add_u32 v{vK2}, s55, v{bK2}"]
        if t == 2:
            iss = issue()
            ev[4][1].extend(iss[0:3]); ev[5][1].extend(iss[3:6]); ev[6][1].extend(iss[6:])
            V += [f"v_mad_u32_u24 v{vV}, v{mV}, s55, v{bV}"]
        if t == 3:
            ev[6][1].extend(["s_add_u32 s36, s36, 1", "s_cmp_lt_u32 s36, 8"])
        tm = 0
        for v in V:
            while ev and ev[0][0] <= tm: seq += ev.pop(0)[1]
            seq.append(v); tm += cost(v)
        assert not ev
        assert seq.index(k16(kf, 0, nxt)) - seq.index(m2b(kf, nxt)) > 18
        for (b_, a_, c_) in ((0, 0, G[0][1]), (0, 1, G[1][1]), (1, 0, G[2][1])):
            assert seq.index(pv(vf, b_, a_)) - seq.index(c_) > 2
        for s_ in seq: k.e(s_)
    k.e(f"s_cbranch_scc1 {L('chunk')}")
    k.e(group(SB[1], 3)[1]); k.e("s_nop 1")
    k.e(pv(VF[1], 1, 1))
    ts_mark(k, TS, 2); ts_cyc(k, TS, 5)
    T = SB[0]; KP = SB[1]
    k.e(f"""s_waitcnt vmcnt(0) lgkmcnt(0)
s_setprio 0
s_barrier
s_mul_i32 s21, s18, 3072
v_add_u32 v2, s21, v{vD}
s_xor_b32 s21, s18, 4
s_mul_i32 s21, s21, 3072
v_add_u32 v3, s21, v{vD}
s_cmp_eq_u32 s20, 0
s_nop 4
s_cbranch_scc1 {L('keep0')}""")
    for g in range(3): k.e(f"ds_write_b128 v2, v[{O+4*g}:{O+4*g+3}] offset:{g*1024}")
    for r in range(12): k.e(f"v_mov_b32 v{KP+r}, v{O+16+r}")
    k.e(f"s_branch {L('kept')}")
    k.label('keep0')
    for g in range(3): k.e(f"ds_write_b128 v2, v[{O+16+4*g}:{O+16+4*g+3}] offset:{g*1024}")
    for r in range(12): k.e(f"v_mov_b32 v{KP+r}, v{O+r}")
    k.label('kept')
    k.e(f"""s_lshl_b32 s27, s20, 5
s_add_u32 s27, s27, s17
v_add_u32 v{T+16}, s27, v6
v_lshrrev_b32 v{T+17}, 4, v{T+16}
v_mul_u32_u24 v{T+17}, 20480, v{T+17}
v_and_b32 v{T+16}, 15, v{T+16}
v_lshl_add_u32 v{T+17}, v{T+16}, 4, v{T+17}
v_add_u32 v{T+17}, {WS_OI}, v{T+17}
s_mul_i32 s27, s16, 5
v_add_u32 v{T+16}, s27, v7""")
    for g in range(3):
        if g: k.e(f"v_add_u32 v{T+16}, 2, v{T+16}")
        k.e(f"""v_lshrrev_b32 v{T+18}, 3, v{T+16}
v_lshl_add_u32 v{T+20+g}, v{T+18}, 10, v{T+17}
v_and_b32 v{T+18}, 3, v{T+16}
v_lshl_add_u32 v{T+20+g}, v{T+18}, 8, v{T+20+g}
v_bfe_u32 v{T+18}, v{T+16}, 2, 1
v_lshl_add_u32 v{T+20+g}, v{T+18}, 3, v{T+20+g}""")
    k.e("s_waitcnt lgkmcnt(0)\ns_barrier")
    for g in (2, 0, 1): k.e(f"ds_read_b128 v[{T+4*g}:{T+4*g+3}], v3 offset:{g*1024}")
    k.e(f"""s_mov_b32 s38, {f2u(2.0**-30)}
s_mov_b32 s39, {f2u(2.0**100)}
s_waitcnt lgkmcnt(2)
v_pk_add_f32 v[{T+8}:{T+9}], v[{T+8}:{T+9}], v[{KP+8}:{KP+9}]
v_pk_add_f32 v[{T+10}:{T+11}], v[{T+10}:{T+11}], v[{KP+10}:{KP+11}]
v_mov_b32 v{T+13}, v{T+8}
v_mov_b32 v{T+12}, v{T+8}
s_waitcnt lgkmcnt(0)
v_pk_add_f32 v[{T}:{T+1}], v[{T}:{T+1}], v[{KP}:{KP+1}]
v_permlane32_swap_b32 v{T+13}, v{T+12}
v_pk_add_f32 v[{T+2}:{T+3}], v[{T+2}:{T+3}], v[{KP+2}:{KP+3}]
v_rcp_f32 v{T+14}, v{T+12}
v_pk_add_f32 v[{T+4}:{T+5}], v[{T+4}:{T+5}], v[{KP+4}:{KP+5}]
v_pk_add_f32 v[{T+6}:{T+7}], v[{T+6}:{T+7}], v[{KP+6}:{KP+7}]""")
    for r in range(0, 12, 2): k.e(f"v_pk_mul_f32 v[{T+r}:{T+r+1}], v[{T+r}:{T+r+1}], v[{T+14}:{T+15}] op_sel_hi:[1,0]")
    for g in range(3):
        k.e(f"v_cvt_pk_bf16_f32 v{T+24+2*g}, v{T+4*g}, v{T+4*g+1}\nv_cvt_pk_bf16_f32 v{T+25+2*g}, v{T+4*g+2}, v{T+4*g+3}")
    k.e(f"""buffer_store_dwordx2 v[{T+24}:{T+25}], v{T+20}, s[12:15], 0 offen
buffer_store_dwordx2 v[{T+26}:{T+27}], v{T+21}, s[12:15], 0 offen
s_mov_b32 exec_hi, 0
buffer_store_dwordx2 v[{T+28}:{T+29}], v{T+22}, s[12:15], 0 offen
s_mov_b32 exec_hi, -1
s_cmp_lg_u32 s37, 0
s_cbranch_scc1 {L('done')}""")
    k.e(f"v_mul_f32 v{T+15}, 0, v{T}")
    for r in range(1, 12): k.e(f"v_fmac_f32 v{T+15}, 0, v{T+r}")
    k.e(f"""v_cmp_nge_f32 s[40:41], v{T+12}, s38
v_cmp_nle_f32 s[42:43], v{T+12}, s39
v_cmp_u_f32 vcc, v{T+15}, v{T+15}
s_or_b64 s[40:41], s[40:41], s[42:43]
s_nop 0
s_or_b64 s[40:41], s[40:41], vcc""")
    if force_slow: k.e("s_cmp_eq_u32 s37, 0")
    k.e(f"""v_mov_b32 v{T+16}, {FLAG}
s_cbranch_scc0 {L('noflag')}
v_mov_b32 v{T+17}, 1
ds_write_b32 v{T+16}, v{T+17}""")
    k.label('noflag')
    k.e(f"""s_waitcnt lgkmcnt(0)
s_barrier
ds_read_b32 v{T+17}, v{T+16}
s_waitcnt lgkmcnt(0)
v_readfirstlane_b32 s37, v{T+17}
s_nop 3
s_cmp_lg_u32 s37, 0
s_cbranch_scc1 {L('slow')}""")
    k.label('done')
    ts_end(k, TS, 1, 12, 100)
    k.label('end')
    k.e("s_endpgm")
    k.label('slow')
    S0 = SB[0]; MX = P; kf = KF[0]
    k.e(f"""s_waitcnt vmcnt(0)
v_mov_b32 v{MX}, 0xff800000
v_mov_b32 v{MX+1}, 0xff800000
s_add_u32 s56, s24, {WS_KP}
s_add_u32 s57, s25, {WS_KP}
s_add_u32 s57, s57, s23
v_lshlrev_b32 v35, 4, v6
s_mov_b32 s36, 0""")
    k.label('mloop')
    k.e(f"""buffer_load_dwordx4 v[{kf}:{kf+3}], v34, s[12:15], s56 offen
buffer_load_dwordx2 v[{kf+4}:{kf+5}], v35, s[12:15], s57 offen
s_add_u32 s56, s56, 512
s_add_u32 s57, s57, 512
s_waitcnt vmcnt(0)""")
    k.e(m2b(kf, S0)); k.e("s_nop 15\ns_nop 3")
    k.e(k16(kf, 0, S0)); k.e(k16(kf, 1, S0)); k.e("s_nop 11")
    for b in range(2):
        for r in range(0, 16, 2):
            k.e(f"v_max3_f32 v{MX+b}, v{S0+16*b+r}, v{S0+16*b+r+1}, v{MX+b}")
    k.e(f"""s_add_u32 s36, s36, 1
s_cmp_lt_u32 s36, 64
s_cbranch_scc1 {L('mloop')}
v_mov_b32 v{MX+2}, v{MX}
v_mov_b32 v{MX+3}, v{MX+1}
s_nop 1
v_permlane32_swap_b32 v{MX}, v{MX+2}
v_permlane32_swap_b32 v{MX+1}, v{MX+3}
s_nop 1
v_max_f32 v{MX}, v{MX}, v{MX+2}
v_max_f32 v{MX+1}, v{MX+1}, v{MX+3}""")
    for b in range(2):
        for r in range(16): k.e(f"v_sub_f32 v{CM+16*b+r}, 0, v{MX+b}")
    k.e(f"s_branch {L('main')}")
    return k
```

```python
from common import *
from ts import *

def row160_offsets(k, lane, dst, n, pitch, t0=3):
    for u in range(64*n): assert (u*6554) >> 16 == u//10
    for i in range(n):
        k.e(f"""v_add_u32 v{t0}, {64*i}, v{lane}
v_mul_u32_u24 v{t0+1}, 6554, v{t0}
v_lshrrev_b32 v{t0+1}, 16, v{t0+1}
v_mul_u32_u24 v{t0+1}, {pitch-160}, v{t0+1}
v_lshl_add_u32 v{dst+i}, v{t0}, 4, v{t0+1}""")

def store_tile(k, X, vaddr, vtmp, srd, lane_g):
    k.e(f"""v_and_b32 v{vtmp}, 1, v{lane_g}
v_mul_u32_u24 v{vtmp}, 24, v{vtmp}
v_add_u32 v{vtmp}, v{vaddr}, v{vtmp}
s_nop 0
v_permlane16_swap_b32 v{X}, v{X+2}
v_permlane16_swap_b32 v{X+1}, v{X+3}
v_permlane16_swap_b32 v{X+4}, v{X+6}
v_permlane16_swap_b32 v{X+5}, v{X+7}
buffer_store_dwordx2 v[{X+8}:{X+9}], v{vaddr}, s[{srd}:{srd+3}], 0 offen offset:128
buffer_store_dwordx4 v[{X}:{X+3}], v{vtmp}, s[{srd}:{srd+3}], 0 offen
buffer_store_dwordx4 v[{X+4}:{X+7}], v{vtmp}, s[{srd}:{srd+3}], 0 offen offset:64""")

def kernel_C(TS=False):
    XT = 102400
    RED = XT + 12288
    k = K("proj_kernel", 256, 512, RED + 20480, 136)
    L = k.L
    OF = 32; ACC = 72; WF = 92; XR = 12
    ts_begin(k, TS)
    k.e(f"""s_cmp_ge_u32 s2, 256
s_cbranch_scc1 {L('end')}
s_load_dwordx2 s[12:13], s[0:1], {KA['ws']}
s_load_dwordx2 s[4:5], s[0:1], {KA['x']}
v_lshrrev_b32 v2, 6, v0
v_and_b32 v1, 63, v0
v_readfirstlane_b32 s18, v2
; xcd = wg%8 -> row blocks 4*xcd..4*xcd+3 ; idx = wg/8 : col tile = idx%8, rb = idx/8
s_and_b32 s20, s2, 7
s_lshr_b32 s21, s2, 3
s_lshl_b32 s20, s20, 2
s_lshr_b32 s22, s21, 3
s_add_u32 s20, s20, s22
s_lshl_b32 s16, s20, 6
s_and_b32 s21, s21, 7
s_mul_i32 s17, s21, 160
s_and_b32 s25, s18, 3
s_lshr_b32 s26, s18, 2
s_mul_i32 s27, s26, 10
s_add_u32 s27, s27, s25
s_mul_i32 s29, s27, 5120
s_mul_i32 s28, s21, 102400
s_add_u32 s28, s28, s29
s_add_u32 s28, s28, {WS_WO}
s_lshr_b32 s30, s16, 4
s_add_u32 s30, s30, s25
s_mul_i32 s30, s30, 20480
s_mul_i32 s31, s26, 10240
s_add_u32 s30, s30, s31
s_add_u32 s30, s30, {WS_OI}
v_lshlrev_b32 v2, 4, v1
s_mov_b32 m0, s29
s_waitcnt lgkmcnt(0)""")
    k.srd(12, 12, WS_SIZE); k.srd(4, 4, SZ['x'])
    def dma():
        for n in range(4): k.e(f"buffer_load_dwordx4 v2, s[12:15], s28 offen offset:{n*1024} lds")
        k.e(f"""s_add_u32 m0, s29, 4096
s_add_u32 s28, s28, 4096
buffer_load_dwordx4 v2, s[12:15], s28 offen lds
s_add_u32 s28, s28, {4*5120-4096}
s_add_u32 s29, s29, {4*5120}
s_mov_b32 m0, s29""")
    def oload(a, b):
        for j in range(a, b):
            k.e(f"buffer_load_dwordx4 v[{OF+4*j}:{OF+4*j+3}], v2, s[12:15], s30 offen offset:{(j%4)*1024}")
            if j % 4 == 3: k.e("s_add_u32 s30, s30, 4096")
    dma(); oload(0, 4)
    dma(); oload(4, 8)
    k.e(f"""s_cmp_ge_u32 s25, 2
s_cbranch_scc1 {L('xl')}""")
    dma()
    k.e(f"s_branch {L('xd')}")
    k.label('xl')
    row160_offsets(k, 1, 24, 3, 1280)
    k.e(f"""s_lshl_b32 s31, s26, 1
s_add_u32 s31, s31, s25
s_sub_u32 s31, s31, 2
s_lshl_b32 s32, s31, 4
s_add_u32 s32, s32, s16
s_mul_i32 s32, s32, 1280
s_add_u32 s32, s32, s17
s_mul_i32 s31, s31, 3072
s_add_u32 m0, s31, {XT}
s_nop 0
buffer_load_dwordx4 v24, s[4:7], s32 offen lds
s_add_u32 m0, s31, {XT+1024}
s_nop 0
buffer_load_dwordx4 v25, s[4:7], s32 offen lds
s_add_u32 m0, s31, {XT+2048}
s_mov_b32 exec_hi, 0
buffer_load_dwordx4 v26, s[4:7], s32 offen lds
s_mov_b32 exec_hi, -1""")
    k.label('xd')
    oload(8, 10)
    k.e(f"""v_and_b32 v6, 15, v1
v_lshrrev_b32 v7, 4, v1
s_lshl_b32 s31, s25, 4
s_add_u32 s31, s31, s16
v_add_u32 v8, s31, v6
v_mul_u32_u24 v9, 1280, v8
v_lshl_add_u32 v9, v7, 3, v9
s_add_u32 s31, s17, {WS_HB}
v_add_u32 v9, s31, v9
v_lshrrev_b32 v3, 2, v1
v_mul_u32_u24 v3, 160, v3
v_and_b32 v4, 3, v1
v_lshl_add_u32 v3, v4, 3, v3
s_mul_i32 s31, s26, 51200
v_add_u32 v3, s31, v3
s_mul_i32 s31, s25, 5120
v_add_u32 v4, s31, v2
v_add_u32 v4, {RED}, v4
v_mul_u32_u24 v5, 160, v6
v_lshl_add_u32 v5, v7, 3, v5
s_mul_i32 s31, s25, 3072
s_add_u32 s31, s31, {XT}
v_add_u32 v5, s31, v5""")
    def reads(j):
        out = []
        for nt in range(5):
            b = WF + 20*(j & 1) + 4*nt
            out.append(f"ds_read_b64_tr_b16 v[{b}:{b+1}], v3 offset:{j*5120 + nt*32}")
            out.append(f"ds_read_b64_tr_b16 v[{b+2}:{b+3}], v3 offset:{j*5120 + 2560 + nt*32}")
        return out
    phases = [(0, 4, 14), (4, 8, 5), (8, 10, 0)]
    for (a, b, vm) in phases:
        if a == 0: ts_mark(k, TS, 0)
        k.e(f"s_waitcnt vmcnt({vm})\ns_barrier")
        ts_mark(k, TS, 1 + a//4)
        if TS: k.e("s_waitcnt lgkmcnt(0)")
        for r in reads(a): k.e(r)
        for j in range(a, b):
            s = j & 1
            nxt = reads(j+1) if j+1 < b else []
            for nt in range(5):
                w = WF + 20*s + 4*nt
                for r in nxt[2*nt:2*nt+2]: k.e(r)
                k.e(f"s_waitcnt lgkmcnt({10 if nxt else 8-2*nt})")
                c = "0" if j == 0 else f"v[{ACC+4*nt}:{ACC+4*nt+3}]"
                k.e(f"v_mfma_f32_16x16x32_bf16 v[{ACC+4*nt}:{ACC+4*nt+3}], v[{w}:{w+3}], v[{OF+4*j}:{OF+4*j+3}], {c}")
    k.e(f"""s_cmp_eq_u32 s26, 0
s_cbranch_scc1 {L('fin')}
s_nop 1""")
    for nt in range(5): k.e(f"ds_write_b128 v4, v[{ACC+4*nt}:{ACC+4*nt+3}] offset:{nt*1024}")
    k.e("s_waitcnt lgkmcnt(0)\ns_barrier")
    ts_end(k, TS, 2, 12, 40)
    k.e("s_endpgm")
    k.label('fin')
    ts_mark(k, TS, 4)
    if TS: k.e("s_waitcnt lgkmcnt(0)")
    for nt in range(5): k.e(f"ds_read_b64 v[{XR+2*nt}:{XR+2*nt+1}], v5 offset:{nt*32}")
    k.e("v_mov_b32 v10, 0\nv_mov_b32 v11, 0\nv_mov_b32 v5, 0x3f803f80\ns_waitcnt lgkmcnt(0)")
    for nt in range(5):
        a = ACC + 4*nt; x = XR + 2*nt
        k.e(f"""v_lshlrev_b32 v22, 16, v{x}
v_and_b32 v23, 0xffff0000, v{x}
v_lshlrev_b32 v24, 16, v{x+1}
v_and_b32 v25, 0xffff0000, v{x+1}
v_pk_add_f32 v[{a}:{a+1}], v[{a}:{a+1}], v[22:23]
v_pk_add_f32 v[{a+2}:{a+3}], v[{a+2}:{a+3}], v[24:25]""")
    k.e("s_barrier")
    for nt in range(5): k.e(f"ds_read_b128 v[{WF+4*nt}:{WF+4*nt+3}], v4 offset:{nt*1024}")
    for nt in range(5):
        a = ACC + 4*nt; w = WF + 4*nt; x = XR + 2*nt
        k.e(f"""s_waitcnt lgkmcnt({4-nt})
v_pk_add_f32 v[{a}:{a+1}], v[{a}:{a+1}], v[{w}:{w+1}]
v_pk_add_f32 v[{a+2}:{a+3}], v[{a+2}:{a+3}], v[{w+2}:{w+3}]
v_cvt_pk_bf16_f32 v{x}, v{a}, v{a+1}
v_cvt_pk_bf16_f32 v{x+1}, v{a+2}, v{a+3}""")
    store_tile(k, XR, 9, 22, 12, 7)
    for r in range(10):
        k.e(f"v_dot2c_f32_bf16 v10, v{XR+r}, v5\nv_dot2c_f32_bf16 v11, v{XR+r}, v{XR+r}")
    k.e(f"""v_lshlrev_b32 v8, 3, v8
v_and_b32 v7, 1, v7
v_lshl_add_u32 v8, v7, 2, v8
v_add_u32 v8, {WS_ST}, v8
v_permlane32_swap_b32 v10, v11
s_nop 1
v_add_f32 v10, v10, v11
v_mov_b32 v11, v10
s_nop 1
v_permlane16_swap_b32 v10, v11
v_lshrrev_b32 v7, 5, v1
v_lshlrev_b32 v7, 2, v7
v_add_f32 v10, v10, v11
v_and_b32 v8, 0xfffffffb, v8
v_or_b32 v8, v8, v7
s_mov_b32 exec_lo, 0xffff
s_mov_b32 exec_hi, 0xffff
buffer_atomic_add_f32 v10, v8, s[12:15], 0 offen""")
    ts_mark(k, TS, 5)
    ts_end(k, TS, 2, 12, 40)
    k.label('end')
    k.e("s_endpgm")
    return k
```

```python
from common import *
from ts import *
import math

def kernel_D(TS=False):
    TAB = 131072
    k = K("mix1_kernel", 240, 768, 131072 + 16384, 128)
    L = k.L
    ts_begin(k, TS)
    k.e(f"""s_cmp_ge_u32 s2, 240
s_cbranch_scc1 {L('end')}
s_load_dwordx4 s[4:7], s[0:1], {KA['w1']}
s_load_dwordx2 s[12:13], s[0:1], {KA['ws']}
v_lshrrev_b32 v2, 6, v0
v_and_b32 v1, 63, v0
v_readfirstlane_b32 s18, v2
; d block = wg/24, f block = wg%24
s_mul_i32 s16, s2, 171
s_lshr_b32 s16, s16, 12
s_mul_i32 s17, s16, 24
s_sub_u32 s17, s2, s17
s_cmp_lt_u32 s18, 8
s_cbranch_scc1 {L('compute')}""")
    for w in range(248): assert (w*171) >> 12 == w//24
    k.e(f"""s_sub_u32 s25, s18, 8
v_lshrrev_b32 v4, 3, v1
s_lshl_b32 s26, s25, 5
v_add_u32 v4, s26, v4
v_bfe_u32 v5, v1, 4, 1
v_lshlrev_b32 v5, 2, v5
v_and_b32 v6, 7, v1
v_xor_b32 v5, v5, v6
v_lshlrev_b32 v5, 4, v5
v_mul_u32_u24 v2, 3072, v4
v_add_u32 v2, v2, v5
v_mul_u32_u24 v3, 1280, v4
v_add_u32 v3, v3, v5
s_lshl_b32 s28, s17, 7
s_lshl_b32 s29, s16, 7
s_add_u32 s29, s29, {WS_HB}
s_lshl_b32 s30, s25, 12
s_mov_b32 s33, 0
s_waitcnt lgkmcnt(0)""")
    k.srd(4, 4, SZ['w1']); k.srd(12, 12, WS_SIZE)
    k.label('lloop')
    for i in range(4):
        k.e(f"""s_add_u32 m0, s30, {i*1024}
s_add_u32 s32, s29, {i*8*1280}
buffer_load_dwordx4 v3, s[12:15], s32 offen lds
s_add_u32 m0, s30, {16384 + i*1024}
s_add_u32 s32, s28, {i*8*3072}
buffer_load_dwordx4 v2, s[4:7], s32 offen lds""")
    k.e(f"""s_add_u32 s28, s28, {128*3072}
s_add_u32 s29, s29, {128*1280}
s_add_u32 s30, s30, 32768
s_and_b32 s30, s30, 0x1ffff
s_add_u32 s33, s33, 1
s_cmp_lt_u32 s33, 3
s_cbranch_scc1 {L('lloop')}
s_waitcnt vmcnt(16)
s_barrier
s_cmp_lt_u32 s33, 16
s_cbranch_scc1 {L('lloop')}
s_waitcnt vmcnt(8)
s_barrier
s_waitcnt vmcnt(0)
s_barrier""")
    ts_end(k, TS, 3, 12, 40)
    k.e("s_endpgm")
    k.label('compute')
    k.e(f"""v_lshlrev_b32 v2, 5, v0
v_add_u32 v3, {WS_ST}, v2
s_and_b32 s25, s18, 1
s_lshr_b32 s26, s18, 1
v_lshrrev_b32 v11, 5, v1
; bias for the piece this wave finishes: nb = kq/2, a = kq%2 : f = f0 + 16*kq + 8*eh + 4h + e
s_lshl_b32 s27, s17, 7
s_lshl_b32 s28, s26, 5
s_add_u32 s27, s27, s28
v_lshlrev_b32 v4, 3, v11
s_waitcnt lgkmcnt(0)
s_mov_b32 s8, s6
s_mov_b32 s9, s7""")
    k.srd(8, 8, SZ['b1']); k.srd(12, 12, WS_SIZE)
    k.e(f"""buffer_load_dwordx4 v[32:35], v3, s[12:15], 0 offen
buffer_load_dwordx4 v[36:39], v3, s[12:15], 0 offen offset:16
buffer_load_dwordx2 v[120:121], v4, s[8:11], s27 offen
buffer_load_dwordx2 v[122:123], v4, s[8:11], s27 offen offset:16""")
    k.e(f"""v_bfe_u32 v4, v1, 2, 2
v_lshl_add_u32 v5, v11, 3, v4
v_add_u32 v5, s28, v5
v_lshlrev_b32 v5, 7, v5
v_bfe_u32 v6, v1, 4, 1
v_lshlrev_b32 v6, 1, v6
v_bfe_u32 v7, v1, 1, 1
v_add_u32 v6, v6, v7
v_bfe_u32 v7, v1, 3, 1
v_lshl_add_u32 v6, v7, 2, v6
v_lshl_add_u32 v5, v6, 4, v5
v_and_b32 v6, 1, v1
v_lshl_add_u32 v5, v6, 3, v5
s_lshl_b32 s27, s25, 6
v_xor_b32 v12, s27, v5
v_add_u32 v13, 16384, v5
v_xor_b32 v14, 64, v13
v_lshlrev_b32 v18, 5, v11
s_lshl_b32 s27, s26, 7
s_add_u32 s27, s27, {TAB}
v_add_u32 v18, s27, v18
v_lshlrev_b32 v2, 4, v0
v_add_u32 v2, {TAB}, v2
s_mov_b32 s20, {f2u(1e-5)}""")
    ACC = 88
    for r in range(32): k.e(f"v_mov_b32 v{ACC+r}, 0")
    k.e("s_waitcnt vmcnt(2)")
    for p in range(4):
        a = 32 + 2*p
        k.e(f"""v_mul_f32 v48, {f2u(-1.0/D)}, v{a}
v_mul_f32 v49, {f2u(1.0/D)}, v{a+1}
v_fma_f32 v49, -v48, v48, v49
v_max_f32 v49, 0, v49
v_add_f32 v50, s20, v49
v_rcp_f32 v51, v50
v_rsq_f32 v50, v50
v_fma_f32 v51, v51, v49, s20
v_rsq_f32 v51, v51
s_nop 0
v_mul_f32 v{40+p}, v50, v51
v_mul_f32 v{44+p}, v{40+p}, v48""")
    k.e("""ds_write_b128 v2, v[40:43]
ds_write_b128 v2, v[44:47] offset:8192
s_mov_b32 s33, 0
s_mov_b32 s34, 0""")
    ts_mark(k, TS, 0)
    Hh, Wf, RH, CC, TP = 20, 28, 44, 60, 76
    k.label('cloop')
    k.e("""v_add_u32 v15, s34, v12
v_add_u32 v16, s34, v13
v_add_u32 v17, s34, v14
s_waitcnt lgkmcnt(0)
s_barrier""")
    if TS:
        k.e(f"s_cmp_lg_u32 s33, 0\ns_cbranch_scc1 {L('nomark')}")
        ts_mark(k, TS, 1); ts_cyc(k, TS, 4); k.e("s_waitcnt lgkmcnt(0)")
        k.label('nomark')
    def rd_h(ks): return [f"ds_read_b64_tr_b16 v[{Hh+4*ks+2*j}:{Hh+4*ks+2*j+1}], v15 offset:{(16*ks+4*j)*128}" for j in range(2)]
    def rd_s(ks): return [f"ds_read_b128 v[{RH+8*ks}:{RH+8*ks+3}], v18 offset:{64*ks}", f"ds_read_b128 v[{CC+8*ks}:{CC+8*ks+3}], v18 offset:{8192+64*ks}",
                          f"ds_read_b128 v[{RH+8*ks+4}:{RH+8*ks+7}], v18 offset:{64*ks+16}", f"ds_read_b128 v[{CC+8*ks+4}:{CC+8*ks+7}], v18 offset:{8192+64*ks+16}"]
    def rd_w(ks): return [f"ds_read_b64_tr_b16 v[{Wf+8*ks+4*nb+2*j}:{Wf+8*ks+4*nb+2*j+1}], v{16+nb} offset:{(16*ks+4*j)*128}" for nb in range(2) for j in range(2)]
    def norm(ks):
        out = []
        for d in range(4):
            r = Hh + 4*ks + d; t = TP + 2*d
            out += [f"v_lshlrev_b32 v{t}, 16, v{r}", f"v_and_b32 v{t+1}, 0xffff0000, v{r}"]
        for d in range(4):
            t = TP + 2*d
            out += [f"v_pk_fma_f32 v[{t}:{t+1}], v[{t}:{t+1}], v[{RH+8*ks+2*d}:{RH+8*ks+2*d+1}], v[{CC+8*ks+2*d}:{CC+8*ks+2*d+1}]"]
        for d in range(4):
            out += [f"v_cvt_pk_bf16_f32 v{Hh+4*ks+d}, v{TP+2*d}, v{TP+2*d+1}"]
        return out
    def mf(ks, nb): return f"v_mfma_f32_32x32x16_bf16 v[{ACC+16*nb}:{ACC+16*nb+15}], v[{Wf+8*ks+4*nb}:{Wf+8*ks+4*nb+3}], v[{Hh+4*ks}:{Hh+4*ks+3}], v[{ACC+16*nb}:{ACC+16*nb+15}]"
    for r in rd_h(0) + rd_s(0) + rd_h(1) + rd_s(1): k.e(r)
    n0 = norm(0); n1 = norm(1)
    k.e("s_waitcnt lgkmcnt(10)")
    for x in n0[:8]: k.e(x)
    k.e("s_waitcnt lgkmcnt(6)")
    for r in rd_w(0) + rd_w(1): k.e(r)
    for x in n0[8:]: k.e(x)
    k.e("s_waitcnt lgkmcnt(8)")
    for x in n1[:8]: k.e(x)
    k.e("s_waitcnt lgkmcnt(4)")
    k.e(mf(0, 0))
    for x in n1[8:12]: k.e(x)
    k.e(mf(0, 1))
    for x in n1[12:]: k.e(x)
    k.e(f"""s_add_u32 s34, s34, 32768
s_and_b32 s34, s34, 0x1ffff
v_add_u32 v18, 512, v18
s_add_u32 s33, s33, 1
s_cmp_lt_u32 s33, 16
s_waitcnt lgkmcnt(0)""")
    k.e(mf(1, 0)); k.e(mf(1, 1))
    k.e(f"s_cbranch_scc1 {L('cloop')}")
    ts_mark(k, TS, 2); ts_cyc(k, TS, 5)
    k.e(f"""v_lshlrev_b32 v2, 4, v1
s_lshl_b32 s27, s25, 15
s_lshl_b32 s28, s26, 11
s_add_u32 s28, s28, s27
v_add_u32 v3, s28, v2
s_lshl_b32 s28, s26, 13
s_add_u32 s28, s28, s27
v_add_u32 v4, s28, v2
s_nop 3""")
    KP = 20
    for q in range(4):
        if q < 3: k.e(f"s_cmp_lg_u32 s26, {q}\ns_cbranch_scc1 {L(f'red{q+1}')}")
        for p in range(4):
            a = ACC + 8*p
            if p != q:
                k.e(f"ds_write_b128 v3, v[{a}:{a+3}] offset:{p*8192}\nds_write_b128 v3, v[{a+4}:{a+7}] offset:{p*8192+1024}")
        for r in range(8): k.e(f"v_mov_b32 v{KP+r}, v{ACC+8*q+r}")
        k.e("s_waitcnt lgkmcnt(0)\ns_barrier")
        i = 0
        for src in range(4):
            if src != q:
                k.e(f"ds_read_b128 v[{32+8*i}:{35+8*i}], v4 offset:{src*2048}\nds_read_b128 v[{36+8*i}:{39+8*i}], v4 offset:{src*2048+1024}")
                i += 1
        if q < 3:
            k.e(f"s_branch {L('redd')}")
            k.label(f'red{q+1}')
    k.label('redd')
    c1 = -2.0*math.log2(math.e)*math.sqrt(2.0/math.pi); c2 = c1*0.044715
    k.e(f"""; u image address: ((d/16)*48 + kk)*1024 + (2a+h)*256 + (d%16)*16
v_bfe_u32 v4, v1, 4, 1
s_lshl_b32 s27, s16, 2
s_lshl_b32 s28, s25, 1
s_add_u32 s27, s27, s28
v_add_u32 v4, s27, v4
v_mul_u32_u24 v4, 49152, v4
v_lshl_add_u32 v4, v11, 8, v4
v_and_b32 v5, 15, v1
v_lshl_add_u32 v4, v5, 4, v4
s_lshl_b32 s27, s17, 11
s_lshl_b32 s28, s26, 9
s_add_u32 s27, s27, s28
s_add_u32 s27, s27, {WS_UI}
s_mov_b32 s20, {f2u(c1)}
s_mov_b32 s21, {f2u(c2)}
v_mov_b32 v6, s20
s_waitcnt vmcnt(0)""")
    for r in range(8):
        bq = 120 + r//2
        k.e(f"v_lshlrev_b32 v{60+r}, 16, v{bq}" if r % 2 == 0 else f"v_and_b32 v{60+r}, 0xffff0000, v{bq}")
    for r in range(0, 8, 2): k.e(f"v_pk_add_f32 v[{KP+r}:{KP+r+1}], v[{KP+r}:{KP+r+1}], v[{60+r}:{61+r}]")
    for i in range(3):
        k.e(f"s_waitcnt lgkmcnt({4-2*i})")
        for r in range(0, 8, 2): k.e(f"v_pk_add_f32 v[{KP+r}:{KP+r+1}], v[{KP+r}:{KP+r+1}], v[{32+8*i+r}:{33+8*i+r}]")
    for r in range(8): k.e(f"v_mul_f32 v{32+r}, v{KP+r}, v{KP+r}")
    for r in range(8): k.e(f"v_fma_f32 v{32+r}, v{32+r}, s21, v6")
    for r in range(8): k.e(f"v_mul_f32 v{32+r}, v{32+r}, v{KP+r}")
    for r in range(8): k.e(f"v_exp_f32 v{32+r}, v{32+r}")
    for r in range(8): k.e(f"v_add_f32 v{32+r}, 1.0, v{32+r}")
    for r in range(8): k.e(f"v_rcp_f32 v{32+r}, v{32+r}")
    for r in range(8): k.e(f"v_mul_f32 v{32+r}, v{32+r}, v{KP+r}")
    for r in range(4): k.e(f"v_cvt_pk_bf16_f32 v{48+r}, v{32+2*r}, v{33+2*r}")
    k.e("buffer_store_dwordx4 v[48:51], v4, s[12:15], s27 offen")
    ts_mark(k, TS, 3)
    ts_end(k, TS, 3, 12, 40)
    k.label('end')
    k.e("s_endpgm")
    return k
```

```python
from common import *
from ts import *
from kC import row160_offsets, store_tile

def kernel_E(TS=False):
    SLOT = 36864
    HT = 4*SLOT
    k = K("mix2_kernel", 256, 512, HT + 12288, 128)
    L = k.L
    ts_begin(k, TS)
    k.e(f"""s_cmp_ge_u32 s2, 256
s_cbranch_scc1 {L('end')}
s_load_dwordx4 s[4:7], s[0:1], {KA['w2']}
s_load_dwordx2 s[12:13], s[0:1], {KA['ws']}
s_load_dwordx2 s[36:37], s[0:1], {KA['out']}
v_lshrrev_b32 v2, 6, v0
v_and_b32 v1, 63, v0
v_readfirstlane_b32 s18, v2
; token block = wg%32, d block = wg/32
s_and_b32 s16, s2, 31
s_lshr_b32 s17, s2, 5
s_cmp_lt_u32 s18, 4
s_cbranch_scc1 {L('compute')}""")
    k.e(f"""s_sub_u32 s25, s18, 4
v_lshrrev_b32 v4, 3, v1
s_lshl_b32 s26, s25, 5
v_add_u32 v4, s26, v4
v_lshrrev_b32 v5, 4, v1
v_lshlrev_b32 v5, 1, v5
v_and_b32 v6, 7, v1
v_xor_b32 v5, v5, v6
v_lshlrev_b32 v5, 4, v5
v_lshl_add_u32 v2, v4, 12, v5
s_lshl_b32 s28, s16, 7
v_lshlrev_b32 v3, 4, v1
s_mul_i32 s29, s17, {5*49152}
s_lshl_b32 s26, s25, 10
s_add_u32 s29, s29, s26
s_add_u32 s29, s29, {WS_UI}
s_mul_i32 s27, s25, 5120
s_lshl_b32 s35, s25, 12
s_mov_b32 s30, 0
s_mov_b32 s33, 0
s_waitcnt lgkmcnt(0)""")
    k.srd(4, 4, SZ['w2']); k.srd(12, 12, WS_SIZE)
    k.label('lloop')
    k.e("s_add_u32 s31, s30, s27\ns_add_u32 s24, s30, s35")
    for i in range(5):
        k.e(f"""s_add_u32 m0, s31, {i*1024}
s_add_u32 s32, s29, {i*49152}
buffer_load_dwordx4 v3, s[12:15], s32 offen lds""")
        if i < 4:
            k.e(f"""s_add_u32 m0, s24, {20480 + i*1024}
s_add_u32 s32, s28, {i*8*4096}
buffer_load_dwordx4 v2, s[4:7], s32 offen lds""")
    k.e(f"""s_add_u32 s28, s28, {128*4096}
s_add_u32 s29, s29, 4096
s_add_u32 s30, s30, {SLOT}
s_cmp_eq_u32 s30, {4*SLOT}
s_cselect_b32 s30, 0, s30
s_add_u32 s33, s33, 1
s_cmp_lt_u32 s33, 3
s_cbranch_scc1 {L('lloop')}
s_waitcnt vmcnt(18)
s_barrier
s_cmp_lt_u32 s33, 12
s_cbranch_scc1 {L('lloop')}""")
    row160_offsets(k, 1, 8, 3, 1280, t0=4)
    k.e(f"""s_lshl_b32 s31, s16, 6
s_lshl_b32 s32, s25, 4
s_add_u32 s32, s32, s31
s_mul_i32 s32, s32, 1280
s_mul_i32 s31, s17, 160
s_add_u32 s32, s32, s31
s_add_u32 s32, s32, {WS_HB}
s_mul_i32 s31, s25, 3072
s_add_u32 m0, s31, {HT}
s_nop 0
buffer_load_dwordx4 v8, s[12:15], s32 offen lds
s_add_u32 m0, s31, {HT+1024}
s_nop 0
buffer_load_dwordx4 v9, s[12:15], s32 offen lds
s_add_u32 m0, s31, {HT+2048}
s_mov_b32 exec_hi, 0
buffer_load_dwordx4 v10, s[12:15], s32 offen lds
s_mov_b32 exec_hi, -1
s_waitcnt vmcnt(12)
s_barrier
s_waitcnt vmcnt(3)
s_barrier
s_waitcnt vmcnt(0)
s_barrier""")
    ts_end(k, TS, 4, 12, 40)
    k.e("s_endpgm")
    k.label('compute')
    XR = 12; ACC = 24; FR = 64
    k.e(f"""s_and_b32 s25, s18, 1
s_lshr_b32 s26, s18, 1
v_and_b32 v6, 15, v1
v_lshrrev_b32 v7, 4, v1
s_lshl_b32 s27, s25, 1
s_add_u32 s27, s27, s26
s_lshl_b32 s28, s16, 6
s_lshl_b32 s29, s27, 4
s_add_u32 s28, s28, s29
v_add_u32 v8, s28, v6
v_mul_u32_u24 v9, 1280, v8
v_lshl_add_u32 v9, v7, 3, v9
s_mul_i32 s28, s17, 160
v_add_u32 v9, s28, v9
v_lshlrev_b32 v8, 1, v8
v_mul_u32_u24 v122, 160, v6
v_lshl_add_u32 v122, v7, 3, v122
s_mul_i32 s28, s27, 3072
s_add_u32 s28, s28, {HT}
v_add_u32 v122, s28, v122
s_waitcnt lgkmcnt(0)
s_mov_b32 s8, s6
s_mov_b32 s9, s7""")
    k.srd(8, 8, SZ['b2']); k.srd(36, 36, SZ['out'])
    if TS: k.srd(12, 12, WS_SIZE)
    k.e("buffer_load_ushort v22, v8, s[8:11], 0 offen")
    k.e(f"""v_bfe_u32 v4, v1, 2, 3
v_bfe_u32 v5, v1, 5, 1
v_lshl_add_u32 v5, v5, 4, v4
v_lshlrev_b32 v5, 7, v5
v_lshrrev_b32 v4, 1, v4
s_lshl_b32 s28, s25, 1
v_xor_b32 v4, s28, v4
v_lshl_add_u32 v5, v4, 5, v5
v_and_b32 v4, 3, v1
v_lshl_add_u32 v5, v4, 3, v5
s_lshl_b32 s28, s26, 13
s_add_u32 s28, s28, 20480
v_add_u32 v3, s28, v5
v_xor_b32 v4, 32, v3
v_lshlrev_b32 v2, 4, v1
s_mul_i32 s28, s26, 10240
v_add_u32 v2, s28, v2
v_mov_b32 v10, v2
v_mov_b32 v11, v3
v_mov_b32 v5, v4""")
    for r in range(40): k.e(f"v_mov_b32 v{ACC+r}, 0")
    def reads(kk):
        b = FR + 28*kk
        U = [f"ds_read_b128 v[{b+4*nt}:{b+4*nt+3}], v10 offset:{kk*5120 + nt*1024}" for nt in range(5)]
        W = [f"ds_read_b64_tr_b16 v[{b+20+4*t+2*j}:{b+21+4*t+2*j}], v{(11,5)[t]} offset:{kk*4096 + j*1024}" for t in range(2) for j in range(2)]
        return W + U
    def mf(kk, nt, t):
        b = FR + 28*kk; a = ACC + 20*t + 4*nt
        return f"v_mfma_f32_16x16x32_bf16 v[{a}:{a+3}], v[{b+4*nt}:{b+4*nt+3}], v[{b+20+4*t}:{b+23+4*t}], v[{a}:{a+3}]"
    ts_mark(k, TS, 0)
    k.e("s_mov_b32 s33, 0\ns_mov_b32 s34, 0\ns_barrier")
    ts_mark(k, TS, 1); ts_cyc(k, TS, 4)
    if TS: k.e("s_waitcnt lgkmcnt(0)")
    for r in reads(0): k.e(r)
    k.label('cloop')
    for kk in range(2):
        rd = reads(kk ^ 1)
        M = [mf(kk, nt, t) for nt in range(5) for t in range(2)]
        if kk == 0:
            k.e(rd[0]); k.e(rd[1]); k.e(rd[2]); k.e(rd[3])
            k.e("s_waitcnt lgkmcnt(4)")
            for i, m in enumerate(M):
                k.e(m)
                if i < 5: k.e(rd[4+i])
                if i == 5:
                    k.e(f"s_add_u32 s34, s34, {SLOT}\ns_cmp_eq_u32 s34, {4*SLOT}\ns_cselect_b32 s34, 0, s34")
                if i == 6: k.e("v_add_u32 v10, s34, v2\nv_add_u32 v11, s34, v3")
                if i == 7: k.e("v_add_u32 v5, s34, v4\ns_add_u32 s33, s33, 1\ns_cmp_lt_u32 s33, 12")
        else:
            k.e("s_waitcnt lgkmcnt(0)\ns_barrier")
            for i, m in enumerate(M):
                k.e(m)
                if i < 9: k.e(rd[i])
    k.e(f"s_cbranch_scc1 {L('cloop')}")
    ts_mark(k, TS, 2); ts_cyc(k, TS, 5)
    k.e(f"""s_waitcnt lgkmcnt(0)
v_lshlrev_b32 v2, 4, v1
s_mul_i32 s28, s18, 5120
v_add_u32 v3, s28, v2
s_xor_b32 s28, s18, 2
s_mul_i32 s28, s28, 5120
v_add_u32 v2, s28, v2""")
    for nt in range(5): k.e(f"ds_read_b64 v[{XR+2*nt}:{XR+2*nt+1}], v122 offset:{nt*32}")
    KP = 64
    k.e(f"s_cmp_eq_u32 s26, 0\ns_cbranch_scc1 {L('k0')}")
    for q in (1, 0):
        if q == 0: k.label('k0')
        for nt in range(5):
            a = ACC + 20*(q ^ 1) + 4*nt
            k.e(f"ds_write_b128 v3, v[{a}:{a+3}] offset:{nt*1024}")
        k.e("s_waitcnt vmcnt(0) lgkmcnt(5)\nv_lshlrev_b32 v22, 16, v22")
        for nt in range(5):
            a = ACC + 20*q + 4*nt; x = XR + 2*nt; p = KP + 4*nt
            k.e(f"""v_lshlrev_b32 v{p}, 16, v{x}
v_and_b32 v{p+1}, 0xffff0000, v{x}
v_lshlrev_b32 v{p+2}, 16, v{x+1}
v_and_b32 v{p+3}, 0xffff0000, v{x+1}
v_pk_add_f32 v[{a}:{a+1}], v[{a}:{a+1}], v[22:23] op_sel_hi:[1,0]
v_pk_add_f32 v[{a+2}:{a+3}], v[{a+2}:{a+3}], v[22:23] op_sel_hi:[1,0]
v_pk_add_f32 v[{p}:{p+1}], v[{p}:{p+1}], v[{a}:{a+1}]
v_pk_add_f32 v[{p+2}:{p+3}], v[{p+2}:{p+3}], v[{a+2}:{a+3}]""")
        if q == 1: k.e(f"s_branch {L('kd')}")
    k.label('kd')
    k.e("s_waitcnt lgkmcnt(0)\ns_barrier")
    for nt in range(5): k.e(f"ds_read_b128 v[{84+4*nt}:{87+4*nt}], v2 offset:{nt*1024}")
    for nt in range(5):
        p = KP + 4*nt; w = 84 + 4*nt; x = XR + 2*nt
        k.e(f"""s_waitcnt lgkmcnt({4-nt})
v_pk_add_f32 v[{p}:{p+1}], v[{p}:{p+1}], v[{w}:{w+1}]
v_pk_add_f32 v[{p+2}:{p+3}], v[{p+2}:{p+3}], v[{w+2}:{w+3}]
v_cvt_pk_bf16_f32 v{x}, v{p}, v{p+1}
v_cvt_pk_bf16_f32 v{x+1}, v{p+2}, v{p+3}""")
    store_tile(k, XR, 9, 23, 36, 7)
    ts_mark(k, TS, 3)
    ts_end(k, TS, 4, 12, 40)
    k.label('end')
    k.e("s_endpgm")
    return k
```

```python
from common import *
import math

def ts_begin(k, TS):
    if TS:
        k.e("s_memrealtime s[96:97]")
        for i in range(84, 96): k.e(f"s_mov_b32 s{i}, 0")
def ts_mark(k, TS, i):
    if TS: k.e(f"s_memrealtime s[{84+2*i}:{85+2*i}]")
def ts_cyc(k, TS, i):
    if TS: k.e(f"s_memtime s[{84+2*i}:{85+2*i}]")
def ts_end(k, TS, idx, wsrd, vtmp):
    if not TS: return
    vtmp = (vtmp + 3)//4*4
    k.e(f"""s_waitcnt vmcnt(0)
s_memrealtime s[98:99]
s_waitcnt lgkmcnt(0)
s_mov_b64 exec, 1
v_lshrrev_b32 v{vtmp}, 6, v0
s_lshl_b32 s100, s2, 4
v_add_u32 v{vtmp}, s100, v{vtmp}
v_lshlrev_b32 v{vtmp}, 5, v{vtmp}
v_add_u32 v{vtmp}, {WS_TS + idx*131072}, v{vtmp}
v_mov_b32 v{vtmp+4}, s96
v_mov_b32 v{vtmp+5}, s98
v_mov_b32 v{vtmp+6}, s84
v_mov_b32 v{vtmp+7}, s86
v_mov_b32 v{vtmp+8}, s88
v_mov_b32 v{vtmp+9}, s90
v_mov_b32 v{vtmp+10}, s92
v_mov_b32 v{vtmp+11}, s94
buffer_store_dwordx4 v[{vtmp+4}:{vtmp+7}], v{vtmp}, s[{wsrd}:{wsrd+3}], 0 offen
buffer_store_dwordx4 v[{vtmp+8}:{vtmp+11}], v{vtmp}, s[{wsrd}:{wsrd+3}], 0 offen offset:16""")
```

```python
import sys, re
sys.path.insert(0, "gen")
from build import build
def variant(kernel, drop=(), repl=(), **kw):
    s = build(TS=True, **kw)
    a = s.index(f"{kernel}:\n"); b = s.index(".text", a) if ".text" in s[a:] else s.index(".section .rodata")
    body = s[a:b].split("\n")
    out = []
    for l in body:
        if any(re.search(d, l) for d in drop): continue
        for (x, y) in repl: l = re.sub(x, y, l)
        out.append(l)
    return s[:a] + "\n".join(out) + s[b:]
if __name__ == "__main__":
    V = {
     "A_nodot": variant("qkv_kernel", drop=[r"v_dot2c"]),
     "A_nomfma": variant("qkv_kernel", drop=[r"v_mfma"]),
     "A_nodma": variant("qkv_kernel", drop=[r"offen lds"]),
     "A_noprio": variant("qkv_kernel", drop=[r"s_setprio"]),
     "A_dmaonly": variant("qkv_kernel", drop=[r"v_mfma", r"v_dot2c", r"ds_read_b64_tr", r"ds_read_b128 .* v(18|19|20|21)"]),
     "D_nodma": variant("mix1_kernel", drop=[r"offen lds"]),
     "D_dmaonly": variant("mix1_kernel", drop=[r"v_mfma", r"ds_read_b64_tr", r"ds_read_b128 .* v18", r"v_pk_fma", r"v_cvt_pk_bf16_f32 v2", r"v_lshlrev_b32 v[78]\d, 16", r"v_and_b32 v[78]\d, 0xffff0000"]),
     "E_nodma": variant("mix2_kernel", drop=[r"offen lds"]),
     "E_dmaonly": variant("mix2_kernel", drop=[r"v_mfma", r"ds_read_b64_tr", r"ds_read_b128 .* v10"]),
    }
    for n, s in V.items(): open(f"v_{n}.s", "w").write(s)
```

```python
NAME = "sequential_preLN__mha_block__mixer_token_mlp__prompt"
S, D, H, DH, F = 2048, 640, 32, 20, 1536
KA = dict(x=0, wqkv=8, wo=16, bx=24, w1=32, b1=40, w2=48, b2=56, out=64, dbg=72, ws=80)
SZ = dict(x=S*D*2, wqkv=D*3*D*2, wo=D*D*2, w1=S*F*2, b1=F*2, w2=F*S*2, b2=S*2, out=S*D*2, dbg=256)
WS_QP = 0x000000
WS_KP = 0x280000
WS_VP = 0x500000
WS_OI = 0x780000
WS_HB = 0xA00000
WS_UI = 0xC80000
WS_ST = 0xE60000
WS_WO = 0xE80000
WS_HN = 0xF80000
WS_PX = 0x1200000
WS_PW = 0x1250000
WS_TS = 0x1280000
WS_SIZE = 0x1380000

def vr(a, n=1):
    return f"v{a}" if n == 1 else f"v[{a}:{a+n-1}]"
def sr(a, n=1):
    return f"s{a}" if n == 1 else f"s[{a}:{a+n-1}]"

class K:
    def __init__(self, name, grid, block, lds, vgpr, sgpr=102):
        self.name, self.grid, self.block, self.lds, self.vgpr, self.sgpr = name, grid, block, lds, vgpr, sgpr
        self.lines = []
        self.uid = 0
    def e(self, s):
        for l in s.strip("\n").split("\n"):
            l = l.strip()
            if not l: continue
            if l.endswith(":") or l.startswith(".") or l.startswith(";"):
                self.lines.append(l)
            else:
                self.lines.append("    " + l)
    def L(self, n): return f"L_{self.name}_{n}"
    def label(self, n): self.lines.append(self.L(n) + ":")
    def srd(self, dst, ptr, nbytes, add=0):
        if add:
            self.e(f"s_add_u32 s{dst}, s{ptr}, {add}\ns_addc_u32 s{dst+1}, s{ptr+1}, 0")
        else:
            if dst != ptr:
                self.e(f"s_mov_b32 s{dst}, s{ptr}\ns_mov_b32 s{dst+1}, s{ptr+1}")
        self.e(f"s_mov_b32 s{dst+2}, {nbytes}\ns_mov_b32 s{dst+3}, 0x00020000")
    def launch_line(self):
        return f"; @launch kernel={self.name} grid=({self.grid},1,1) block=({self.block},1,1) lds={self.lds}"
    def text(self):
        acc = (self.vgpr + 3)//4*4
        return (f".text\n.globl {self.name}\n.p2align 8\n.type {self.name},@function\n{self.name}:\n" + "\n".join(self.lines) + "\n")
    def desc(self):
        acc = (self.vgpr + 3)//4*4
        return f""".p2align 6
.amdhsa_kernel {self.name}
  .amdhsa_next_free_vgpr {self.vgpr}
  .amdhsa_next_free_sgpr {self.sgpr}
  .amdhsa_accum_offset {acc}
  .amdhsa_group_segment_fixed_size 0
  .amdhsa_kernarg_size 88
  .amdhsa_user_sgpr_count 2
  .amdhsa_user_sgpr_kernarg_segment_ptr 1
  .amdhsa_system_sgpr_workgroup_id_x 1
.end_amdhsa_kernel
"""

def f2u(x):
    import struct
    return "0x%08x" % struct.unpack("<I", struct.pack("<f", x))[0]

def assemble_file(kernels, header_comment=""):
    out = []
    out.append(header_comment.rstrip("\n")) if header_comment else None
    for k in kernels: out.append(k.launch_line())
    out.append('.amdgcn_target "amdgcn-amd-amdhsa--gfx950"')
    seen = []
    for k in kernels:
        if k not in seen:
            out.append(k.text()); seen.append(k)
    out.append('.section .rodata,"a"')
    for k in seen: out.append(k.desc())
    return "\n".join(out)

def stamp(k, idx, sreg):
    k.e(f"s_memrealtime s[{sreg}:{sreg+1}]")
```

```python
from common import *
from ts import *
import math

def kernel_A(TS=False):
    k = K("qkv_kernel", 256, 768, 131072 + 4096, 168)
    STAT = 131072
    L = k.L
    mk = lambda i: f"s_memrealtime s[{84+2*i}:{85+2*i}]" if TS else ""
    ts_begin(k, TS)
    k.e(f"""s_cmp_ge_u32 s2, 256
s_cbranch_scc1 {L('end')}
s_load_dwordx4 s[4:7], s[0:1], {KA['x']}
s_load_dwordx2 s[12:13], s[0:1], {KA['ws']}
s_load_dwordx2 s[40:41], s[0:1], {KA['wo']}
s_load_dwordx2 s[44:45], s[0:1], {KA['dbg']}
v_lshrrev_b32 v2, 6, v0
v_and_b32 v1, 63, v0
v_readfirstlane_b32 s18, v2
s_and_b32 s20, s2, 7
s_lshr_b32 s21, s2, 3
s_lshr_b32 s22, s20, 1
s_lshl_b32 s22, s22, 2
s_and_b32 s23, s21, 3
s_add_u32 s22, s22, s23
s_lshl_b32 s16, s22, 7
s_lshr_b32 s23, s21, 2
s_and_b32 s24, s20, 1
s_lshl_b32 s24, s24, 3
s_add_u32 s19, s23, s24
s_lshl_b32 s17, s19, 7
; first K chunk c0 = (rt + ct) % 10
s_add_u32 s35, s22, s19
s_mul_i32 s36, s35, 26
s_lshr_b32 s36, s36, 8
s_mul_i32 s36, s36, 10
s_sub_u32 s35, s35, s36
s_cmp_eq_u32 s19, 15
s_cbranch_scc1 {L('spare')}
s_cmp_lt_u32 s18, 8
s_cbranch_scc1 {L('notloader')}""")
    k.e(f"""s_sub_u32 s25, s18, 8
; vX = (row0 + 8j + l/8)*1280 + ((l%8) ^ ((4j + l/16)&7))*16
v_lshrrev_b32 v2, 3, v1
s_lshl_b32 s26, s25, 3
s_add_u32 s26, s26, s16
v_add_u32 v2, s26, v2
v_mul_u32_u24 v2, 1280, v2
v_lshrrev_b32 v4, 4, v1
s_lshl_b32 s26, s25, 2
v_add_u32 v5, s26, v4
v_and_b32 v6, 7, v5
v_and_b32 v7, 7, v1
v_xor_b32 v6, v6, v7
v_lshl_add_u32 v2, v6, 4, v2
; vW = (4j + l/16)*3840 + col0*2 + ((l%16) ^ ((l/16)<<2))*16
v_mul_u32_u24 v3, 3840, v5
v_and_b32 v6, 15, v1
v_lshlrev_b32 v7, 2, v4
v_xor_b32 v6, v6, v7
v_lshl_add_u32 v3, v6, 4, v3
s_lshl_b32 s26, s17, 1
v_add_u32 v3, s26, v3
s_lshl_b32 s30, s25, 10
s_lshl_b32 s28, s35, 7
s_mul_i32 s29, s35, {64*3840}
s_mov_b32 s33, 0
s_waitcnt lgkmcnt(0)
s_mov_b32 s8, s6
s_mov_b32 s9, s7""")
    k.srd(4, 4, SZ['x']); k.srd(8, 8, SZ['wqkv'])
    if TS: k.srd(12, 12, WS_SIZE)
    k.label('lloop')
    for i in range(4):
        k.e(f"""s_add_u32 m0, s30, {i*4096}
s_add_u32 s32, s28, {i*40960}
buffer_load_dwordx4 v2, s[4:7], s32 offen lds
s_add_u32 m0, s30, {16384 + i*4096}
s_add_u32 s32, s29, {i*61440}
buffer_load_dwordx4 v3, s[8:11], s32 offen lds""")
    k.e(f"""s_add_u32 s28, s28, 128
s_add_u32 s29, s29, {64*3840}
s_cmp_eq_u32 s28, 1280
s_cselect_b32 s28, 0, s28
s_cselect_b32 s29, 0, s29
s_add_u32 s30, s30, 32768
s_and_b32 s30, s30, 0x1ffff
s_add_u32 s33, s33, 1
s_cmp_lt_u32 s33, 3
s_cbranch_scc1 {L('lloop')}
s_waitcnt vmcnt(16)
s_barrier
s_cmp_lt_u32 s33, 10
s_cbranch_scc1 {L('lloop')}
s_waitcnt vmcnt(8)
s_barrier
s_waitcnt vmcnt(0)
s_barrier
s_barrier""")
    ts_end(k, TS, 0, 12, 40)
    k.e("s_endpgm")
    k.label('spare')
    k.e("s_waitcnt lgkmcnt(0)")
    k.srd(12, 12, WS_SIZE); k.srd(40, 40, SZ['wo'])
    k.e(f"s_mul_i32 s20, s22, {40*1280}\ns_mul_i32 s21, s22, {40*160}\ns_add_u32 s21, s21, {WS_WO}\ns_mov_b32 s23, 102400")
    for u in range(3840): assert (u*52429) >> 22 == u//80
    for n in range(5):
        k.e(f"""v_add_u32 v2, {768*n}, v0
v_min_u32 v2, 3199, v2
v_lshlrev_b32 v3, 4, v2
buffer_load_dwordx4 v[{16+4*n}:{19+4*n}], v3, s[40:43], s20 offen
v_mul_u32_u24 v4, 52429, v2
v_lshrrev_b32 v4, 22, v4
v_mul_u32_u24 v5, 80, v4
v_sub_u32 v5, v2, v5
v_mul_u32_u24 v6, 6554, v5
v_lshrrev_b32 v6, 16, v6
v_mul_u32_u24 v7, 10, v6
v_sub_u32 v7, v5, v7
v_mul_u32_u24 v4, 160, v4
v_lshl_add_u32 v4, v7, 4, v4
v_mad_u32_u24 v{8+n}, v6, s23, v4""")
    for n in range(5):
        k.e(f"s_waitcnt vmcnt(4)\nbuffer_store_dwordx4 v[{16+4*n}:{19+4*n}], v{8+n}, s[12:15], s21 offen")
    k.e(f"""s_cmp_ge_u32 s18, 8
s_cbranch_scc1 {L('end')}
v_lshlrev_b32 v2, 4, v0
s_lshl_b32 s20, s22, 13
s_add_u32 s20, s20, {WS_ST}
v_mov_b32 v4, -1
v_mov_b32 v5, -1
v_mov_b32 v6, -1
v_mov_b32 v7, -1
buffer_store_dwordx4 v[4:7], v2, s[12:15], s20 offen
s_endpgm""")
    k.label('notloader')
    def addr_regs(xrow_s, wblk_s):
        k.e(f"""v_add_u32 v4, {xrow_s}, v10
v_lshlrev_b32 v4, 7, v4
v_lshrrev_b32 v5, 1, v10
v_and_b32 v5, 7, v5
v_xor_b32 v5, v5, v11
v_lshl_add_u32 v12, v5, 4, v4
v_xor_b32 v13, 32, v12
v_xor_b32 v14, 64, v12
v_xor_b32 v15, 96, v12
v_bfe_u32 v4, v1, 2, 2
v_lshl_add_u32 v5, v11, 3, v4
v_lshlrev_b32 v5, 8, v5
v_bfe_u32 v6, v1, 4, 1
v_lshlrev_b32 v6, 1, v6
v_bfe_u32 v7, v1, 1, 1
v_add_u32 v6, v6, v7
v_add_u32 v6, {wblk_s}, v6
v_lshlrev_b32 v4, 2, v4
v_xor_b32 v6, v6, v4
v_lshl_add_u32 v5, v6, 4, v5
v_and_b32 v6, 1, v1
v_lshl_add_u32 v5, v6, 3, v5
v_add_u32 v16, 16384, v5""")
    k.e(f"""v_and_b32 v10, 31, v1
v_lshrrev_b32 v11, 5, v1
s_waitcnt lgkmcnt(0)""")
    k.srd(12, 12, WS_SIZE)
    k.e(f"""s_cmp_lt_u32 s18, 4
s_cbranch_scc1 {L('compute')}""")
    k.e("s_sub_u32 s25, s18, 4\ns_lshl_b32 s26, s25, 5\ns_lshl_b32 s27, s25, 2")
    addr_regs("s26", "s27")
    k.e(f"""v_mov_b32 v24, 0x3f803f80
v_mov_b32 v26, 0
v_mov_b32 v27, 0
v_mov_b32 v28, 0
v_mov_b32 v29, 0
v_mov_b32 v30, 0
v_mov_b32 v31, 0
s_mov_b32 s33, 0
s_mov_b32 s34, 0""")
    for v in range(31): assert (v*26) >> 8 == v//10
    k.srd(44, 44, 256)
    k.e(f"""v_mov_b32 v22, 0
s_or_b32 s36, s2, s25
s_cmp_lg_u32 s36, 0
s_cbranch_scc1 {L('notag')}
s_memrealtime s[36:37]
s_waitcnt lgkmcnt(0)
s_or_b32 s36, s36, 1
v_mov_b32 v23, s36
s_mov_b64 exec, 1
buffer_store_dword v23, v22, s[44:47], 0 offen sc0 sc1
s_mov_b64 exec, -1""")
    k.label('notag')
    k.e(f"""v_add_u32 v8, s26, v10
v_lshlrev_b32 v18, 4, v8
v_lshlrev_b32 v19, 3, v8
s_mul_i32 s28, s22, 20480
s_add_u32 s28, s28, {WS_PX}
s_mul_i32 s29, s19, 10240
s_add_u32 s29, s29, {WS_PW}
s_lshl_b32 s30, s35, 11
s_add_u32 s30, s30, s28
s_lshl_b32 s31, s35, 10
s_add_u32 s31, s31, s29
s_mov_b32 s33, 0x200000
s_barrier
buffer_load_dword v23, v22, s[44:47], 0 offen sc1""")
    for ks in range(4):
        k.e(f"ds_read_b128 v[{32+4*ks}:{35+4*ks}], v{12+ks}")
    for t in range(8):
        k.e(f"ds_read_b64_tr_b16 v[{48+2*t}:{49+2*t}], v16 offset:{(16*(t//2)+4*(t%2))*256}")
    for ks in range(4):
        k.e(f"s_waitcnt lgkmcnt({11-ks})")
        for d in range(4):
            r = 32+4*ks+d
            k.e(f"v_dot2c_f32_bf16 v{26+2*(d&1)}, v{r}, v24\nv_dot2c_f32_bf16 v{27+2*(d&1)}, v{r}, v{r}")
    k.e("s_waitcnt lgkmcnt(0)\ns_barrier")
    for d in range(16):
        k.e(f"v_dot2c_f32_bf16 v{30+(d&1)}, v{48+d}, v24")
    def halves():
        k.e("""v_mov_b32 v28, v26
v_mov_b32 v29, v27
v_mov_b32 v31, v30
s_nop 1
v_permlane32_swap_b32 v26, v28
v_permlane32_swap_b32 v27, v29
v_permlane32_swap_b32 v30, v31
s_nop 1
v_pk_add_f32 v[26:27], v[26:27], v[28:29]
v_add_f32 v30, v30, v31""")
    k.e("""v_pk_add_f32 v[26:27], v[26:27], v[28:29]
s_nop 2
v_add_f32 v30, v30, v31""")
    halves()
    k.e(f"{mk(0)}\ns_barrier")
    k.label('tpoll')
    k.e(f"""s_waitcnt vmcnt(0)
v_cmp_eq_u32 vcc, 0, v23
s_sub_u32 s33, s33, 1
s_cbranch_vccz {L('tgot')}
s_cmp_eq_u32 s33, 0
s_cbranch_scc1 {L('tgot')}
buffer_load_dword v23, v22, s[44:47], 0 offen sc1
s_branch {L('tpoll')}""")
    k.label('tgot')
    k.e(f"""{mk(1)}
v_mov_b32 v28, v23
v_mov_b32 v29, v23
v_mov_b32 v31, v23
s_mov_b32 exec_hi, 0
buffer_store_dwordx4 v[26:29], v18, s[12:15], s30 offen sc0 sc1
buffer_store_dwordx2 v[30:31], v19, s[12:15], s31 offen sc0 sc1
s_mov_b32 exec_hi, -1
v_mul_u32_u24 v21, 10240, v11
v_add_u32 v18, v18, v21
v_lshrrev_b32 v21, 1, v21
v_add_u32 v19, v19, v21
s_add_u32 s30, s28, 4096
s_add_u32 s31, s28, 8192
s_add_u32 s32, s29, 4096
s_barrier
s_barrier
s_barrier
s_barrier
{mk(2)}""")
    def gather():
        for n in range(5):
            k.e(f"buffer_load_dwordx4 v[{32+4*n}:{35+4*n}], v18, s[12:15], s{(28,28,30,30,31)[n]} offen offset:{(n%2)*2048} sc1")
        for n in range(5):
            k.e(f"buffer_load_dwordx2 v[{52+2*n}:{53+2*n}], v19, s[12:15], s{(29,29,29,29,32)[n]} offen offset:{(n%4)*1024} sc1")
    gather()
    k.e(f"s_barrier\ns_barrier\n{mk(3)}")
    k.label('poll')
    k.e("s_waitcnt vmcnt(0)\nv_xor_b32 v20, v23, v34")
    for r in (38, 42, 46, 50, 53, 55, 57, 59, 61):
        k.e(f"v_xor_b32 v21, v23, v{r}\nv_or_b32 v20, v20, v21")
    k.e(f"""v_cmp_ne_u32 vcc, 0, v20
s_sub_u32 s33, s33, 1
s_cbranch_vccz {L('got')}
s_cmp_lt_i32 s33, 1
s_cbranch_scc1 {L('got')}""")
    gather()
    k.e(f"s_branch {L('poll')}")
    k.label('got')
    csc = (DH ** -0.5) * math.log2(math.e)
    k.e(f"""{mk(4)}
s_barrier
v_pk_add_f32 v[32:33], v[32:33], v[36:37]
v_pk_add_f32 v[40:41], v[40:41], v[44:45]
v_add_f32 v52, v52, v54
v_add_f32 v56, v56, v58
v_pk_add_f32 v[32:33], v[32:33], v[48:49]
v_add_f32 v52, v52, v60
v_pk_add_f32 v[26:27], v[32:33], v[40:41]
v_add_f32 v30, v52, v56""")
    halves()
    k.e(f"""v_mul_f32 v26, {f2u(-1.0/D)}, v26
v_mul_f32 v28, {f2u(1.0/D)}, v27
v_fma_f32 v28, -v26, v26, v28
v_max_f32 v28, 0, v28
v_add_f32 v28, {f2u(1e-5)}, v28
v_rsq_f32 v27, v28
s_cmp_lt_u32 s19, 5
s_cselect_b32 s27, {f2u(csc)}, 1.0
v_mul_f32 v27, s27, v27
v_lshlrev_b32 v5, 2, v8
v_add_u32 v5, {STAT}, v5
v_lshlrev_b32 v6, 3, v8
v_add_u32 v6, {STAT}, v6
ds_write_b32 v5, v27
ds_write_b32 v5, v26 offset:512
ds_write_b32 v5, v30 offset:1024
ds_write_b64 v6, v[26:27] offset:2048
s_waitcnt lgkmcnt(0)
s_barrier""")
    ts_end(k, TS, 0, 12, 40)
    k.e("s_endpgm")
    k.label('compute')
    k.e("s_setprio 2\ns_lshr_b32 s25, s18, 1\ns_and_b32 s26, s18, 1\ns_lshl_b32 s27, s25, 6\ns_lshl_b32 s28, s26, 3")
    addr_regs("s27", "s28")
    k.e("v_xor_b32 v17, 64, v16")
    ACC = 96; FR = 32
    for r in range(64): k.e(f"v_mov_b32 v{ACC+r}, 0")
    def reads(ks):
        b = FR + 16*ks
        return [f"ds_read_b128 v[{b}:{b+3}], v{18+ks}",
                f"ds_read_b64_tr_b16 v[{b+8}:{b+9}], v22 offset:{16*ks*256}",
                f"ds_read_b64_tr_b16 v[{b+10}:{b+11}], v22 offset:{(16*ks+4)*256}",
                f"ds_read_b128 v[{b+4}:{b+7}], v{18+ks} offset:4096",
                f"ds_read_b64_tr_b16 v[{b+12}:{b+13}], v23 offset:{16*ks*256}",
                f"ds_read_b64_tr_b16 v[{b+14}:{b+15}], v23 offset:{(16*ks+4)*256}"]
    def mfmas(ks, vmode):
        b = FR + 16*ks
        out = []
        for (mb, nb) in ((0,0),(1,0),(0,1),(1,1)):
            a = ACC + (mb*2+nb)*16
            X = f"v[{b+4*mb}:{b+4*mb+3}]"; W = f"v[{b+8+4*nb}:{b+8+4*nb+3}]"
            A, B = (X, W) if vmode else (W, X)
            out.append(f"v_mfma_f32_32x32x16_bf16 v[{a}:{a+15}], {A}, {B}, v[{a}:{a+15}]")
        return out
    k.e("s_mov_b32 s33, 0\ns_mov_b32 s34, 0")
    for t in range(6): k.e(f"v_mov_b32 v{18+t}, v{12+t}")
    ts_mark(k, TS, 0)
    k.e("s_barrier")
    ts_mark(k, TS, 1); ts_cyc(k, TS, 4)
    if TS: k.e("s_waitcnt lgkmcnt(0)")
    for r in reads(0) + reads(1): k.e(r)
    k.e(f"""s_cmp_ge_u32 s19, 10
s_cbranch_scc1 {L('cloopV')}""")
    for vmode in (0, 1):
        k.label('cloopV' if vmode else 'cloopQ')
        for ks in range(4):
            rd = reads((ks+2) % 4); mf = mfmas(ks, vmode)
            if ks == 2:
                k.e("s_waitcnt lgkmcnt(6)"); k.e(mf[0])
                k.e("s_add_u32 s34, s34, 32768\ns_and_b32 s34, s34, 0x1ffff")
                for t in range(6): k.e(f"v_add_u32 v{18+t}, s34, v{12+t}")
                k.e(mf[1]); k.e("s_waitcnt lgkmcnt(0)\ns_barrier")
                k.e(rd[0]); k.e(rd[1]); k.e(mf[2]); k.e(rd[2]); k.e(rd[3]); k.e(mf[3]); k.e(rd[4]); k.e(rd[5])
            else:
                if ks != 3: k.e("s_waitcnt lgkmcnt(6)")
                k.e(mf[0]); k.e(rd[0]); k.e(rd[1])
                k.e(mf[1]); k.e(rd[2]); k.e(rd[3])
                k.e(mf[2]); k.e(rd[4]); k.e(rd[5])
                if ks == 3: k.e("s_add_u32 s33, s33, 1\ns_cmp_lt_u32 s33, 10")
                k.e(mf[3])
        k.e(f"""s_cbranch_scc1 {L('cloopV' if vmode else 'cloopQ')}
s_waitcnt lgkmcnt(0)""")
        ts_mark(k, TS, 2); ts_cyc(k, TS, 5)
        if TS: k.e("s_waitcnt lgkmcnt(0)")
        E0 = 32
        if not vmode:
            k.e(f"""s_lshl_b32 s27, s26, 8
v_lshlrev_b32 v4, 4, v11
v_add_u32 v4, s27, v4
v_add_u32 v4, {STAT+1024}, v4
s_lshl_b32 s27, s25, 6
v_add_u32 v6, s27, v10
v_lshlrev_b32 v5, 3, v6
v_add_u32 v5, {STAT+2048}, v5
ds_read_b64 v[{E0+32}:{E0+33}], v5
ds_read_b64 v[{E0+34}:{E0+35}], v5 offset:256""")
            for nb in range(2):
                for g in range(4):
                    r = E0 + nb*16 + g*4
                    k.e(f"ds_read_b128 v[{r}:{r+3}], v4 offset:{nb*128 + g*32}")
            k.e(f"""v_add_u32 v6, s16, v6
v_lshlrev_b32 v6, 4, v6
v_lshl_add_u32 v6, v11, 15, v6
s_lshl_b32 s27, s19, 4
s_lshl_b32 s28, s26, 3
s_add_u32 s27, s27, s28
s_lshl_b32 s27, s27, 15""")
            assert WS_KP == WS_QP + 80*32768 and WS_QP == 0
            n = 0
            for nb in range(2):
                for gp in range(2):
                    k.e(f"s_add_u32 s28, s27, {(nb*4+gp*2)*32768}")
                    k.e(f"s_waitcnt lgkmcnt({6 - nb*4 - gp*2})")
                    for mb in range(2):
                        a = ACC + (mb*2+nb)*16 + gp*8
                        c = E0 + nb*16 + gp*8
                        m = E0 + 32 + 2*mb
                        o = E0 + 36 + 4*(n % 3); n += 1
                        for p in range(0, 8, 2):
                            k.e(f"v_pk_fma_f32 v[{a+p}:{a+p+1}], v[{c+p}:{c+p+1}], v[{m}:{m+1}], v[{a+p}:{a+p+1}] op_sel_hi:[1,0,1]")
                        for p in range(0, 8, 2):
                            k.e(f"v_pk_mul_f32 v[{a+p}:{a+p+1}], v[{a+p}:{a+p+1}], v[{m}:{m+1}] op_sel:[0,1] op_sel_hi:[1,1]")
                        for p in (0, 4, 2, 6):
                            k.e(f"v_cvt_pk_bf16_f32 v{o+p//2}, v{a+p}, v{a+p+1}")
                        k.e(f"s_nop 0\nv_permlane32_swap_b32 v{o}, v{o+2}\nv_permlane32_swap_b32 v{o+1}, v{o+3}")
                        k.e(f"buffer_store_dwordx4 v[{o}:{o+3}], v6, s[12:15], s28 offen offset:{mb*512}")
            ts_mark(k, TS, 3)
            ts_end(k, TS, 0, 12, 40)
            k.e("s_endpgm")
        else:
            for nv in range(640): assert (nv*3277) >> 16 == nv//20
            k.e(f"""s_lshl_b32 s27, s25, 8
v_lshlrev_b32 v4, 4, v11
v_add_u32 v4, s27, v4
v_add_u32 v4, {STAT}, v4
s_lshl_b32 s27, s26, 6
v_add_u32 v6, s27, v10
v_lshlrev_b32 v5, 2, v6
v_add_u32 v5, {STAT+1024}, v5
ds_read_b32 v24, v5
ds_read_b32 v26, v5 offset:128""")
            for mb in range(2):
                for g in range(4):
                    b = E0 + mb*32
                    k.e(f"ds_read_b128 v[{b+g*4}:{b+g*4+3}], v4 offset:{mb*128 + g*32}")
                    k.e(f"ds_read_b128 v[{b+16+g*4}:{b+16+g*4+3}], v4 offset:{512 + mb*128 + g*32}")
                if mb == 0:
                    k.e(f"""s_sub_u32 s27, s17, 1280
v_add_u32 v6, s27, v6
v_mul_u32_u24 v7, 320, v11
v_add_u32 v7, {WS_VP}, v7
s_mov_b32 s28, 81920""")
                    for nb in range(2):
                        if nb: k.e("v_add_u32 v6, 32, v6")
                        k.e(f"""v_mul_u32_u24 v8, 3277, v6
v_lshrrev_b32 v8, 16, v8
v_mul_u32_u24 v9, 20, v8
v_sub_u32 v9, v6, v9
v_lshl_add_u32 v9, v9, 4, v7
v_mad_u32_u24 v{18+nb}, v8, s28, v9""")
                    k.e(f"""s_lshr_b32 s27, s16, 5
s_lshl_b32 s28, s25, 1
s_add_u32 s27, s27, s28
s_mul_i32 s27, s27, 1280
s_waitcnt lgkmcnt(4)""")
            n = 0
            for mb in range(2):
                k.e(f"s_waitcnt lgkmcnt({8 - 8*mb})")
                b = E0 + mb*32
                for nb in range(2):
                    cs = 24 + 2*nb
                    for aa in range(2):
                        a = ACC + (mb*2+nb)*16 + aa*8
                        o = 160 + 4*(n % 2); n += 1
                        for p in range(0, 8, 2):
                            k.e(f"v_pk_fma_f32 v[{a+p}:{a+p+1}], v[{b+16+aa*8+p}:{b+16+aa*8+p+1}], v[{cs}:{cs+1}], v[{a+p}:{a+p+1}] op_sel_hi:[1,0,1]")
                        for p in range(0, 8, 2):
                            k.e(f"v_pk_mul_f32 v[{a+p}:{a+p+1}], v[{a+p}:{a+p+1}], v[{b+aa*8+p}:{b+aa*8+p+1}]")
                        for p in range(0, 8, 2):
                            k.e(f"v_cvt_pk_bf16_f32 v{o+p//2}, v{a+p}, v{a+p+1}")
                        k.e(f"buffer_store_dwordx4 v[{o}:{o+3}], v{18+nb}, s[12:15], s27 offen offset:{mb*1280 + aa*640}")
            ts_mark(k, TS, 3)
            ts_end(k, TS, 0, 12, 40)
            k.e("s_endpgm")
    k.label('end')
    k.e("s_endpgm")
    return k
```

```python
from common import *
from ts import ts_begin, ts_end, ts_mark, ts_cyc

def kernel_B(TS=False, force_slow=False, prio=True):
    GCH = 12288
    SLOT = 2*GCH
    NSLOT = 4
    ONES = NSLOT*SLOT
    FLAG = ONES + 5120
    MRG = FLAG + 64
    k = K("attn_kernel", 256, 512, MRG + 24576, 200)
    L = k.L
    Q = 12
    KF = [22, 28]
    VF = [36, 44]
    P = 52
    O = 68
    SB = [100, 132]
    CM = 164
    vK1, vK2, vV = 2, 3, 4
    bK1, bK2, bV, mV = 8, 9, 10, 11
    vD = 5
    ts_begin(k, TS)
    k.e(f"""s_cmp_ge_u32 s2, 256
s_cbranch_scc1 {L('end')}
s_load_dwordx2 s[12:13], s[0:1], {KA['ws']}
s_load_dwordx2 s[60:61], s[0:1], {KA['w1']}
s_load_dwordx2 s[64:65], s[0:1], {KA['w2']}
s_load_dwordx2 s[68:69], s[0:1], {KA['x']}
v_lshrrev_b32 v2, 6, v0
v_and_b32 v1, 63, v0
v_readfirstlane_b32 s18, v2
s_and_b32 s20, s2, 7
s_lshr_b32 s21, s2, 3
s_lshl_b32 s16, s20, 2
s_lshr_b32 s22, s21, 3
s_add_u32 s16, s16, s22
s_and_b32 s17, s21, 7
s_lshl_b32 s17, s17, 8
s_lshr_b32 s22, s16, 1
s_and_b32 s23, s16, 1
s_mul_i32 s24, s22, 5
s_add_u32 s25, s24, 2
s_mul_i32 s26, s23, 3
s_add_u32 s24, s24, s26
s_lshl_b32 s24, s24, 15
s_lshl_b32 s25, s25, 15
s_lshl_b32 s23, s23, 3
s_and_b32 s19, s18, 3
s_lshr_b32 s20, s18, 2
v_and_b32 v6, 31, v1
v_lshrrev_b32 v7, 5, v1
v_lshlrev_b32 v{vD}, 4, v1
; DMA sources: n = 3j+i ; n<6: plane (n/2), half n%2 ; n>=6: V piece n-6
s_lshl_b32 s21, s20, 14
s_add_u32 s21, s21, {WS_KP}
s_add_u32 s26, s24, s21
s_add_u32 s27, s25, s21
s_mul_i32 s28, s16, 81920
s_mul_i32 s29, s20, 40960
s_add_u32 s28, s28, s29
s_add_u32 s28, s28, {WS_VP}
s_mov_b32 s46, s26
s_add_u32 s47, s26, 1024
s_add_u32 s48, s26, 32768
s_cmp_eq_u32 s19, 1
s_cbranch_scc0 {L('nj1')}
s_add_u32 s46, s26, {32768+1024}
s_mov_b32 s47, s27
s_add_u32 s48, s27, 1024""")
    k.label('nj1')
    k.e(f"""s_mov_b32 s49, 2048
s_cmp_ge_u32 s19, 2
s_cbranch_scc0 {L('nj2')}
s_sub_u32 s29, s19, 2
s_mul_i32 s29, s29, 3072
s_add_u32 s46, s28, s29
s_add_u32 s47, s46, 1024
s_add_u32 s48, s46, 2048
s_mov_b32 s49, 5120""")
    k.label('nj2')
    k.e(f"""s_mul_i32 s50, s20, {GCH}
s_mul_i32 s29, s19, 3072
s_add_u32 s50, s50, s29
s_lshl_b32 s29, s19, 6
s_add_u32 s17, s17, s29
s_lshl_b32 s29, s17, 4
s_add_u32 s30, s24, s29
s_add_u32 s31, s25, s29
s_add_u32 s31, s31, s23
v_lshlrev_b32 v{bK2}, 4, v6
v_lshl_add_u32 v34, v7, 15, v{bK2}
s_waitcnt lgkmcnt(0)""")
    k.srd(12, 12, WS_SIZE)
    assert WS_QP == 0
    def issue():
        out = []
        for i in range(3):
            out += [f"s_add_u32 m0, s51, {i*1024}", f"s_add_u32 s{52+i}, s{52+i}, s49",
                    f"buffer_load_dwordx4 v{vD}, s[12:15], s{52+i} offen lds"]
        out += [f"s_add_u32 s51, s51, {SLOT}", f"s_cmp_ge_u32 s51, {NSLOT*SLOT}", f"s_cselect_b32 s51, s50, s51"]
        return out
    k.e("s_mov_b32 s37, 0")
    k.label('main')
    k.e(f"""s_mov_b32 s51, s50
s_sub_u32 s52, s46, s49
s_sub_u32 s53, s47, s49
s_sub_u32 s54, s48, s49""")
    for s_ in issue(): k.e(s_)
    k.e(f"""buffer_load_dwordx4 v[{Q}:{Q+3}], v34, s[12:15], s30 offen
buffer_load_dwordx4 v[{Q+4}:{Q+7}], v34, s[12:15], s30 offen offset:512
buffer_load_dwordx2 v[{Q+8}:{Q+9}], v{vD}, s[12:15], s31 offen""")
    k.e(f"""s_cmp_lg_u32 s37, 0
s_cbranch_scc1 {L('inited')}""")
    k.srd(60, 60, SZ['w1']); k.srd(64, 64, SZ['w2'])
    k.e(f"""s_and_b32 s21, s2, 7
s_lshr_b32 s22, s2, 3
s_lshr_b32 s74, s18, 1
v_lshlrev_b32 v199, 7, v1
s_cmp_ge_u32 s18, 6
s_cbranch_scc1 {L('pf6')}
s_lshr_b32 s26, s21, 1
s_mul_i32 s26, s26, 6
s_add_u32 s26, s26, s18
s_lshl_b32 s26, s26, 7
s_mul_i32 s27, s22, {64*3072}
s_add_u32 s72, s26, s27
v_mul_u32_u24 v196, 3072, v1
s_cmp_ge_u32 s18, 3
s_cbranch_scc1 {L('pf3')}
s_mul_i32 s26, s2, 3
s_add_u32 s26, s26, s18
s_lshl_b32 s73, s26, 13
s_branch {L('pfd')}""")
    k.label('pf3')
    k.e(f"""; waves 3-5: re-tiled wo lines i*200 + 64(w-3) + lane
s_mul_i32 s26, s22, {200*128}
s_sub_u32 s27, s18, 3
s_lshl_b32 s27, s27, 13
s_add_u32 s26, s26, s27
s_add_u32 s73, s26, {WS_WO}
s_branch {L('pfw')}""")
    k.label('pf6')
    k.e(f"""; waves 6,7: x lines x*2560 + i*80 + 40(w-6) + lane ; wo lines i*200 + 192 + lane%8
s_mul_i32 s26, s21, 2560
s_mul_i32 s27, s22, 80
s_add_u32 s26, s26, s27
s_sub_u32 s27, s18, 6
s_mul_i32 s27, s27, 40
s_add_u32 s26, s26, s27
s_lshl_b32 s72, s26, 7
v_min_u32 v196, {39*128}, v199
s_mov_b32 s60, s68
s_mov_b32 s61, s69
s_mov_b32 s62, {SZ['x']}
s_mul_i32 s26, s22, {200*128}
s_add_u32 s73, s26, {WS_WO + 192*128}
v_min_u32 v199, {7*128}, v199""")
    k.label('pfw')
    k.e(f"s_mov_b32 s64, s12\ns_mov_b32 s65, s13\ns_mov_b32 s66, {WS_SIZE}")
    k.label('pfd')
    for r in range(32): k.e(f"v_mov_b32 v{CM+r}, 0")
    k.e(f"""s_mul_i32 s29, s20, {GCH}
v_lshl_add_u32 v{bK1}, v7, 11, v{bK2}
v_add_u32 v{bK1}, s29, v{bK1}
v_mul_u32_u24 v{bV}, 320, v7
v_add_u32 v{bV}, v{bV}, v{bK2}
s_add_u32 s21, s29, 6144
v_add_u32 v{bV}, s21, v{bV}
s_add_u32 s21, s29, 4096
s_add_u32 s21, s21, s23
v_add_u32 v{bK2}, s21, v{bK2}
v_cmp_gt_u32 vcc, 20, v6
v_cmp_eq_u32 s[40:41], 20, v6
v_mov_b32 v35, {ONES+16}
v_mov_b32 v{mV}, {ONES}
v_cndmask_b32 v35, v35, v{mV}, s[40:41]
v_cndmask_b32 v{bV}, v35, v{bV}, vcc
v_cndmask_b32 v{mV}, 0, 1, vcc
v_and_b32 v35, 7, v1
v_cmp_gt_u32 vcc, 4, v35
v_mov_b32 v{O}, 0x3f803f80
v_lshrrev_b32 v{O+1}, 3, v1
v_cndmask_b32 v{O}, 0, v{O}, vcc
v_mul_u32_u24 v{O+1}, 640, v{O+1}
v_lshl_add_u32 v35, v35, 2, v{O+1}
v_add_u32 v35, {ONES}, v35
ds_write_b32 v35, v{O}
v_mov_b32 v{O+2}, {FLAG}
v_mov_b32 v{O+3}, 0
ds_write_b32 v{O+2}, v{O+3}
s_waitcnt lgkmcnt(0)""")
    k.label('inited')
    def m2b(kf, s):  return f"v_mfma_f32_32x32x4_2b_bf16 v[{s}:{s+31}], v[{kf+4}:{kf+5}], v[{Q+8}:{Q+9}], v[{CM}:{CM+31}]"
    def k16(kf, b, s): return f"v_mfma_f32_32x32x16_bf16 v[{s+16*b}:{s+16*b+15}], v[{kf}:{kf+3}], v[{Q+4*b}:{Q+4*b+3}], v[{s+16*b}:{s+16*b+15}]"
    def pv(vf, b, a):
        o = O + 16*b; p = P + 8*b + 4*a
        return f"v_mfma_f32_32x32x16_bf16 v[{o}:{o+15}], v[{vf+4*a}:{vf+4*a+3}], v[{p}:{p+3}], v[{o}:{o+15}]"
    def group(s, gi):
        b = s + 8*gi; p = P + 4*gi
        E = lambda i: f"v_exp_f32 v{b+i}, v{b+i}"
        C = lambda i: f"v_cvt_pk_bf16_f32 v{p+i}, v{b+2*i}, v{b+2*i+1}"
        return [E(0), E(1), E(2), C(0), E(3), E(4), C(1), E(5), E(6), C(2), E(7)], C(3)
    def rdK(kf, tile): return [f"ds_read_b128 v[{kf}:{kf+3}], v{vK1} offset:{tile*512}", f"ds_read_b64 v[{kf+4}:{kf+5}], v{vK2} offset:{tile*512}"]
    def rdV(vf, tile): return [f"ds_read_b128 v[{vf}:{vf+3}], v{vV} offset:{tile*1280}", f"ds_read_b128 v[{vf+4}:{vf+7}], v{vV} offset:{tile*1280+640}"]
    for r in range(32): k.e(f"v_mov_b32 v{O+r}, 0")
    for r in range(4): k.e(f"v_mov_b32 v{P+12+r}, 0\nv_mov_b32 v{VF[1]+4+r}, 0")
    k.e(f"v_mov_b32 v{SB[1]+30}, 0\nv_mov_b32 v{SB[1]+31}, 0")
    k.e(f"""v_mov_b32 v{vK1}, v{bK1}
v_mov_b32 v{vK2}, v{bK2}
v_mov_b32 v{vV}, v{bV}
s_mov_b32 s55, 0
s_mov_b32 s36, 0
s_waitcnt vmcnt(0) lgkmcnt(0)""")
    ts_mark(k, TS, 0)
    k.e("s_barrier")
    ts_mark(k, TS, 1); ts_cyc(k, TS, 4)
    for s_ in rdK(KF[0], 0) + rdK(KF[1], 1) + rdV(VF[0], 0): k.e(s_)
    k.e("s_waitcnt lgkmcnt(4)" if not TS else "s_waitcnt lgkmcnt(0)")
    k.e(m2b(KF[0], SB[0]))
    for s_ in issue(): k.e(s_)
    k.e("s_nop 7")
    k.e(k16(KF[0], 0, SB[0])); k.e(k16(KF[0], 1, SB[0]))
    for s_ in issue(): k.e(s_)
    k.e(".p2align 3")
    k.label('chunk')
    cost = lambda x: 8 if "v_exp" in x else 4
    for t in range(4):
        cur, nxt = SB[t & 1], SB[(t+1) & 1]
        kf = KF[(t+1) & 1]; kn = KF[t & 1]
        vf = VF[t & 1]; vn = VF[(t+1) & 1]
        G = [group(cur, i) for i in range(4)]
        V = [group(nxt, 3)[1]] + G[0][0] + G[1][0][:1] + [G[0][1]] + G[1][0][1:] + G[2][0][:1] + [G[1][1]] + G[2][0][1:] + G[3][0][:1] + [G[2][1]] + G[3][0][1:]
        rk = rdK(kn, (t+2) % 4); rv = rdV(vn, (t+1) % 4)
        seq = []
        if t == 2: seq += ["s_waitcnt vmcnt(3) lgkmcnt(0)", "s_barrier"]
        else: seq += ["s_waitcnt lgkmcnt(0)"]
        if prio: seq += [f"s_setprio {3 - (t+2) % 4}"]
        ev = [(4, [m2b(kf, nxt), rk[0]]), (76, [pv(vn, 1, 1), rk[1]]), (116, [pv(vf, 0, 0), rv[0]]), (156, [k16(kf, 0, nxt), rv[1]]),
              (196, [pv(vf, 0, 1)]), (236, [k16(kf, 1, nxt)]), (280, [pv(vf, 1, 0)])]
        if t == 1:
            ev[6][1].extend([f"s_add_u32 s55, s55, {SLOT}", f"s_cmp_ge_u32 s55, {NSLOT*SLOT}", "s_cselect_b32 s55, 0, s55"])
            V += [f"v_add_u32 v{vK1}, s55, v{bK1}", f"v_add_u32 v{vK2}, s55, v{bK2}"]
        if t == 2:
            iss = issue()
            ev[4][1].extend(iss[0:3]); ev[5][1].extend(iss[3:6]); ev[6][1].extend(iss[6:])
            V += [f"v_mad_u32_u24 v{vV}, v{mV}, s55, v{bV}"]
        if t == 3:
            ev[4][1].extend(["s_cmp_lg_u32 s36, s74", f"s_cbranch_scc1 {L('nopf')}",
                             "buffer_load_dword v197, v196, s[60:63], s72 offen", "buffer_load_dword v198, v199, s[64:67], s73 offen", f"{L('nopf')}:"])
            ev[6][1].extend(["s_add_u32 s36, s36, 1", "s_cmp_lt_u32 s36, 8"])
        tm = 0
        for v in V:
            while ev and ev[0][0] <= tm: seq += ev.pop(0)[1]
            seq.append(v); tm += cost(v)
        assert not ev
        assert seq.index(k16(kf, 0, nxt)) - seq.index(m2b(kf, nxt)) > 18
        for (b_, a_, c_) in ((0, 0, G[0][1]), (0, 1, G[1][1]), (1, 0, G[2][1])):
            assert seq.index(pv(vf, b_, a_)) - seq.index(c_) > 2
        for s_ in seq: k.e(s_)
    k.e(f"s_cbranch_scc1 {L('chunk')}")
    k.e(group(SB[1], 3)[1]); k.e("s_nop 1")
    k.e(pv(VF[1], 1, 1))
    ts_mark(k, TS, 2); ts_cyc(k, TS, 5)
    T = SB[0]; KP = SB[1]
    k.e(f"""s_setprio 0
s_lshl_b32 s27, s20, 5
s_add_u32 s27, s27, s17
v_add_u32 v{T+16}, s27, v6
v_lshrrev_b32 v{T+17}, 4, v{T+16}
v_mul_u32_u24 v{T+17}, 20480, v{T+17}
v_and_b32 v{T+16}, 15, v{T+16}
v_lshl_add_u32 v{T+17}, v{T+16}, 4, v{T+17}
v_add_u32 v{T+17}, {WS_OI}, v{T+17}
s_mul_i32 s27, s16, 5
v_add_u32 v{T+16}, s27, v7
s_mul_i32 s21, s18, 3072
s_add_u32 s21, s21, {MRG}
v_add_u32 v2, s21, v{vD}
s_xor_b32 s21, s18, 4
s_mul_i32 s21, s21, 3072
s_add_u32 s21, s21, {MRG}
v_add_u32 v3, s21, v{vD}
s_cmp_eq_u32 s20, 0
s_cbranch_scc1 {L('keep0')}""")
    for g in range(3): k.e(f"ds_write_b128 v2, v[{O+4*g}:{O+4*g+3}] offset:{g*1024}")
    for r in range(12): k.e(f"v_mov_b32 v{KP+r}, v{O+16+r}")
    k.e(f"s_branch {L('kept')}")
    k.label('keep0')
    for g in range(3): k.e(f"ds_write_b128 v2, v[{O+16+4*g}:{O+16+4*g+3}] offset:{g*1024}")
    for r in range(12): k.e(f"v_mov_b32 v{KP+r}, v{O+r}")
    k.label('kept')
    k.e(f"""s_mov_b32 s38, {f2u(2.0**-30)}
s_mov_b32 s39, {f2u(2.0**99)}
v_mul_f32 v{T+14}, 0, v{O}
v_mul_f32 v{T+15}, 0, v{O+16}""")
    for r in range(1, 12): k.e(f"v_fmac_f32 v{T+14}, 0, v{O+r}\nv_fmac_f32 v{T+15}, 0, v{O+16+r}")
    k.e(f"""v_min_f32 v{T+12}, v{O+8}, v{O+24}
v_max_f32 v{T+13}, v{O+8}, v{O+24}
v_cmp_u_f32 vcc, v{T+14}, v{T+15}
v_cmp_nge_f32 s[40:41], v{T+12}, s38
v_cmp_nle_f32 s[42:43], v{T+13}, s39
v_mov_b32 v{T+12}, {FLAG}
v_mov_b32 v{T+13}, 1
s_or_b32 s41, s41, s43
s_or_b32 s40, vcc_lo, vcc_hi
s_or_b32 s40, s40, s41""")
    if force_slow: k.e("s_cmp_eq_u32 s37, 0")
    k.e(f"""s_cbranch_scc0 {L('noflag')}
ds_write_b32 v{T+12}, v{T+13}""")
    k.label('noflag')
    for g in range(3):
        if g: k.e(f"v_add_u32 v{T+16}, 2, v{T+16}")
        k.e(f"""v_lshrrev_b32 v{T+18}, 3, v{T+16}
v_lshl_add_u32 v{T+20+g}, v{T+18}, 10, v{T+17}
v_and_b32 v{T+18}, 3, v{T+16}
v_lshl_add_u32 v{T+20+g}, v{T+18}, 8, v{T+20+g}
v_bfe_u32 v{T+18}, v{T+16}, 2, 1
v_lshl_add_u32 v{T+20+g}, v{T+18}, 3, v{T+20+g}""")
    k.e("s_waitcnt lgkmcnt(0)\ns_barrier")
    for g in (2, 0, 1): k.e(f"ds_read_b128 v[{T+4*g}:{T+4*g+3}], v3 offset:{g*1024}")
    k.e(f"""ds_read_b32 v{T+19}, v{T+12}
s_waitcnt lgkmcnt(3)
v_pk_add_f32 v[{T+8}:{T+9}], v[{T+8}:{T+9}], v[{KP+8}:{KP+9}]
v_pk_add_f32 v[{T+10}:{T+11}], v[{T+10}:{T+11}], v[{KP+10}:{KP+11}]
v_mov_b32 v{T+13}, v{T+8}
v_mov_b32 v{T+12}, v{T+8}
s_waitcnt lgkmcnt(1)
v_pk_add_f32 v[{T}:{T+1}], v[{T}:{T+1}], v[{KP}:{KP+1}]
v_permlane32_swap_b32 v{T+13}, v{T+12}
v_pk_add_f32 v[{T+2}:{T+3}], v[{T+2}:{T+3}], v[{KP+2}:{KP+3}]
v_rcp_f32 v{T+14}, v{T+12}
v_pk_add_f32 v[{T+4}:{T+5}], v[{T+4}:{T+5}], v[{KP+4}:{KP+5}]
v_pk_add_f32 v[{T+6}:{T+7}], v[{T+6}:{T+7}], v[{KP+6}:{KP+7}]""")
    for r in range(0, 12, 2): k.e(f"v_pk_mul_f32 v[{T+r}:{T+r+1}], v[{T+r}:{T+r+1}], v[{T+14}:{T+15}] op_sel_hi:[1,0]")
    for g in range(3):
        k.e(f"v_cvt_pk_bf16_f32 v{T+24+2*g}, v{T+4*g}, v{T+4*g+1}\nv_cvt_pk_bf16_f32 v{T+25+2*g}, v{T+4*g+2}, v{T+4*g+3}")
    k.e(f"""buffer_store_dwordx2 v[{T+24}:{T+25}], v{T+20}, s[12:15], 0 offen
buffer_store_dwordx2 v[{T+26}:{T+27}], v{T+21}, s[12:15], 0 offen
s_mov_b32 exec_hi, 0
buffer_store_dwordx2 v[{T+28}:{T+29}], v{T+22}, s[12:15], 0 offen
s_mov_b32 exec_hi, -1
s_waitcnt lgkmcnt(0)
v_readfirstlane_b32 s38, v{T+19}
s_nop 3
s_cmp_gt_u32 s38, s37
s_cbranch_scc1 {L('slow')}""")
    k.label('done')
    ts_end(k, TS, 1, 12, 100)
    k.label('end')
    k.e("s_endpgm")
    k.label('slow')
    S0 = SB[0]; MX = P; kf = KF[0]
    k.e(f"""s_waitcnt vmcnt(0)
s_mov_b32 s37, 1
s_barrier
v_mov_b32 v{MX}, 0xff800000
v_mov_b32 v{MX+1}, 0xff800000
s_add_u32 s56, s24, {WS_KP}
s_add_u32 s57, s25, {WS_KP}
s_add_u32 s57, s57, s23
v_lshlrev_b32 v35, 4, v6
s_mov_b32 s36, 0""")
    k.label('mloop')
    k.e(f"""buffer_load_dwordx4 v[{kf}:{kf+3}], v34, s[12:15], s56 offen
buffer_load_dwordx2 v[{kf+4}:{kf+5}], v35, s[12:15], s57 offen
s_add_u32 s56, s56, 512
s_add_u32 s57, s57, 512
s_waitcnt vmcnt(0)""")
    k.e(m2b(kf, S0)); k.e("s_nop 15\ns_nop 3")
    k.e(k16(kf, 0, S0)); k.e(k16(kf, 1, S0)); k.e("s_nop 11")
    for b in range(2):
        for r in range(0, 16, 2):
            k.e(f"v_max3_f32 v{MX+b}, v{S0+16*b+r}, v{S0+16*b+r+1}, v{MX+b}")
    k.e(f"""s_add_u32 s36, s36, 1
s_cmp_lt_u32 s36, 64
s_cbranch_scc1 {L('mloop')}
v_mov_b32 v{MX+2}, v{MX}
v_mov_b32 v{MX+3}, v{MX+1}
s_nop 1
v_permlane32_swap_b32 v{MX}, v{MX+2}
v_permlane32_swap_b32 v{MX+1}, v{MX+3}
s_nop 1
v_max_f32 v{MX}, v{MX}, v{MX+2}
v_max_f32 v{MX+1}, v{MX+1}, v{MX+3}""")
    for b in range(2):
        for r in range(16): k.e(f"v_sub_f32 v{CM+16*b+r}, 0, v{MX+b}")
    k.e(f"s_branch {L('main')}")
    return k
```

```python
from common import *
from ts import *

def row160_offsets(k, lane, dst, n, pitch, t0=3):
    for u in range(64*n): assert (u*6554) >> 16 == u//10
    for i in range(n):
        k.e(f"""v_add_u32 v{t0}, {64*i}, v{lane}
v_mul_u32_u24 v{t0+1}, 6554, v{t0}
v_lshrrev_b32 v{t0+1}, 16, v{t0+1}
v_mul_u32_u24 v{t0+1}, {pitch-160}, v{t0+1}
v_lshl_add_u32 v{dst+i}, v{t0}, 4, v{t0+1}""")

def store_tile(k, X, vaddr, vtmp, srd, lane_g, soff='0', addr=True):
    if addr: k.e(f"""v_and_b32 v{vtmp}, 1, v{lane_g}
v_mul_u32_u24 v{vtmp}, 24, v{vtmp}
v_add_u32 v{vtmp}, v{vaddr}, v{vtmp}""")
    k.e(f"""s_nop 0
v_permlane16_swap_b32 v{X}, v{X+2}
v_permlane16_swap_b32 v{X+1}, v{X+3}
v_permlane16_swap_b32 v{X+4}, v{X+6}
v_permlane16_swap_b32 v{X+5}, v{X+7}
buffer_store_dwordx2 v[{X+8}:{X+9}], v{vaddr}, s[{srd}:{srd+3}], {soff} offen offset:128
buffer_store_dwordx4 v[{X}:{X+3}], v{vtmp}, s[{srd}:{srd+3}], {soff} offen
buffer_store_dwordx4 v[{X+4}:{X+7}], v{vtmp}, s[{srd}:{srd+3}], {soff} offen offset:64""")

def kernel_C(TS=False):
    XT = 102400
    RED = XT + 12288
    k = K("proj_kernel", 256, 512, RED + 20480, 136)
    L = k.L
    OF = 32; ACC = 72; WF = 92; XR = 12
    ts_begin(k, TS)
    k.e(f"""s_cmp_ge_u32 s2, 256
s_cbranch_scc1 {L('end')}
s_load_dwordx2 s[12:13], s[0:1], {KA['ws']}
s_load_dwordx2 s[4:5], s[0:1], {KA['x']}
s_load_dwordx2 s[8:9], s[0:1], {KA['w2']}
v_lshrrev_b32 v2, 6, v0
v_and_b32 v1, 63, v0
v_readfirstlane_b32 s18, v2
; xcd = wg%8 -> row blocks 4*xcd..4*xcd+3 ; idx = wg/8 : col tile = idx%8, rb = idx/8
s_and_b32 s20, s2, 7
s_lshr_b32 s21, s2, 3
s_lshl_b32 s20, s20, 2
s_lshr_b32 s22, s21, 3
s_add_u32 s20, s20, s22
s_lshl_b32 s16, s20, 6
s_and_b32 s21, s21, 7
s_mul_i32 s17, s21, 160
s_and_b32 s25, s18, 3
s_lshr_b32 s26, s18, 2
s_mul_i32 s27, s26, 10
s_add_u32 s27, s27, s25
s_mul_i32 s29, s27, 5120
s_mul_i32 s28, s21, 102400
s_add_u32 s28, s28, s29
s_add_u32 s28, s28, {WS_WO}
s_lshr_b32 s30, s16, 4
s_add_u32 s30, s30, s25
s_mul_i32 s30, s30, 20480
s_mul_i32 s31, s26, 10240
s_add_u32 s30, s30, s31
s_add_u32 s30, s30, {WS_OI}
v_lshlrev_b32 v2, 4, v1
s_mov_b32 m0, s29
s_waitcnt lgkmcnt(0)""")
    k.srd(12, 12, WS_SIZE); k.srd(4, 4, SZ['x'])
    def dma():
        for n in range(4): k.e(f"buffer_load_dwordx4 v2, s[12:15], s28 offen offset:{n*1024} lds")
        k.e(f"""s_add_u32 m0, s29, 4096
s_add_u32 s28, s28, 4096
buffer_load_dwordx4 v2, s[12:15], s28 offen lds
s_add_u32 s28, s28, {4*5120-4096}
s_add_u32 s29, s29, {4*5120}
s_mov_b32 m0, s29""")
    def oload(a, b):
        for j in range(a, b):
            k.e(f"buffer_load_dwordx4 v[{OF+4*j}:{OF+4*j+3}], v2, s[12:15], s30 offen offset:{(j%4)*1024}")
            if j % 4 == 3: k.e("s_add_u32 s30, s30, 4096")
    dma(); oload(0, 4)
    dma(); oload(4, 8)
    k.e(f"""s_cmp_ge_u32 s25, 2
s_cbranch_scc1 {L('xl')}""")
    dma()
    k.e(f"s_branch {L('xd')}")
    k.label('xl')
    row160_offsets(k, 1, 24, 3, 1280)
    k.e(f"""s_lshl_b32 s31, s26, 1
s_add_u32 s31, s31, s25
s_sub_u32 s31, s31, 2
s_lshl_b32 s32, s31, 4
s_add_u32 s32, s32, s16
s_mul_i32 s32, s32, 1280
s_add_u32 s32, s32, s17
s_mul_i32 s31, s31, 3072
s_add_u32 m0, s31, {XT}
s_nop 0
buffer_load_dwordx4 v24, s[4:7], s32 offen lds
s_add_u32 m0, s31, {XT+1024}
s_nop 0
buffer_load_dwordx4 v25, s[4:7], s32 offen lds
s_add_u32 m0, s31, {XT+2048}
s_mov_b32 exec_hi, 0
buffer_load_dwordx4 v26, s[4:7], s32 offen lds
s_mov_b32 exec_hi, -1""")
    k.label('xd')
    oload(8, 10)
    k.e(f"""v_and_b32 v6, 15, v1
v_lshrrev_b32 v7, 4, v1
s_lshl_b32 s31, s25, 4
s_add_u32 s31, s31, s16
v_add_u32 v8, s31, v6
v_mul_u32_u24 v9, 1280, v8
v_lshl_add_u32 v9, v7, 3, v9
s_add_u32 s31, s17, {WS_HB}
v_add_u32 v9, s31, v9
v_lshrrev_b32 v3, 2, v1
v_mul_u32_u24 v3, 160, v3
v_and_b32 v4, 3, v1
v_lshl_add_u32 v3, v4, 3, v3
s_mul_i32 s31, s26, 51200
v_add_u32 v3, s31, v3
s_mul_i32 s31, s25, 5120
v_add_u32 v4, s31, v2
v_add_u32 v4, {RED}, v4
v_mul_u32_u24 v5, 160, v6
v_lshl_add_u32 v5, v7, 3, v5
s_mul_i32 s31, s25, 3072
s_add_u32 s31, s31, {XT}
v_add_u32 v5, s31, v5""")
    def reads(j):
        out = []
        for nt in range(5):
            b = WF + 20*(j & 1) + 4*nt
            out.append(f"ds_read_b64_tr_b16 v[{b}:{b+1}], v3 offset:{j*5120 + nt*32}")
            out.append(f"ds_read_b64_tr_b16 v[{b+2}:{b+3}], v3 offset:{j*5120 + 2560 + nt*32}")
        return out
    phases = [(0, 4, 14), (4, 8, 5), (8, 10, 0)]
    for (a, b, vm) in phases:
        if a == 0: ts_mark(k, TS, 0)
        k.e(f"s_waitcnt vmcnt({vm})\ns_barrier")
        ts_mark(k, TS, 1 + a//4)
        if TS: k.e("s_waitcnt lgkmcnt(0)")
        for r in reads(a): k.e(r)
        for j in range(a, b):
            s = j & 1
            nxt = reads(j+1) if j+1 < b else []
            for nt in range(5):
                w = WF + 20*s + 4*nt
                for r in nxt[2*nt:2*nt+2]: k.e(r)
                k.e(f"s_waitcnt lgkmcnt({10 if nxt else 8-2*nt})")
                c = "0" if j == 0 else f"v[{ACC+4*nt}:{ACC+4*nt+3}]"
                k.e(f"v_mfma_f32_16x16x32_bf16 v[{ACC+4*nt}:{ACC+4*nt+3}], v[{w}:{w+3}], v[{OF+4*j}:{OF+4*j+3}], {c}")
    k.e(f"""s_cmp_eq_u32 s26, 0
s_cbranch_scc1 {L('fin')}
s_nop 1""")
    for nt in range(5): k.e(f"ds_write_b128 v4, v[{ACC+4*nt}:{ACC+4*nt+3}] offset:{nt*1024}")
    k.e("s_waitcnt lgkmcnt(0)\ns_barrier")
    k.srd(8, 8, SZ['w2'])
    k.e(f"""s_lshr_b32 s32, s2, 3
s_mul_i32 s32, s32, 48
s_mul_i32 s33, s25, 12
s_add_u32 s32, s32, s33
s_lshl_b32 s32, s32, 12
s_and_b32 s33, s2, 6
s_lshl_b32 s33, s33, 9
s_add_u32 s32, s32, s33
v_lshrrev_b32 v24, 3, v1
v_and_b32 v25, 7, v1
v_lshlrev_b32 v25, 7, v25
v_lshl_add_u32 v24, v24, 12, v25
buffer_load_dword v27, v24, s[8:11], s32 offen
s_add_u32 s32, s32, {8*4096}
s_mov_b32 exec_hi, 0
buffer_load_dword v27, v24, s[8:11], s32 offen
s_mov_b32 exec_hi, -1
""")
    ts_end(k, TS, 2, 12, 40)
    k.e("s_endpgm")
    k.label('fin')
    ts_mark(k, TS, 4)
    if TS: k.e("s_waitcnt lgkmcnt(0)")
    for nt in range(5): k.e(f"ds_read_b64 v[{XR+2*nt}:{XR+2*nt+1}], v5 offset:{nt*32}")
    k.e("v_mov_b32 v10, 0\nv_mov_b32 v11, 0\nv_mov_b32 v5, 0x3f803f80\ns_waitcnt lgkmcnt(0)")
    for nt in range(5):
        a = ACC + 4*nt; x = XR + 2*nt
        k.e(f"""v_lshlrev_b32 v22, 16, v{x}
v_and_b32 v23, 0xffff0000, v{x}
v_lshlrev_b32 v24, 16, v{x+1}
v_and_b32 v25, 0xffff0000, v{x+1}
v_pk_add_f32 v[{a}:{a+1}], v[{a}:{a+1}], v[22:23]
v_pk_add_f32 v[{a+2}:{a+3}], v[{a+2}:{a+3}], v[24:25]""")
    k.e("s_barrier")
    for nt in range(5): k.e(f"ds_read_b128 v[{WF+4*nt}:{WF+4*nt+3}], v4 offset:{nt*1024}")
    for nt in range(5):
        a = ACC + 4*nt; w = WF + 4*nt; x = XR + 2*nt
        k.e(f"""s_waitcnt lgkmcnt({4-nt})
v_pk_add_f32 v[{a}:{a+1}], v[{a}:{a+1}], v[{w}:{w+1}]
v_pk_add_f32 v[{a+2}:{a+3}], v[{a+2}:{a+3}], v[{w+2}:{w+3}]
v_cvt_pk_bf16_f32 v{x}, v{a}, v{a+1}
v_cvt_pk_bf16_f32 v{x+1}, v{a+2}, v{a+3}""")
    for r in range(10):
        k.e(f"v_dot2c_f32_bf16 v10, v{XR+r}, v5\nv_dot2c_f32_bf16 v11, v{XR+r}, v{XR+r}")
    k.e(f"""v_lshlrev_b32 v8, 3, v6
s_lshr_b32 s34, s16, 4
s_add_u32 s34, s34, s25
s_lshl_b32 s34, s34, 10
s_add_u32 s34, s34, {WS_ST}
s_lshl_b32 s31, s21, 7
s_add_u32 s31, s31, s34
v_mov_b32 v22, v10
v_mov_b32 v23, v11
s_nop 1
v_permlane32_swap_b32 v10, v22
v_permlane32_swap_b32 v11, v23
s_nop 1
v_pk_add_f32 v[10:11], v[10:11], v[22:23]
v_mov_b32 v22, v10
v_mov_b32 v23, v11
s_nop 1
v_permlane16_swap_b32 v10, v22
v_permlane16_swap_b32 v11, v23
s_nop 1
v_pk_add_f32 v[10:11], v[10:11], v[22:23]
s_mov_b64 exec, 0xffff
v_min_u32 v11, 0xfffffffe, v11
buffer_store_dwordx2 v[10:11], v8, s[12:15], s31 offen sc0 sc1
s_mov_b64 exec, -1""")
    k.e("v_lshl_add_u32 v8, v7, 8, v8\ns_mov_b32 s33, 0x200000")
    k.label('poll')
    k.e(f"""buffer_load_dwordx2 v[28:29], v8, s[12:15], s34 offen sc1
buffer_load_dwordx2 v[30:31], v8, s[12:15], s34 offen offset:128 sc1
s_sub_u32 s33, s33, 1
s_waitcnt vmcnt(0)
v_max_u32 v22, v29, v31
v_cmp_eq_u32 vcc, -1, v22
s_cmp_eq_u32 s33, 0
s_cbranch_scc1 {L('got')}
s_cbranch_vccnz {L('poll')}""")
    k.label('got')
    k.e(f"""v_pk_add_f32 v[10:11], v[28:29], v[30:31]
s_mov_b32 s20, {f2u(1e-5)}
v_mov_b32 v22, v10
v_mov_b32 v23, v11
s_nop 1
v_permlane32_swap_b32 v10, v22
v_permlane32_swap_b32 v11, v23
s_nop 1
v_pk_add_f32 v[10:11], v[10:11], v[22:23]
v_mov_b32 v22, v10
v_mov_b32 v23, v11
s_nop 1
v_permlane16_swap_b32 v10, v22
v_permlane16_swap_b32 v11, v23
s_nop 1
v_pk_add_f32 v[10:11], v[10:11], v[22:23]
v_mul_f32 v10, {f2u(-1.0/D)}, v10
v_mul_f32 v11, {f2u(1.0/D)}, v11
v_fma_f32 v11, -v10, v10, v11
v_max_f32 v11, 0, v11
v_add_f32 v22, s20, v11
v_rcp_f32 v23, v22
v_rsq_f32 v22, v22
v_fma_f32 v23, v23, v11, s20
v_rsq_f32 v23, v23
s_mov_b32 s31, {WS_HN - WS_HB}
v_mul_f32 v22, v22, v23
v_mul_f32 v23, v22, v10""")
    for nt in range(5):
        a_ = ACC + 4*nt; x = WF + 2*nt
        k.e(f"""v_pk_fma_f32 v[{a_}:{a_+1}], v[{a_}:{a_+1}], v[22:23], v[22:23] op_sel:[0,0,1] op_sel_hi:[1,0,1]
v_pk_fma_f32 v[{a_+2}:{a_+3}], v[{a_+2}:{a_+3}], v[22:23], v[22:23] op_sel:[0,0,1] op_sel_hi:[1,0,1]
v_cvt_pk_bf16_f32 v{x}, v{a_}, v{a_+1}
v_cvt_pk_bf16_f32 v{x+1}, v{a_+2}, v{a_+3}""")
    store_tile(k, WF, 9, 26, 12, 7, soff="s31")
    store_tile(k, XR, 9, 26, 12, 7, addr=False)
    ts_mark(k, TS, 5)
    ts_end(k, TS, 2, 12, 40)
    k.label('end')
    k.e("s_endpgm")
    return k
```

```python
from common import *
from ts import *
import math

def kernel_D(TS=False):
    k = K("mix1_kernel", 240, 512, 131072, 128)
    L = k.L
    ts_begin(k, TS)
    k.e(f"""s_cmp_ge_u32 s2, 240
s_cbranch_scc1 {L('end')}
s_load_dwordx4 s[4:7], s[0:1], {KA['w1']}
s_load_dwordx2 s[12:13], s[0:1], {KA['ws']}
v_lshrrev_b32 v2, 6, v0
v_and_b32 v1, 63, v0
v_readfirstlane_b32 s18, v2
; xcd x = wg%8, i = wg/8 : d block = 5*(x&1) + i/6, f block = 6*(x>>1) + i%6
s_and_b32 s20, s2, 7
s_lshr_b32 s21, s2, 3
s_mul_i32 s16, s21, 43
s_lshr_b32 s16, s16, 8
s_mul_i32 s17, s16, 6
s_sub_u32 s17, s21, s17
s_and_b32 s22, s20, 1
s_mul_i32 s22, s22, 5
s_add_u32 s16, s16, s22
s_lshr_b32 s22, s20, 1
s_mul_i32 s22, s22, 6
s_add_u32 s17, s17, s22
s_cmp_lt_u32 s18, 4
s_cbranch_scc1 {L('compute')}""")
    for w in range(31): assert (w*43) >> 8 == w//6
    k.e(f"""s_sub_u32 s25, s18, 4
v_lshrrev_b32 v4, 3, v1
s_lshl_b32 s26, s25, 5
v_add_u32 v4, s26, v4
v_bfe_u32 v5, v1, 4, 1
v_lshlrev_b32 v5, 2, v5
v_and_b32 v6, 7, v1
v_xor_b32 v5, v5, v6
v_lshlrev_b32 v5, 4, v5
v_mul_u32_u24 v2, 3072, v4
v_add_u32 v2, v2, v5
v_mul_u32_u24 v3, 1280, v4
v_add_u32 v3, v3, v5
s_lshl_b32 s28, s17, 7
s_lshl_b32 s29, s16, 7
s_add_u32 s29, s29, {WS_HN}
s_lshl_b32 s30, s25, 12
s_mov_b32 s33, 0
s_waitcnt lgkmcnt(0)""")
    k.srd(4, 4, SZ['w1']); k.srd(12, 12, WS_SIZE)
    k.label('lloop')
    for i in range(4):
        k.e(f"""s_add_u32 m0, s30, {i*1024}
s_add_u32 s32, s29, {i*8*1280}
buffer_load_dwordx4 v3, s[12:15], s32 offen lds
s_add_u32 m0, s30, {16384 + i*1024}
s_add_u32 s32, s28, {i*8*3072}
buffer_load_dwordx4 v2, s[4:7], s32 offen lds""")
    k.e(f"""s_add_u32 s28, s28, {128*3072}
s_add_u32 s29, s29, {128*1280}
s_add_u32 s30, s30, 32768
s_and_b32 s30, s30, 0x1ffff
s_add_u32 s33, s33, 1
s_cmp_lt_u32 s33, 3
s_cbranch_scc1 {L('lloop')}
s_waitcnt vmcnt(16)
s_barrier
s_cmp_lt_u32 s33, 16
s_cbranch_scc1 {L('lloop')}
s_waitcnt vmcnt(8)
s_barrier
s_waitcnt vmcnt(0)
s_barrier""")
    ts_end(k, TS, 3, 12, 40)
    k.e("s_endpgm")
    k.label('compute')
    k.e(f"""s_and_b32 s25, s18, 1
s_lshr_b32 s26, s18, 1
v_lshrrev_b32 v11, 5, v1
s_lshl_b32 s27, s17, 7
s_lshl_b32 s28, s26, 6
s_add_u32 s27, s27, s28
v_lshlrev_b32 v4, 3, v11
s_waitcnt lgkmcnt(0)
s_mov_b32 s8, s6
s_mov_b32 s9, s7""")
    k.srd(8, 8, SZ['b1']); k.srd(12, 12, WS_SIZE)
    for g in range(4): k.e(f"buffer_load_dwordx2 v[{112+2*g}:{113+2*g}], v4, s[8:11], s27 offen offset:{16*g}")
    k.e(f"""v_bfe_u32 v4, v1, 2, 2
v_lshl_add_u32 v5, v11, 3, v4
v_add_u32 v5, s28, v5
v_lshlrev_b32 v5, 7, v5
v_bfe_u32 v6, v1, 4, 1
v_lshlrev_b32 v6, 1, v6
v_bfe_u32 v7, v1, 1, 1
v_add_u32 v6, v6, v7
v_bfe_u32 v7, v1, 3, 1
v_lshl_add_u32 v6, v7, 2, v6
v_lshl_add_u32 v5, v6, 4, v5
v_and_b32 v6, 1, v1
v_lshl_add_u32 v5, v6, 3, v5
s_lshl_b32 s27, s25, 6
v_xor_b32 v12, s27, v5
v_add_u32 v13, 16384, v5
v_xor_b32 v14, 64, v13
v_mov_b32 v15, v12
v_mov_b32 v16, v13
v_mov_b32 v17, v14""")
    ACC = 80; FR = 32
    for r in range(32): k.e(f"v_mov_b32 v{ACC+r}, 0")
    def reads(ks):
        b = FR + 12*ks
        return [f"ds_read_b64_tr_b16 v[{b+4*o+2*j}:{b+4*o+2*j+1}], v{15+o} offset:{(16*ks+4*j)*128}" for o in range(3) for j in range(2)]
    def mf(ks, nb):
        b = FR + 12*ks
        return f"v_mfma_f32_32x32x16_bf16 v[{ACC+16*nb}:{ACC+16*nb+15}], v[{b+4+4*nb}:{b+7+4*nb}], v[{b}:{b+3}], v[{ACC+16*nb}:{ACC+16*nb+15}]"
    k.e("s_mov_b32 s33, 0\ns_mov_b32 s34, 0")
    ts_mark(k, TS, 0)
    k.e("s_barrier")
    ts_mark(k, TS, 1); ts_cyc(k, TS, 4)
    if TS: k.e("s_waitcnt lgkmcnt(0)")
    for r in reads(0) + reads(1): k.e(r)
    k.label('cloop')
    for ks in range(4):
        rd = reads((ks+2) % 4)
        if ks == 2:
            k.e("s_add_u32 s34, s34, 32768\ns_and_b32 s34, s34, 0x1ffff")
            for t in range(3): k.e(f"v_add_u32 v{15+t}, s34, v{12+t}")
            k.e("s_add_u32 s33, s33, 1\ns_cmp_lt_u32 s33, 16\ns_waitcnt lgkmcnt(6)")
            k.e(mf(ks, 0)); k.e(mf(ks, 1))
            k.e(f"s_waitcnt lgkmcnt(0)\ns_cbranch_scc0 {L('last')}\ns_barrier")
            for r in rd: k.e(r)
        else:
            if ks != 3: k.e("s_waitcnt lgkmcnt(6)")
            k.e(mf(ks, 0))
            for r in rd[:3]: k.e(r)
            k.e(mf(ks, 1))
            for r in rd[3:]: k.e(r)
    k.e(f"s_branch {L('cloop')}")
    k.label('last')
    k.e(mf(3, 0)); k.e(mf(3, 1))
    ts_mark(k, TS, 2); ts_cyc(k, TS, 5)
    c1 = -2.0*math.log2(math.e)*math.sqrt(2.0/math.pi); c2 = c1*0.044715
    k.e(f"""v_lshlrev_b32 v2, 4, v1
s_lshl_b32 s28, s18, 12
v_add_u32 v3, s28, v2
s_xor_b32 s28, s28, 8192
v_add_u32 v2, s28, v2
; u image address: ((d/16)*48 + kk)*1024 + (2a+h)*256 + (d%16)*16
v_bfe_u32 v4, v1, 4, 1
s_lshl_b32 s27, s16, 2
s_lshl_b32 s28, s25, 1
s_add_u32 s27, s27, s28
v_add_u32 v4, s27, v4
v_mul_u32_u24 v4, 49152, v4
v_lshl_add_u32 v4, v11, 8, v4
v_and_b32 v5, 15, v1
v_lshl_add_u32 v4, v5, 4, v4
s_cmp_eq_u32 s26, 0
s_waitcnt vmcnt(0)
s_cbranch_scc1 {L('k0')}""")
    KP = 32
    for q in (1, 0):
        if q == 0: k.label('k0')
        for p in range(4):
            a = ACC + 16*(q ^ 1) + 4*p
            k.e(f"ds_write_b128 v3, v[{a}:{a+3}] offset:{p*1024}")
        for r in range(16):
            bq = 112 + r//2
            k.e(f"v_lshlrev_b32 v{KP+r}, 16, v{bq}" if r % 2 == 0 else f"v_and_b32 v{KP+r}, 0xffff0000, v{bq}")
        for r in range(0, 16, 2):
            k.e(f"v_pk_add_f32 v[{KP+r}:{KP+r+1}], v[{KP+r}:{KP+r+1}], v[{ACC+16*q+r}:{ACC+16*q+r+1}]")
        if q == 1: k.e(f"s_branch {L('kd')}")
    k.label('kd')
    k.e(f"""s_lshl_b32 s27, s17, 11
s_lshl_b32 s28, s26, 10
s_add_u32 s27, s27, s28
s_add_u32 s27, s27, {WS_UI}
s_mov_b32 s20, {f2u(c1)}
s_mov_b32 s21, {f2u(c2)}
v_mov_b32 v6, s20
s_waitcnt lgkmcnt(0)
s_barrier""")
    for p in range(4): k.e(f"ds_read_b128 v[{48+4*p}:{51+4*p}], v2 offset:{p*1024}")
    for hf in range(2):
        R = range(8*hf, 8*hf+8)
        k.e(f"s_waitcnt lgkmcnt({2-2*hf})")
        for r in range(8*hf, 8*hf+8, 2): k.e(f"v_pk_add_f32 v[{KP+r}:{KP+r+1}], v[{KP+r}:{KP+r+1}], v[{48+r}:{49+r}]")
        for r in range(8*hf, 8*hf+8, 2): k.e(f"v_pk_mul_f32 v[{64+r}:{65+r}], v[{KP+r}:{KP+r+1}], v[{KP+r}:{KP+r+1}]")
        for r in R: k.e(f"v_fma_f32 v{64+r}, v{64+r}, s21, v6")
        for r in range(8*hf, 8*hf+8, 2): k.e(f"v_pk_mul_f32 v[{64+r}:{65+r}], v[{64+r}:{65+r}], v[{KP+r}:{KP+r+1}]")
        for r in R: k.e(f"v_exp_f32 v{64+r}, v{64+r}")
        for r in R: k.e(f"v_add_f32 v{64+r}, 1.0, v{64+r}")
        for r in R: k.e(f"v_rcp_f32 v{64+r}, v{64+r}")
        for r in range(8*hf, 8*hf+8, 2): k.e(f"v_pk_mul_f32 v[{64+r}:{65+r}], v[{64+r}:{65+r}], v[{KP+r}:{KP+r+1}]")
        for r in range(4): k.e(f"v_cvt_pk_bf16_f32 v{20+4*hf+r}, v{64+8*hf+2*r}, v{65+8*hf+2*r}")
        k.e(f"buffer_store_dwordx4 v[{20+4*hf}:{23+4*hf}], v4, s[12:15], s27 offen offset:{512*hf}")
    ts_mark(k, TS, 3)
    ts_end(k, TS, 3, 12, 40)
    k.label('end')
    k.e("s_endpgm")
    return k
```

```python
from common import *
from ts import *
from kC import row160_offsets, store_tile

def kernel_E(TS=False):
    SLOT = 36864
    HT = 4*SLOT
    k = K("mix2_kernel", 256, 512, HT + 12288, 128)
    L = k.L
    ts_begin(k, TS)
    k.e(f"""s_cmp_ge_u32 s2, 256
s_cbranch_scc1 {L('end')}
s_load_dwordx4 s[4:7], s[0:1], {KA['w2']}
s_load_dwordx2 s[12:13], s[0:1], {KA['ws']}
s_load_dwordx2 s[36:37], s[0:1], {KA['out']}
v_lshrrev_b32 v2, 6, v0
v_and_b32 v1, 63, v0
v_readfirstlane_b32 s18, v2
; xcd x = wg%8, i = wg/8 : token block = 8*(x>>1) + i%8, d block = 4*(x&1) + i/8
s_lshr_b32 s21, s2, 3
s_and_b32 s16, s21, 7
s_and_b32 s22, s2, 6
s_lshl_b32 s22, s22, 2
s_add_u32 s16, s16, s22
s_lshr_b32 s17, s21, 3
s_and_b32 s22, s2, 1
s_lshl_b32 s22, s22, 2
s_add_u32 s17, s17, s22
s_cmp_lt_u32 s18, 4
s_cbranch_scc1 {L('compute')}""")
    k.e(f"""s_sub_u32 s25, s18, 4
v_lshrrev_b32 v4, 3, v1
s_lshl_b32 s26, s25, 5
v_add_u32 v4, s26, v4
v_lshrrev_b32 v5, 4, v1
v_lshlrev_b32 v5, 1, v5
v_and_b32 v6, 7, v1
v_xor_b32 v5, v5, v6
v_lshlrev_b32 v5, 4, v5
v_lshl_add_u32 v2, v4, 12, v5
s_lshl_b32 s28, s16, 7
v_lshlrev_b32 v3, 4, v1
s_mul_i32 s29, s17, {5*49152}
s_lshl_b32 s26, s25, 10
s_add_u32 s29, s29, s26
s_add_u32 s29, s29, {WS_UI}
s_mul_i32 s27, s25, 5120
s_lshl_b32 s35, s25, 12
s_mov_b32 s30, 0
s_mov_b32 s33, 0
s_waitcnt lgkmcnt(0)""")
    k.srd(4, 4, SZ['w2']); k.srd(12, 12, WS_SIZE)
    k.label('lloop')
    k.e("s_add_u32 s31, s30, s27\ns_add_u32 s24, s30, s35")
    for i in range(5):
        k.e(f"""s_add_u32 m0, s31, {i*1024}
s_add_u32 s32, s29, {i*49152}
buffer_load_dwordx4 v3, s[12:15], s32 offen lds""")
        if i < 4:
            k.e(f"""s_add_u32 m0, s24, {20480 + i*1024}
s_add_u32 s32, s28, {i*8*4096}
buffer_load_dwordx4 v2, s[4:7], s32 offen lds""")
    k.e(f"""s_add_u32 s28, s28, {128*4096}
s_add_u32 s29, s29, 4096
s_add_u32 s30, s30, {SLOT}
s_cmp_eq_u32 s30, {4*SLOT}
s_cselect_b32 s30, 0, s30
s_add_u32 s33, s33, 1
s_cmp_lt_u32 s33, 3
s_cbranch_scc1 {L('lloop')}
s_waitcnt vmcnt(18)
s_barrier
s_cmp_lt_u32 s33, 12
s_cbranch_scc1 {L('lloop')}""")
    row160_offsets(k, 1, 8, 3, 1280, t0=4)
    k.e(f"""s_lshl_b32 s31, s16, 6
s_lshl_b32 s32, s25, 4
s_add_u32 s32, s32, s31
s_mul_i32 s32, s32, 1280
s_mul_i32 s31, s17, 160
s_add_u32 s32, s32, s31
s_add_u32 s32, s32, {WS_HB}
s_mul_i32 s31, s25, 3072
s_add_u32 m0, s31, {HT}
s_nop 0
buffer_load_dwordx4 v8, s[12:15], s32 offen lds
s_add_u32 m0, s31, {HT+1024}
s_nop 0
buffer_load_dwordx4 v9, s[12:15], s32 offen lds
s_add_u32 m0, s31, {HT+2048}
s_mov_b32 exec_hi, 0
buffer_load_dwordx4 v10, s[12:15], s32 offen lds
s_mov_b32 exec_hi, -1
s_waitcnt vmcnt(12)
s_barrier
s_waitcnt vmcnt(3)
s_barrier
s_waitcnt vmcnt(0)
s_barrier""")
    ts_end(k, TS, 4, 12, 40)
    k.e("s_endpgm")
    k.label('compute')
    XR = 12; ACC = 24; FR = 64
    k.e(f"""s_and_b32 s25, s18, 1
s_lshr_b32 s26, s18, 1
v_and_b32 v6, 15, v1
v_lshrrev_b32 v7, 4, v1
s_lshl_b32 s27, s25, 1
s_add_u32 s27, s27, s26
s_lshl_b32 s28, s16, 6
s_lshl_b32 s29, s27, 4
s_add_u32 s28, s28, s29
v_add_u32 v8, s28, v6
v_mul_u32_u24 v9, 1280, v8
v_lshl_add_u32 v9, v7, 3, v9
s_mul_i32 s28, s17, 160
v_add_u32 v9, s28, v9
v_lshlrev_b32 v8, 1, v8
v_mul_u32_u24 v122, 160, v6
v_lshl_add_u32 v122, v7, 3, v122
s_mul_i32 s28, s27, 3072
s_add_u32 s28, s28, {HT}
v_add_u32 v122, s28, v122
s_waitcnt lgkmcnt(0)
s_mov_b32 s8, s6
s_mov_b32 s9, s7""")
    k.srd(8, 8, SZ['b2']); k.srd(36, 36, SZ['out'])
    if TS: k.srd(12, 12, WS_SIZE)
    k.e("buffer_load_ushort v22, v8, s[8:11], 0 offen")
    k.e(f"""v_bfe_u32 v4, v1, 2, 3
v_bfe_u32 v5, v1, 5, 1
v_lshl_add_u32 v5, v5, 4, v4
v_lshlrev_b32 v5, 7, v5
v_lshrrev_b32 v4, 1, v4
s_lshl_b32 s28, s25, 1
v_xor_b32 v4, s28, v4
v_lshl_add_u32 v5, v4, 5, v5
v_and_b32 v4, 3, v1
v_lshl_add_u32 v5, v4, 3, v5
s_lshl_b32 s28, s26, 13
s_add_u32 s28, s28, 20480
v_add_u32 v3, s28, v5
v_xor_b32 v4, 32, v3
v_lshlrev_b32 v2, 4, v1
s_mul_i32 s28, s26, 10240
v_add_u32 v2, s28, v2
v_mov_b32 v10, v2
v_mov_b32 v11, v3
v_mov_b32 v5, v4""")
    for r in range(40): k.e(f"v_mov_b32 v{ACC+r}, 0")
    def reads(kk):
        b = FR + 28*kk
        U = [f"ds_read_b128 v[{b+4*nt}:{b+4*nt+3}], v10 offset:{kk*5120 + nt*1024}" for nt in range(5)]
        W = [f"ds_read_b64_tr_b16 v[{b+20+4*t+2*j}:{b+21+4*t+2*j}], v{(11,5)[t]} offset:{kk*4096 + j*1024}" for t in range(2) for j in range(2)]
        return W + U
    def mf(kk, nt, t):
        b = FR + 28*kk; a = ACC + 20*t + 4*nt
        return f"v_mfma_f32_16x16x32_bf16 v[{a}:{a+3}], v[{b+4*nt}:{b+4*nt+3}], v[{b+20+4*t}:{b+23+4*t}], v[{a}:{a+3}]"
    ts_mark(k, TS, 0)
    k.e("s_mov_b32 s33, 0\ns_mov_b32 s34, 0\ns_barrier")
    ts_mark(k, TS, 1); ts_cyc(k, TS, 4)
    if TS: k.e("s_waitcnt lgkmcnt(0)")
    for r in reads(0): k.e(r)
    k.label('cloop')
    for kk in range(2):
        rd = reads(kk ^ 1)
        M = [mf(kk, nt, t) for nt in range(5) for t in range(2)]
        if kk == 0:
            k.e(rd[0]); k.e(rd[1]); k.e(rd[2]); k.e(rd[3])
            k.e("s_waitcnt lgkmcnt(4)")
            for i, m in enumerate(M):
                k.e(m)
                if i < 5: k.e(rd[4+i])
                if i == 5:
                    k.e(f"s_add_u32 s34, s34, {SLOT}\ns_cmp_eq_u32 s34, {4*SLOT}\ns_cselect_b32 s34, 0, s34")
                if i == 6: k.e("v_add_u32 v10, s34, v2\nv_add_u32 v11, s34, v3")
                if i == 7: k.e("v_add_u32 v5, s34, v4\ns_add_u32 s33, s33, 1\ns_cmp_lt_u32 s33, 12")
        else:
            k.e("s_waitcnt lgkmcnt(0)\ns_barrier")
            for i, m in enumerate(M):
                k.e(m)
                if i < 9: k.e(rd[i])
    k.e(f"s_cbranch_scc1 {L('cloop')}")
    ts_mark(k, TS, 2); ts_cyc(k, TS, 5)
    k.e(f"""s_waitcnt lgkmcnt(0)
v_lshlrev_b32 v2, 4, v1
s_mul_i32 s28, s18, 5120
v_add_u32 v3, s28, v2
s_xor_b32 s28, s18, 2
s_mul_i32 s28, s28, 5120
v_add_u32 v2, s28, v2""")
    for nt in range(5): k.e(f"ds_read_b64 v[{XR+2*nt}:{XR+2*nt+1}], v122 offset:{nt*32}")
    KP = 64
    k.e(f"s_cmp_eq_u32 s26, 0\ns_cbranch_scc1 {L('k0')}")
    for q in (1, 0):
        if q == 0: k.label('k0')
        for nt in range(5):
            a = ACC + 20*(q ^ 1) + 4*nt
            k.e(f"ds_write_b128 v3, v[{a}:{a+3}] offset:{nt*1024}")
        k.e("s_waitcnt vmcnt(0) lgkmcnt(5)\nv_lshlrev_b32 v22, 16, v22")
        for nt in range(5):
            a = ACC + 20*q + 4*nt; x = XR + 2*nt; p = KP + 4*nt
            k.e(f"""v_lshlrev_b32 v{p}, 16, v{x}
v_and_b32 v{p+1}, 0xffff0000, v{x}
v_lshlrev_b32 v{p+2}, 16, v{x+1}
v_and_b32 v{p+3}, 0xffff0000, v{x+1}
v_pk_add_f32 v[{a}:{a+1}], v[{a}:{a+1}], v[22:23] op_sel_hi:[1,0]
v_pk_add_f32 v[{a+2}:{a+3}], v[{a+2}:{a+3}], v[22:23] op_sel_hi:[1,0]
v_pk_add_f32 v[{p}:{p+1}], v[{p}:{p+1}], v[{a}:{a+1}]
v_pk_add_f32 v[{p+2}:{p+3}], v[{p+2}:{p+3}], v[{a+2}:{a+3}]""")
        if q == 1: k.e(f"s_branch {L('kd')}")
    k.label('kd')
    k.e("s_waitcnt lgkmcnt(0)\ns_barrier")
    for nt in range(5): k.e(f"ds_read_b128 v[{84+4*nt}:{87+4*nt}], v2 offset:{nt*1024}")
    for nt in range(5):
        p = KP + 4*nt; w = 84 + 4*nt; x = XR + 2*nt
        k.e(f"""s_waitcnt lgkmcnt({4-nt})
v_pk_add_f32 v[{p}:{p+1}], v[{p}:{p+1}], v[{w}:{w+1}]
v_pk_add_f32 v[{p+2}:{p+3}], v[{p+2}:{p+3}], v[{w+2}:{w+3}]
v_cvt_pk_bf16_f32 v{x}, v{p}, v{p+1}
v_cvt_pk_bf16_f32 v{x+1}, v{p+2}, v{p+3}""")
    store_tile(k, XR, 9, 23, 36, 7)
    ts_mark(k, TS, 3)
    ts_end(k, TS, 4, 12, 40)
    k.label('end')
    k.e("s_endpgm")
    return k
```

```python
from common import *
from ts import *

def row160_offsets(k, lane, dst, n, pitch, t0=3):
    for u in range(64*n): assert (u*6554) >> 16 == u//10
    for i in range(n):
        k.e(f"""v_add_u32 v{t0}, {64*i}, v{lane}
v_mul_u32_u24 v{t0+1}, 6554, v{t0}
v_lshrrev_b32 v{t0+1}, 16, v{t0+1}
v_mul_u32_u24 v{t0+1}, {pitch-160}, v{t0+1}
v_lshl_add_u32 v{dst+i}, v{t0}, 4, v{t0+1}""")

def store_tile(k, X, vaddr, vtmp, srd, lane_g, soff='0', addr=True):
    if addr: k.e(f"""v_and_b32 v{vtmp}, 1, v{lane_g}
v_mul_u32_u24 v{vtmp}, 24, v{vtmp}
v_add_u32 v{vtmp}, v{vaddr}, v{vtmp}""")
    k.e(f"""s_nop 0
v_permlane16_swap_b32 v{X}, v{X+2}
v_permlane16_swap_b32 v{X+1}, v{X+3}
v_permlane16_swap_b32 v{X+4}, v{X+6}
v_permlane16_swap_b32 v{X+5}, v{X+7}
buffer_store_dwordx2 v[{X+8}:{X+9}], v{vaddr}, s[{srd}:{srd+3}], {soff} offen offset:128
buffer_store_dwordx4 v[{X}:{X+3}], v{vtmp}, s[{srd}:{srd+3}], {soff} offen
buffer_store_dwordx4 v[{X+4}:{X+7}], v{vtmp}, s[{srd}:{srd+3}], {soff} offen offset:64""")

def kernel_C(TS=False):
    XT = 102400
    RED = XT + 12288
    k = K("proj_kernel", 256, 512, RED + 20480, 136)
    L = k.L
    OF = 32; ACC = 72; WF = 92; XR = 12
    ts_begin(k, TS)
    k.e(f"""s_cmp_ge_u32 s2, 256
s_cbranch_scc1 {L('end')}
s_load_dwordx2 s[12:13], s[0:1], {KA['ws']}
s_load_dwordx2 s[4:5], s[0:1], {KA['x']}
v_lshrrev_b32 v2, 6, v0
v_and_b32 v1, 63, v0
v_readfirstlane_b32 s18, v2
; xcd = wg%8 -> row blocks 4*xcd..4*xcd+3 ; idx = wg/8 : col tile = idx%8, rb = idx/8
s_and_b32 s20, s2, 7
s_lshr_b32 s21, s2, 3
s_lshl_b32 s20, s20, 2
s_lshr_b32 s22, s21, 3
s_add_u32 s20, s20, s22
s_lshl_b32 s16, s20, 6
s_and_b32 s21, s21, 7
s_mul_i32 s17, s21, 160
s_and_b32 s25, s18, 3
s_lshr_b32 s26, s18, 2
s_mul_i32 s27, s26, 10
s_add_u32 s27, s27, s25
s_mul_i32 s29, s27, 5120
s_mul_i32 s28, s21, 102400
s_add_u32 s28, s28, s29
s_add_u32 s28, s28, {WS_WO}
s_lshr_b32 s30, s16, 4
s_add_u32 s30, s30, s25
s_mul_i32 s30, s30, 20480
s_mul_i32 s31, s26, 10240
s_add_u32 s30, s30, s31
s_add_u32 s30, s30, {WS_OI}
v_lshlrev_b32 v2, 4, v1
s_mov_b32 m0, s29
s_waitcnt lgkmcnt(0)""")
    k.srd(12, 12, WS_SIZE); k.srd(4, 4, SZ['x'])
    def dma():
        for n in range(4): k.e(f"buffer_load_dwordx4 v2, s[12:15], s28 offen offset:{n*1024} lds")
        k.e(f"""s_add_u32 m0, s29, 4096
s_add_u32 s28, s28, 4096
buffer_load_dwordx4 v2, s[12:15], s28 offen lds
s_add_u32 s28, s28, {4*5120-4096}
s_add_u32 s29, s29, {4*5120}
s_mov_b32 m0, s29""")
    def oload(a, b):
        for j in range(a, b):
            k.e(f"buffer_load_dwordx4 v[{OF+4*j}:{OF+4*j+3}], v2, s[12:15], s30 offen offset:{(j%4)*1024}")
            if j % 4 == 3: k.e("s_add_u32 s30, s30, 4096")
    dma(); oload(0, 4)
    dma(); oload(4, 8)
    k.e(f"""s_cmp_ge_u32 s25, 2
s_cbranch_scc1 {L('xl')}""")
    dma()
    k.e(f"s_branch {L('xd')}")
    k.label('xl')
    row160_offsets(k, 1, 24, 3, 1280)
    k.e(f"""s_lshl_b32 s31, s26, 1
s_add_u32 s31, s31, s25
s_sub_u32 s31, s31, 2
s_lshl_b32 s32, s31, 4
s_add_u32 s32, s32, s16
s_mul_i32 s32, s32, 1280
s_add_u32 s32, s32, s17
s_mul_i32 s31, s31, 3072
s_add_u32 m0, s31, {XT}
s_nop 0
buffer_load_dwordx4 v24, s[4:7], s32 offen lds
s_add_u32 m0, s31, {XT+1024}
s_nop 0
buffer_load_dwordx4 v25, s[4:7], s32 offen lds
s_add_u32 m0, s31, {XT+2048}
s_mov_b32 exec_hi, 0
buffer_load_dwordx4 v26, s[4:7], s32 offen lds
s_mov_b32 exec_hi, -1""")
    k.label('xd')
    oload(8, 10)
    k.e(f"""v_and_b32 v6, 15, v1
v_lshrrev_b32 v7, 4, v1
s_lshl_b32 s31, s25, 4
s_add_u32 s31, s31, s16
v_add_u32 v8, s31, v6
v_mul_u32_u24 v9, 1280, v8
v_lshl_add_u32 v9, v7, 3, v9
s_add_u32 s31, s17, {WS_HB}
v_add_u32 v9, s31, v9
v_lshrrev_b32 v3, 2, v1
v_mul_u32_u24 v3, 160, v3
v_and_b32 v4, 3, v1
v_lshl_add_u32 v3, v4, 3, v3
s_mul_i32 s31, s26, 51200
v_add_u32 v3, s31, v3
s_mul_i32 s31, s25, 5120
v_add_u32 v4, s31, v2
v_add_u32 v4, {RED}, v4
v_mul_u32_u24 v5, 160, v6
v_lshl_add_u32 v5, v7, 3, v5
s_mul_i32 s31, s25, 3072
s_add_u32 s31, s31, {XT}
v_add_u32 v5, s31, v5""")
    def reads(j):
        out = []
        for nt in range(5):
            b = WF + 20*(j & 1) + 4*nt
            out.append(f"ds_read_b64_tr_b16 v[{b}:{b+1}], v3 offset:{j*5120 + nt*32}")
            out.append(f"ds_read_b64_tr_b16 v[{b+2}:{b+3}], v3 offset:{j*5120 + 2560 + nt*32}")
        return out
    phases = [(0, 4, 14), (4, 8, 5), (8, 10, 0)]
    for (a, b, vm) in phases:
        if a == 0: ts_mark(k, TS, 0)
        k.e(f"s_waitcnt vmcnt({vm})\ns_barrier")
        ts_mark(k, TS, 1 + a//4)
        if TS: k.e("s_waitcnt lgkmcnt(0)")
        for r in reads(a): k.e(r)
        for j in range(a, b):
            s = j & 1
            nxt = reads(j+1) if j+1 < b else []
            for nt in range(5):
                w = WF + 20*s + 4*nt
                for r in nxt[2*nt:2*nt+2]: k.e(r)
                k.e(f"s_waitcnt lgkmcnt({10 if nxt else 8-2*nt})")
                c = "0" if j == 0 else f"v[{ACC+4*nt}:{ACC+4*nt+3}]"
                k.e(f"v_mfma_f32_16x16x32_bf16 v[{ACC+4*nt}:{ACC+4*nt+3}], v[{w}:{w+3}], v[{OF+4*j}:{OF+4*j+3}], {c}")
    k.e(f"""s_cmp_eq_u32 s26, 0
s_cbranch_scc1 {L('fin')}
s_nop 1""")
    for nt in range(5): k.e(f"ds_write_b128 v4, v[{ACC+4*nt}:{ACC+4*nt+3}] offset:{nt*1024}")
    k.e("s_waitcnt lgkmcnt(0)\ns_barrier")
    ts_end(k, TS, 2, 12, 40)
    k.e("s_endpgm")
    k.label('fin')
    ts_mark(k, TS, 4)
    if TS: k.e("s_waitcnt lgkmcnt(0)")
    for nt in range(5): k.e(f"ds_read_b64 v[{XR+2*nt}:{XR+2*nt+1}], v5 offset:{nt*32}")
    k.e("v_mov_b32 v10, 0\nv_mov_b32 v11, 0\nv_mov_b32 v5, 0x3f803f80\ns_waitcnt lgkmcnt(0)")
    for nt in range(5):
        a = ACC + 4*nt; x = XR + 2*nt
        k.e(f"""v_lshlrev_b32 v22, 16, v{x}
v_and_b32 v23, 0xffff0000, v{x}
v_lshlrev_b32 v24, 16, v{x+1}
v_and_b32 v25, 0xffff0000, v{x+1}
v_pk_add_f32 v[{a}:{a+1}], v[{a}:{a+1}], v[22:23]
v_pk_add_f32 v[{a+2}:{a+3}], v[{a+2}:{a+3}], v[24:25]""")
    k.e("s_barrier")
    for nt in range(5): k.e(f"ds_read_b128 v[{WF+4*nt}:{WF+4*nt+3}], v4 offset:{nt*1024}")
    for nt in range(5):
        a = ACC + 4*nt; w = WF + 4*nt; x = XR + 2*nt
        k.e(f"""s_waitcnt lgkmcnt({4-nt})
v_pk_add_f32 v[{a}:{a+1}], v[{a}:{a+1}], v[{w}:{w+1}]
v_pk_add_f32 v[{a+2}:{a+3}], v[{a+2}:{a+3}], v[{w+2}:{w+3}]
v_cvt_pk_bf16_f32 v{x}, v{a}, v{a+1}
v_cvt_pk_bf16_f32 v{x+1}, v{a+2}, v{a+3}""")
    for r in range(10):
        k.e(f"v_dot2c_f32_bf16 v10, v{XR+r}, v5\nv_dot2c_f32_bf16 v11, v{XR+r}, v{XR+r}")
    k.e(f"""v_lshlrev_b32 v8, 3, v6
s_lshr_b32 s34, s16, 4
s_add_u32 s34, s34, s25
s_lshl_b32 s34, s34, 10
s_add_u32 s34, s34, {WS_ST}
s_lshl_b32 s31, s21, 7
s_add_u32 s31, s31, s34
v_mov_b32 v22, v10
v_mov_b32 v23, v11
s_nop 1
v_permlane32_swap_b32 v10, v22
v_permlane32_swap_b32 v11, v23
s_nop 1
v_pk_add_f32 v[10:11], v[10:11], v[22:23]
v_mov_b32 v22, v10
v_mov_b32 v23, v11
s_nop 1
v_permlane16_swap_b32 v10, v22
v_permlane16_swap_b32 v11, v23
s_nop 1
v_pk_add_f32 v[10:11], v[10:11], v[22:23]
s_mov_b64 exec, 0xffff
v_min_u32 v11, 0xfffffffe, v11
buffer_store_dwordx2 v[10:11], v8, s[12:15], s31 offen sc0 sc1
s_mov_b64 exec, -1""")
    k.e("v_lshl_add_u32 v8, v7, 8, v8\ns_mov_b32 s33, 0x200000")
    k.label('poll')
    k.e(f"""buffer_load_dwordx2 v[28:29], v8, s[12:15], s34 offen sc1
buffer_load_dwordx2 v[30:31], v8, s[12:15], s34 offen offset:128 sc1
s_sub_u32 s33, s33, 1
s_waitcnt vmcnt(0)
v_max_u32 v22, v29, v31
v_cmp_eq_u32 vcc, -1, v22
s_cmp_eq_u32 s33, 0
s_cbranch_scc1 {L('got')}
s_cbranch_vccnz {L('poll')}""")
    k.label('got')
    k.e(f"""v_pk_add_f32 v[10:11], v[28:29], v[30:31]
s_mov_b32 s20, {f2u(1e-5)}
v_mov_b32 v22, v10
v_mov_b32 v23, v11
s_nop 1
v_permlane32_swap_b32 v10, v22
v_permlane32_swap_b32 v11, v23
s_nop 1
v_pk_add_f32 v[10:11], v[10:11], v[22:23]
v_mov_b32 v22, v10
v_mov_b32 v23, v11
s_nop 1
v_permlane16_swap_b32 v10, v22
v_permlane16_swap_b32 v11, v23
s_nop 1
v_pk_add_f32 v[10:11], v[10:11], v[22:23]
v_mul_f32 v10, {f2u(-1.0/D)}, v10
v_mul_f32 v11, {f2u(1.0/D)}, v11
v_fma_f32 v11, -v10, v10, v11
v_max_f32 v11, 0, v11
v_add_f32 v22, s20, v11
v_rcp_f32 v23, v22
v_rsq_f32 v22, v22
v_fma_f32 v23, v23, v11, s20
v_rsq_f32 v23, v23
s_mov_b32 s31, {WS_HN - WS_HB}
v_mul_f32 v22, v22, v23
v_mul_f32 v23, v22, v10""")
    for nt in range(5):
        a_ = ACC + 4*nt; x = WF + 2*nt
        k.e(f"""v_pk_fma_f32 v[{a_}:{a_+1}], v[{a_}:{a_+1}], v[22:23], v[22:23] op_sel:[0,0,1] op_sel_hi:[1,0,1]
v_pk_fma_f32 v[{a_+2}:{a_+3}], v[{a_+2}:{a_+3}], v[22:23], v[22:23] op_sel:[0,0,1] op_sel_hi:[1,0,1]
v_cvt_pk_bf16_f32 v{x}, v{a_}, v{a_+1}
v_cvt_pk_bf16_f32 v{x+1}, v{a_+2}, v{a_+3}""")
    store_tile(k, WF, 9, 26, 12, 7, soff="s31")
    store_tile(k, XR, 9, 26, 12, 7, addr=False)
    ts_mark(k, TS, 5)
    ts_end(k, TS, 2, 12, 40)
    k.label('end')
    k.e("s_endpgm")
    return k
```

```python
import re
from build import *
base = build()
def with_empty(s, n, where="end"):
    lines = s.split("\n")
    idx = max(i for i, l in enumerate(lines) if l.startswith("; @launch"))
    for _ in range(n): lines.insert(idx+1, "; @launch kernel=empty_kernel grid=(256,1,1) block=(64,1,1) lds=0")
    s = "\n".join(lines)
    k = K("empty_kernel", 256, 64, 0, 8); k.e("s_endpgm")
    s = s.replace('.section .rodata,"a"', k.text() + '.section .rodata,"a"\n' + k.desc())
    return s
open("h_empty5.s", "w").write(with_empty(base, 5))
nopf = "\n".join(l for l in base.split("\n") if not re.search(r"buffer_load_dword v19[78]", l))
open("h_nopf.s", "w").write(nopf)
for kn in ("attn", "mix1", "mix2"):
    l = [x for x in base.split("\n") if f"@launch kernel={kn}" in x][0]
    open(f"h_twice_{kn}.s", "w").write(base.replace(l, l + "\n" + l))
```

```python
import re, sys
from build import *
def mk(wg, sel, **kw):
    s = build(TS=True, **kw)
    k = K("dump_kernel", 1, 64, 0, 16)
    k.e(f"s_cmp_lg_u32 s2, 0\ns_cbranch_scc1 {k.L('end')}\ns_load_dwordx2 s[12:13], s[0:1], {KA['ws']}\ns_load_dwordx2 s[8:9], s[0:1], {KA['dbg']}\nv_mov_b32 v2, 0")
    for l, (ki, wv, wd) in enumerate(sel):
        off = WS_TS + ki*131072 + (wg*16 + wv)*32 + wd*4
        k.e(f"v_mov_b32 v3, {off}\nv_cmp_eq_u32 vcc, {l}, v0\ns_nop 1\nv_cndmask_b32 v2, v2, v3, vcc")
    k.e("s_waitcnt lgkmcnt(0)")
    k.srd(12, 12, WS_SIZE); k.srd(8, 8, 64)
    k.e("buffer_load_dword v4, v2, s[12:15], 0 offen\nv_lshlrev_b32 v5, 2, v0\ns_waitcnt vmcnt(0)\nv_readfirstlane_b32 s20, v4\ns_nop 3\nv_subrev_u32 v4, s20, v4\nbuffer_store_dword v4, v5, s[8:11], 0 offen")
    k.label('end'); k.e("s_endpgm")
    lines = s.split("\n")
    idx = max(i for i, l in enumerate(lines) if l.startswith("; @launch"))
    lines.insert(idx+1, k.launch_line())
    s = "\n".join(lines)
    return s.replace('.section .rodata,"a"', k.text() + '.section .rodata,"a"\n' + k.desc())
if __name__ == "__main__":
    sel = [(0,0,0),(0,0,2),(0,0,3),(0,0,4),(0,0,1),(0,7,3),(0,7,6),(1,0,0),(1,0,3),(1,0,1),(2,0,0),(2,0,1),(3,0,0),(3,0,1),(4,0,0),(4,0,1)]
    open("h_dump.s", "w").write(mk(8, sel))
```

```python
import re
from build import *
base = build()
def with_empty_first(s):
    lines = s.split("\n")
    idx = min(i for i, l in enumerate(lines) if l.startswith("; @launch"))
    lines.insert(idx, "; @launch kernel=empty_kernel grid=(256,1,1) block=(64,1,1) lds=0")
    s = "\n".join(lines)
    k = K("empty_kernel", 256, 64, 0, 8); k.e("s_endpgm")
    return s.replace('.section .rodata,"a"', k.text() + '.section .rodata,"a"\n' + k.desc())
open("h_emptyfirst.s", "w").write(with_empty_first(base))
for kn in ("qkv", "proj"):
    l = [x for x in base.split("\n") if f"@launch kernel={kn}" in x][0]
    open(f"h_twice_{kn}.s", "w").write(base.replace(l, l + "\n" + l))
ls = [x for x in base.split("\n") if "@launch kernel=" in x]
open(f"h_twice_all.s", "w").write(base.replace(ls[-1], ls[-1] + "\n" + "\n".join(ls)))
```

```python
import re, sys
from build import *
def mk(wg, a, b, Kmul=8, **kw):
    s = build(TS=True, **kw)
    k = K("spin_kernel", 1, 64, 0, 16)
    off = lambda t: WS_TS + t[0]*131072 + (wg*16 + t[1])*32 + t[2]*4
    k.e(f"""s_cmp_lg_u32 s2, 0
s_cbranch_scc1 {k.L('end')}
s_load_dwordx2 s[12:13], s[0:1], {KA['ws']}
v_mov_b32 v2, {off(a)}
v_mov_b32 v3, {off(b)}
s_waitcnt lgkmcnt(0)""")
    k.srd(12, 12, WS_SIZE)
    k.e(f"""buffer_load_dword v4, v2, s[12:15], 0 offen
buffer_load_dword v5, v3, s[12:15], 0 offen
s_waitcnt vmcnt(0)
v_sub_u32 v4, v5, v4
v_min_u32 v4, 20000, v4
s_nop 1
v_readfirstlane_b32 s20, v4
s_memrealtime s[22:23]
s_waitcnt lgkmcnt(0)
s_mul_i32 s20, s20, {Kmul}""")
    k.label('sp')
    k.e(f"""s_memrealtime s[24:25]
s_waitcnt lgkmcnt(0)
s_sub_u32 s26, s24, s22
s_cmp_lt_u32 s26, s20
s_cbranch_scc1 {k.L('sp')}""")
    k.label('end'); k.e("s_endpgm")
    lines = s.split("\n")
    idx = max(i for i, l in enumerate(lines) if l.startswith("; @launch"))
    lines.insert(idx+1, k.launch_line())
    s = "\n".join(lines)
    return s.replace('.section .rodata,"a"', k.text() + '.section .rodata,"a"\n' + k.desc())
if __name__ == "__main__":
    T = {"zero": ((0,0,0),(0,0,0)), "AB": ((0,0,0),(1,0,0)), "BC": ((1,0,0),(2,0,0)), "CD": ((2,0,0),(3,0,0)), "DE": ((3,0,0),(4,0,0)), "Eend": ((4,0,0),(4,0,1))}
    for n, (a, b) in T.items(): open(f"h_spin_{n}.s", "w").write(mk(8, a, b))
```

```python
import sys
sys.path.insert(0, "gen")
from common import *
from kA import kernel_A
from kB import kernel_B
from kF import kernel_F
HDR = open("cdna_kernels/" + NAME + ".s.ref").read().split("; Override launch")[0]
def build(TS=False, force_slow=False, F={}, **kw):
    ks = [kernel_A(TS), kernel_B(TS, force_slow, **kw), kernel_F(TS, **F)]
    return assemble_file(ks, HDR)
if __name__ == "__main__":
    open("cur.s", "w").write(build())
    open("ts.s", "w").write(build(TS=True))
    open("slow.s", "w").write(build(force_slow=True))
```

```python
NAME = "sequential_preLN__mha_block__mixer_token_mlp__prompt"
S, D, H, DH, F = 2048, 640, 32, 20, 1536
KA = dict(x=0, wqkv=8, wo=16, bx=24, w1=32, b1=40, w2=48, b2=56, out=64, dbg=72, ws=80)
SZ = dict(x=S*D*2, wqkv=D*3*D*2, wo=D*D*2, w1=S*F*2, b1=F*2, w2=F*S*2, b2=S*2, out=S*D*2, dbg=256)
WS_QP = 0x000000
WS_KP = 0x280000
WS_VP = 0x500000
WS_OI = 0x780000
WS_HN = 0xA00000
WS_UI = 0xC80000
WS_WO = 0xE60000
WS_ST = 0xF40000
WS_PX = 0xF80000
WS_PW = 0xFD0000
WS_FC = 0xFF8000
WS_FD = 0x1000000
WS_FB = 0x1008000
WS_FA = 0x1010000
WS_W1 = 0x1020000
WS_W2 = 0x1620000
WS_TS = 0x1C20000
WS_SIZE = 0x1D20000

def vr(a, n=1):
    return f"v{a}" if n == 1 else f"v[{a}:{a+n-1}]"
def sr(a, n=1):
    return f"s{a}" if n == 1 else f"s[{a}:{a+n-1}]"

class K:
    def __init__(self, name, grid, block, lds, vgpr, sgpr=102):
        self.name, self.grid, self.block, self.lds, self.vgpr, self.sgpr = name, grid, block, lds, vgpr, sgpr
        self.lines = []
        self.uid = 0
    def e(self, s):
        for l in s.strip("\n").split("\n"):
            l = l.strip()
            if not l: continue
            if l.endswith(":") or l.startswith(".") or l.startswith(";"):
                self.lines.append(l)
            else:
                self.lines.append("    " + l)
    def L(self, n): return f"L_{self.name}_{n}"
    def label(self, n): self.lines.append(self.L(n) + ":")
    def srd(self, dst, ptr, nbytes, add=0):
        if add:
            self.e(f"s_add_u32 s{dst}, s{ptr}, {add}\ns_addc_u32 s{dst+1}, s{ptr+1}, 0")
        else:
            if dst != ptr:
                self.e(f"s_mov_b32 s{dst}, s{ptr}\ns_mov_b32 s{dst+1}, s{ptr+1}")
        self.e(f"s_mov_b32 s{dst+2}, {nbytes}\ns_mov_b32 s{dst+3}, 0x00020000")
    def launch_line(self):
        return f"; @launch kernel={self.name} grid=({self.grid},1,1) block=({self.block},1,1) lds={self.lds}"
    def text(self):
        acc = (self.vgpr + 3)//4*4
        return (f".text\n.globl {self.name}\n.p2align 8\n.type {self.name},@function\n{self.name}:\n" + "\n".join(self.lines) + "\n")
    def desc(self):
        acc = (self.vgpr + 3)//4*4
        return f""".p2align 6
.amdhsa_kernel {self.name}
  .amdhsa_next_free_vgpr {self.vgpr}
  .amdhsa_next_free_sgpr {self.sgpr}
  .amdhsa_accum_offset {acc}
  .amdhsa_group_segment_fixed_size 0
  .amdhsa_kernarg_size 88
  .amdhsa_user_sgpr_count 2
  .amdhsa_user_sgpr_kernarg_segment_ptr 1
  .amdhsa_system_sgpr_workgroup_id_x 1
.end_amdhsa_kernel
"""

def f2u(x):
    import struct
    return "0x%08x" % struct.unpack("<I", struct.pack("<f", x))[0]

def assemble_file(kernels, header_comment=""):
    out = []
    out.append(header_comment.rstrip("\n")) if header_comment else None
    for k in kernels: out.append(k.launch_line())
    out.append('.amdgcn_target "amdgcn-amd-amdhsa--gfx950"')
    seen = []
    for k in kernels:
        if k not in seen:
            out.append(k.text()); seen.append(k)
    out.append('.section .rodata,"a"')
    for k in seen: out.append(k.desc())
    return "\n".join(out)

def stamp(k, idx, sreg):
    k.e(f"s_memrealtime s[{sreg}:{sreg+1}]")

def unit_src_voff(k, dst, lane, pitch, t0):
    k.e(f"""v_bfe_u32 v{t0}, v{lane}, 3, 2
v_bfe_u32 v{t0+1}, v{lane}, 5, 1
v_lshl_add_u32 v{t0}, v{t0+1}, 4, v{t0}
v_mul_u32_u24 v{dst}, {pitch}, v{t0}
v_bfe_u32 v{t0}, v{lane}, 4, 1
v_lshlrev_b32 v{t0}, 2, v{t0}
v_and_b32 v{t0+1}, 7, v{lane}
v_xor_b32 v{t0}, v{t0}, v{t0+1}
v_lshl_add_u32 v{dst}, v{t0}, 4, v{dst}""")

def unit_tr_addr(k, dst, lane, t0):
    k.e(f"""v_bfe_u32 v{t0}, v{lane}, 2, 2
v_lshlrev_b32 v{dst}, 7, v{t0}
v_lshrrev_b32 v{t0+1}, 4, v{lane}
v_lshlrev_b32 v{t0+1}, 1, v{t0+1}
v_bfe_u32 v{t0}, v{lane}, 1, 1
v_add_u32 v{t0+1}, v{t0+1}, v{t0}
v_bfe_u32 v{t0}, v{lane}, 3, 1
v_lshlrev_b32 v{t0}, 2, v{t0}
v_xor_b32 v{t0+1}, v{t0+1}, v{t0}
v_lshl_add_u32 v{dst}, v{t0+1}, 4, v{dst}
v_and_b32 v{t0}, 1, v{lane}
v_lshl_add_u32 v{dst}, v{t0}, 3, v{dst}""")
```

```python
from common import *
from ts import *
import math

def kernel_A(TS=False):
    k = K("qkv_kernel", 256, 768, 131072 + 4096, 168)
    STAT = 131072
    L = k.L
    mk = lambda i: f"s_memrealtime s[{84+2*i}:{85+2*i}]" if TS else ""
    ts_begin(k, TS)
    k.e(f"""s_cmp_ge_u32 s2, 256
s_cbranch_scc1 {L('end')}
s_load_dwordx4 s[4:7], s[0:1], {KA['x']}
s_load_dwordx2 s[12:13], s[0:1], {KA['ws']}
s_load_dwordx2 s[40:41], s[0:1], {KA['wo']}
s_load_dwordx2 s[44:45], s[0:1], {KA['dbg']}
v_lshrrev_b32 v2, 6, v0
v_and_b32 v1, 63, v0
v_readfirstlane_b32 s18, v2
s_and_b32 s20, s2, 7
s_lshr_b32 s21, s2, 3
s_lshr_b32 s22, s20, 1
s_lshl_b32 s22, s22, 2
s_and_b32 s23, s21, 3
s_add_u32 s22, s22, s23
s_lshl_b32 s16, s22, 7
s_lshr_b32 s23, s21, 2
s_and_b32 s24, s20, 1
s_lshl_b32 s24, s24, 3
s_add_u32 s19, s23, s24
s_lshl_b32 s17, s19, 7
; first K chunk c0 = (rt + ct) % 10
s_add_u32 s35, s22, s19
s_mul_i32 s36, s35, 26
s_lshr_b32 s36, s36, 8
s_mul_i32 s36, s36, 10
s_sub_u32 s35, s35, s36
s_cmp_eq_u32 s19, 15
s_cbranch_scc1 {L('spare')}
s_cmp_lt_u32 s18, 8
s_cbranch_scc1 {L('notloader')}""")
    k.e(f"""s_sub_u32 s25, s18, 8
; vX = (row0 + 8j + l/8)*1280 + ((l%8) ^ ((4j + l/16)&7))*16
v_lshrrev_b32 v2, 3, v1
s_lshl_b32 s26, s25, 3
s_add_u32 s26, s26, s16
v_add_u32 v2, s26, v2
v_mul_u32_u24 v2, 1280, v2
v_lshrrev_b32 v4, 4, v1
s_lshl_b32 s26, s25, 2
v_add_u32 v5, s26, v4
v_and_b32 v6, 7, v5
v_and_b32 v7, 7, v1
v_xor_b32 v6, v6, v7
v_lshl_add_u32 v2, v6, 4, v2
; vW = (4j + l/16)*3840 + col0*2 + ((l%16) ^ ((l/16)<<2))*16
v_mul_u32_u24 v3, 3840, v5
v_and_b32 v6, 15, v1
v_lshlrev_b32 v7, 2, v4
v_xor_b32 v6, v6, v7
v_lshl_add_u32 v3, v6, 4, v3
s_lshl_b32 s26, s17, 1
v_add_u32 v3, s26, v3
s_lshl_b32 s30, s25, 10
s_lshl_b32 s28, s35, 7
s_mul_i32 s29, s35, {64*3840}
s_mov_b32 s33, 0
s_waitcnt lgkmcnt(0)
s_mov_b32 s8, s6
s_mov_b32 s9, s7""")
    k.srd(4, 4, SZ['x']); k.srd(8, 8, SZ['wqkv'])
    if TS: k.srd(12, 12, WS_SIZE)
    k.label('lloop')
    for i in range(4):
        k.e(f"""s_add_u32 m0, s30, {i*4096}
s_add_u32 s32, s28, {i*40960}
buffer_load_dwordx4 v2, s[4:7], s32 offen lds
s_add_u32 m0, s30, {16384 + i*4096}
s_add_u32 s32, s29, {i*61440}
buffer_load_dwordx4 v3, s[8:11], s32 offen lds""")
    k.e(f"""s_add_u32 s28, s28, 128
s_add_u32 s29, s29, {64*3840}
s_cmp_eq_u32 s28, 1280
s_cselect_b32 s28, 0, s28
s_cselect_b32 s29, 0, s29
s_add_u32 s30, s30, 32768
s_and_b32 s30, s30, 0x1ffff
s_add_u32 s33, s33, 1
s_cmp_lt_u32 s33, 3
s_cbranch_scc1 {L('lloop')}
s_waitcnt vmcnt(16)
s_barrier
s_cmp_lt_u32 s33, 10
s_cbranch_scc1 {L('lloop')}
s_waitcnt vmcnt(8)
s_barrier
s_waitcnt vmcnt(0)
s_barrier
s_barrier""")
    ts_end(k, TS, 0, 12, 40)
    k.e("s_endpgm")
    k.label('spare')
    k.e(f"s_cmp_ge_u32 s18, 10\ns_cbranch_scc1 {L('end')}")
    unit_src_voff(k, 2, 1, 1280, 4)
    unit_tr_addr(k, 3, 1, 4)
    for n in range(40): assert (n*52) >> 8 == n//5
    k.e(f"""v_lshrrev_b32 v4, 4, v1
s_lshl_b32 s20, s18, 2
v_add_u32 v4, s20, v4
v_mul_u32_u24 v5, 52, v4
v_lshrrev_b32 v5, 8, v5
s_mov_b32 s21, {102400 - 5120}
v_lshlrev_b32 v4, 10, v4
v_mad_u32_u24 v4, v5, s21, v4
v_and_b32 v5, 15, v1
v_lshl_add_u32 v4, v5, 4, v4
s_mul_i32 s23, s18, 5120
v_add_u32 v3, s23, v3
s_mul_i32 s24, s22, 5
s_lshl_b32 s25, s18, 7
s_waitcnt lgkmcnt(0)""")
    k.srd(12, 12, WS_SIZE); k.srd(40, 40, SZ['wo'])
    for m in range(5):
        k.e(f"""s_add_u32 s26, s24, {m}
s_lshr_b32 s27, s26, 2
s_and_b32 s26, s26, 3
s_mul_i32 s28, s27, {32*1280}
s_mul_i32 s29, s26, {4*1280}
s_add_u32 s28, s28, s29
s_add_u32 s28, s28, s25
s_add_u32 m0, s23, {m*1024}
s_mul_i32 s27, s27, 5120
buffer_load_dwordx4 v2, s[40:43], s28 offen lds
s_lshl_b32 s26, s26, 8
s_add_u32 s27, s27, s26
s_add_u32 s{30+m}, s27, {WS_WO}""")
    k.e("s_waitcnt vmcnt(0)")
    for m in range(5):
        k.e(f"ds_read_b64_tr_b16 v[{16+4*m}:{17+4*m}], v3 offset:{m*1024}\nds_read_b64_tr_b16 v[{18+4*m}:{19+4*m}], v3 offset:{m*1024+512}")
    k.e("s_waitcnt lgkmcnt(0)")
    for m in range(5):
        k.e(f"buffer_store_dwordx4 v[{16+4*m}:{19+4*m}], v4, s[12:15], s{30+m} offen")
    k.e("s_endpgm")
    k.label('notloader')
    def addr_regs(xrow_s, wblk_s):
        k.e(f"""v_add_u32 v4, {xrow_s}, v10
v_lshlrev_b32 v4, 7, v4
v_lshrrev_b32 v5, 1, v10
v_and_b32 v5, 7, v5
v_xor_b32 v5, v5, v11
v_lshl_add_u32 v12, v5, 4, v4
v_xor_b32 v13, 32, v12
v_xor_b32 v14, 64, v12
v_xor_b32 v15, 96, v12
v_bfe_u32 v4, v1, 2, 2
v_lshl_add_u32 v5, v11, 3, v4
v_lshlrev_b32 v5, 8, v5
v_bfe_u32 v6, v1, 4, 1
v_lshlrev_b32 v6, 1, v6
v_bfe_u32 v7, v1, 1, 1
v_add_u32 v6, v6, v7
v_add_u32 v6, {wblk_s}, v6
v_lshlrev_b32 v4, 2, v4
v_xor_b32 v6, v6, v4
v_lshl_add_u32 v5, v6, 4, v5
v_and_b32 v6, 1, v1
v_lshl_add_u32 v5, v6, 3, v5
v_add_u32 v16, 16384, v5""")
    k.e(f"""v_and_b32 v10, 31, v1
v_lshrrev_b32 v11, 5, v1
s_waitcnt lgkmcnt(0)""")
    k.srd(12, 12, WS_SIZE)
    k.e(f"""s_cmp_lt_u32 s18, 4
s_cbranch_scc1 {L('compute')}""")
    k.e("s_sub_u32 s25, s18, 4\ns_lshl_b32 s26, s25, 5\ns_lshl_b32 s27, s25, 2")
    addr_regs("s26", "s27")
    k.e(f"""v_mov_b32 v24, 0x3f803f80
v_mov_b32 v26, 0
v_mov_b32 v27, 0
v_mov_b32 v28, 0
v_mov_b32 v29, 0
v_mov_b32 v30, 0
v_mov_b32 v31, 0
s_mov_b32 s33, 0
s_mov_b32 s34, 0""")
    for v in range(31): assert (v*26) >> 8 == v//10
    k.srd(44, 44, 256)
    k.e(f"""v_mov_b32 v22, 0
s_or_b32 s36, s2, s25
s_cmp_lg_u32 s36, 0
s_cbranch_scc1 {L('notag')}
s_memrealtime s[36:37]
s_waitcnt lgkmcnt(0)
s_or_b32 s36, s36, 1
v_mov_b32 v23, s36
s_mov_b64 exec, 1
buffer_store_dword v23, v22, s[44:47], 0 offen sc0 sc1
s_mov_b64 exec, -1""")
    k.label('notag')
    k.e(f"""v_add_u32 v8, s26, v10
v_lshlrev_b32 v18, 4, v8
v_lshlrev_b32 v19, 3, v8
s_mul_i32 s28, s22, 20480
s_add_u32 s28, s28, {WS_PX}
s_mul_i32 s29, s19, 10240
s_add_u32 s29, s29, {WS_PW}
s_lshl_b32 s30, s35, 11
s_add_u32 s30, s30, s28
s_lshl_b32 s31, s35, 10
s_add_u32 s31, s31, s29
s_mov_b32 s33, 0x200000
s_barrier
buffer_load_dword v23, v22, s[44:47], 0 offen sc1""")
    for ks in range(4):
        k.e(f"ds_read_b128 v[{32+4*ks}:{35+4*ks}], v{12+ks}")
    for t in range(8):
        k.e(f"ds_read_b64_tr_b16 v[{48+2*t}:{49+2*t}], v16 offset:{(16*(t//2)+4*(t%2))*256}")
    for ks in range(4):
        k.e(f"s_waitcnt lgkmcnt({11-ks})")
        for d in range(4):
            r = 32+4*ks+d
            k.e(f"v_dot2c_f32_bf16 v{26+2*(d&1)}, v{r}, v24\nv_dot2c_f32_bf16 v{27+2*(d&1)}, v{r}, v{r}")
    k.e("s_waitcnt lgkmcnt(0)\ns_barrier")
    for d in range(16):
        k.e(f"v_dot2c_f32_bf16 v{30+(d&1)}, v{48+d}, v24")
    def halves():
        k.e("""v_mov_b32 v28, v26
v_mov_b32 v29, v27
v_mov_b32 v31, v30
s_nop 1
v_permlane32_swap_b32 v26, v28
v_permlane32_swap_b32 v27, v29
v_permlane32_swap_b32 v30, v31
s_nop 1
v_pk_add_f32 v[26:27], v[26:27], v[28:29]
v_add_f32 v30, v30, v31""")
    k.e("""v_pk_add_f32 v[26:27], v[26:27], v[28:29]
s_nop 2
v_add_f32 v30, v30, v31""")
    halves()
    k.e(f"{mk(0)}\ns_barrier")
    k.label('tpoll')
    k.e(f"""s_waitcnt vmcnt(0)
v_cmp_eq_u32 vcc, 0, v23
s_sub_u32 s33, s33, 1
s_cbranch_vccz {L('tgot')}
s_cmp_eq_u32 s33, 0
s_cbranch_scc1 {L('tgot')}
buffer_load_dword v23, v22, s[44:47], 0 offen sc1
s_branch {L('tpoll')}""")
    k.label('tgot')
    k.e(f"""{mk(1)}
v_mov_b32 v28, v23
v_mov_b32 v29, v23
v_mov_b32 v31, v23
s_mov_b32 exec_hi, 0
buffer_store_dwordx4 v[26:29], v18, s[12:15], s30 offen sc0 sc1
buffer_store_dwordx2 v[30:31], v19, s[12:15], s31 offen sc0 sc1
s_mov_b32 exec_hi, -1
v_mul_u32_u24 v21, 10240, v11
v_add_u32 v18, v18, v21
v_lshrrev_b32 v21, 1, v21
v_add_u32 v19, v19, v21
s_add_u32 s30, s28, 4096
s_add_u32 s31, s28, 8192
s_add_u32 s32, s29, 4096
s_barrier
s_barrier
s_barrier
s_barrier
{mk(2)}""")
    def gather():
        for n in range(5):
            k.e(f"buffer_load_dwordx4 v[{32+4*n}:{35+4*n}], v18, s[12:15], s{(28,28,30,30,31)[n]} offen offset:{(n%2)*2048} sc1")
        for n in range(5):
            k.e(f"buffer_load_dwordx2 v[{52+2*n}:{53+2*n}], v19, s[12:15], s{(29,29,29,29,32)[n]} offen offset:{(n%4)*1024} sc1")
    gather()
    k.e(f"s_barrier\ns_barrier\n{mk(3)}")
    k.label('poll')
    k.e("s_waitcnt vmcnt(0)\nv_xor_b32 v20, v23, v34")
    for r in (38, 42, 46, 50, 53, 55, 57, 59, 61):
        k.e(f"v_xor_b32 v21, v23, v{r}\nv_or_b32 v20, v20, v21")
    k.e(f"""v_cmp_ne_u32 vcc, 0, v20
s_sub_u32 s33, s33, 1
s_cbranch_vccz {L('got')}
s_cmp_lt_i32 s33, 1
s_cbranch_scc1 {L('got')}""")
    gather()
    k.e(f"s_branch {L('poll')}")
    k.label('got')
    csc = (DH ** -0.5) * math.log2(math.e)
    k.e(f"""{mk(4)}
s_barrier
v_pk_add_f32 v[32:33], v[32:33], v[36:37]
v_pk_add_f32 v[40:41], v[40:41], v[44:45]
v_add_f32 v52, v52, v54
v_add_f32 v56, v56, v58
v_pk_add_f32 v[32:33], v[32:33], v[48:49]
v_add_f32 v52, v52, v60
v_pk_add_f32 v[26:27], v[32:33], v[40:41]
v_add_f32 v30, v52, v56""")
    halves()
    k.e(f"""v_mul_f32 v26, {f2u(-1.0/D)}, v26
v_mul_f32 v28, {f2u(1.0/D)}, v27
v_fma_f32 v28, -v26, v26, v28
v_max_f32 v28, 0, v28
v_add_f32 v28, {f2u(1e-5)}, v28
v_rsq_f32 v27, v28
s_cmp_lt_u32 s19, 5
s_cselect_b32 s27, {f2u(csc)}, 1.0
v_mul_f32 v27, s27, v27
v_lshlrev_b32 v5, 2, v8
v_add_u32 v5, {STAT}, v5
v_lshlrev_b32 v6, 3, v8
v_add_u32 v6, {STAT}, v6
ds_write_b32 v5, v27
ds_write_b32 v5, v26 offset:512
ds_write_b32 v5, v30 offset:1024
ds_write_b64 v6, v[26:27] offset:2048
s_waitcnt lgkmcnt(0)
s_barrier""")
    ts_end(k, TS, 0, 12, 40)
    k.e("s_endpgm")
    k.label('compute')
    k.e("s_setprio 2\ns_lshr_b32 s25, s18, 1\ns_and_b32 s26, s18, 1\ns_lshl_b32 s27, s25, 6\ns_lshl_b32 s28, s26, 3")
    addr_regs("s27", "s28")
    k.e("v_xor_b32 v17, 64, v16")
    ACC = 96; FR = 32
    for r in range(64): k.e(f"v_mov_b32 v{ACC+r}, 0")
    def reads(ks):
        b = FR + 16*ks
        return [f"ds_read_b128 v[{b}:{b+3}], v{18+ks}",
                f"ds_read_b64_tr_b16 v[{b+8}:{b+9}], v22 offset:{16*ks*256}",
                f"ds_read_b64_tr_b16 v[{b+10}:{b+11}], v22 offset:{(16*ks+4)*256}",
                f"ds_read_b128 v[{b+4}:{b+7}], v{18+ks} offset:4096",
                f"ds_read_b64_tr_b16 v[{b+12}:{b+13}], v23 offset:{16*ks*256}",
                f"ds_read_b64_tr_b16 v[{b+14}:{b+15}], v23 offset:{(16*ks+4)*256}"]
    def mfmas(ks, vmode):
        b = FR + 16*ks
        out = []
        for (mb, nb) in ((0,0),(1,0),(0,1),(1,1)):
            a = ACC + (mb*2+nb)*16
            X = f"v[{b+4*mb}:{b+4*mb+3}]"; W = f"v[{b+8+4*nb}:{b+8+4*nb+3}]"
            A, B = (X, W) if vmode else (W, X)
            out.append(f"v_mfma_f32_32x32x16_bf16 v[{a}:{a+15}], {A}, {B}, v[{a}:{a+15}]")
        return out
    k.e("s_mov_b32 s33, 0\ns_mov_b32 s34, 0")
    for t in range(6): k.e(f"v_mov_b32 v{18+t}, v{12+t}")
    ts_mark(k, TS, 0)
    k.e("s_barrier")
    ts_mark(k, TS, 1); ts_cyc(k, TS, 4)
    if TS: k.e("s_waitcnt lgkmcnt(0)")
    for r in reads(0) + reads(1): k.e(r)
    k.e(f"""s_cmp_ge_u32 s19, 10
s_cbranch_scc1 {L('cloopV')}""")
    for vmode in (0, 1):
        k.label('cloopV' if vmode else 'cloopQ')
        for ks in range(4):
            rd = reads((ks+2) % 4); mf = mfmas(ks, vmode)
            if ks == 2:
                k.e("s_waitcnt lgkmcnt(6)"); k.e(mf[0])
                k.e("s_add_u32 s34, s34, 32768\ns_and_b32 s34, s34, 0x1ffff")
                for t in range(6): k.e(f"v_add_u32 v{18+t}, s34, v{12+t}")
                k.e(mf[1]); k.e("s_waitcnt lgkmcnt(0)\ns_barrier")
                k.e(rd[0]); k.e(rd[1]); k.e(mf[2]); k.e(rd[2]); k.e(rd[3]); k.e(mf[3]); k.e(rd[4]); k.e(rd[5])
            else:
                if ks != 3: k.e("s_waitcnt lgkmcnt(6)")
                k.e(mf[0]); k.e(rd[0]); k.e(rd[1])
                k.e(mf[1]); k.e(rd[2]); k.e(rd[3])
                k.e(mf[2]); k.e(rd[4]); k.e(rd[5])
                if ks == 3: k.e("s_add_u32 s33, s33, 1\ns_cmp_lt_u32 s33, 10")
                k.e(mf[3])
        k.e(f"""s_cbranch_scc1 {L('cloopV' if vmode else 'cloopQ')}
s_waitcnt lgkmcnt(0)""")
        ts_mark(k, TS, 2); ts_cyc(k, TS, 5)
        if TS: k.e("s_waitcnt lgkmcnt(0)")
        E0 = 32
        if not vmode:
            k.e(f"""s_lshl_b32 s27, s26, 8
v_lshlrev_b32 v4, 4, v11
v_add_u32 v4, s27, v4
v_add_u32 v4, {STAT+1024}, v4
s_lshl_b32 s27, s25, 6
v_add_u32 v6, s27, v10
v_lshlrev_b32 v5, 3, v6
v_add_u32 v5, {STAT+2048}, v5
ds_read_b64 v[{E0+32}:{E0+33}], v5
ds_read_b64 v[{E0+34}:{E0+35}], v5 offset:256""")
            for nb in range(2):
                for g in range(4):
                    r = E0 + nb*16 + g*4
                    k.e(f"ds_read_b128 v[{r}:{r+3}], v4 offset:{nb*128 + g*32}")
            k.e(f"""v_add_u32 v6, s16, v6
v_lshlrev_b32 v6, 4, v6
v_lshl_add_u32 v6, v11, 15, v6
s_lshl_b32 s27, s19, 4
s_lshl_b32 s28, s26, 3
s_add_u32 s27, s27, s28
s_lshl_b32 s27, s27, 15""")
            assert WS_KP == WS_QP + 80*32768 and WS_QP == 0
            n = 0
            for nb in range(2):
                for gp in range(2):
                    k.e(f"s_add_u32 s28, s27, {(nb*4+gp*2)*32768}")
                    k.e(f"s_waitcnt lgkmcnt({6 - nb*4 - gp*2})")
                    for mb in range(2):
                        a = ACC + (mb*2+nb)*16 + gp*8
                        c = E0 + nb*16 + gp*8
                        m = E0 + 32 + 2*mb
                        o = E0 + 36 + 4*(n % 3); n += 1
                        for p in range(0, 8, 2):
                            k.e(f"v_pk_fma_f32 v[{a+p}:{a+p+1}], v[{c+p}:{c+p+1}], v[{m}:{m+1}], v[{a+p}:{a+p+1}] op_sel_hi:[1,0,1]")
                        for p in range(0, 8, 2):
                            k.e(f"v_pk_mul_f32 v[{a+p}:{a+p+1}], v[{a+p}:{a+p+1}], v[{m}:{m+1}] op_sel:[0,1] op_sel_hi:[1,1]")
                        for p in (0, 4, 2, 6):
                            k.e(f"v_cvt_pk_bf16_f32 v{o+p//2}, v{a+p}, v{a+p+1}")
                        k.e(f"s_nop 0\nv_permlane32_swap_b32 v{o}, v{o+2}\nv_permlane32_swap_b32 v{o+1}, v{o+3}")
                        k.e(f"buffer_store_dwordx4 v[{o}:{o+3}], v6, s[12:15], s28 offen offset:{mb*512}")
            ts_mark(k, TS, 3)
            ts_end(k, TS, 0, 12, 40)
            k.e("s_endpgm")
        else:
            for nv in range(640): assert (nv*3277) >> 16 == nv//20
            k.e(f"""s_lshl_b32 s27, s25, 8
v_lshlrev_b32 v4, 4, v11
v_add_u32 v4, s27, v4
v_add_u32 v4, {STAT}, v4
s_lshl_b32 s27, s26, 6
v_add_u32 v6, s27, v10
v_lshlrev_b32 v5, 2, v6
v_add_u32 v5, {STAT+1024}, v5
ds_read_b32 v24, v5
ds_read_b32 v26, v5 offset:128""")
            for mb in range(2):
                for g in range(4):
                    b = E0 + mb*32
                    k.e(f"ds_read_b128 v[{b+g*4}:{b+g*4+3}], v4 offset:{mb*128 + g*32}")
                    k.e(f"ds_read_b128 v[{b+16+g*4}:{b+16+g*4+3}], v4 offset:{512 + mb*128 + g*32}")
                if mb == 0:
                    k.e(f"""s_sub_u32 s27, s17, 1280
v_add_u32 v6, s27, v6
v_mul_u32_u24 v7, 320, v11
v_add_u32 v7, {WS_VP}, v7
s_mov_b32 s28, 81920""")
                    for nb in range(2):
                        if nb: k.e("v_add_u32 v6, 32, v6")
                        k.e(f"""v_mul_u32_u24 v8, 3277, v6
v_lshrrev_b32 v8, 16, v8
v_mul_u32_u24 v9, 20, v8
v_sub_u32 v9, v6, v9
v_lshl_add_u32 v9, v9, 4, v7
v_mad_u32_u24 v{18+nb}, v8, s28, v9""")
                    k.e(f"""s_lshr_b32 s27, s16, 5
s_lshl_b32 s28, s25, 1
s_add_u32 s27, s27, s28
s_mul_i32 s27, s27, 1280
s_waitcnt lgkmcnt(4)""")
            n = 0
            for mb in range(2):
                k.e(f"s_waitcnt lgkmcnt({8 - 8*mb})")
                b = E0 + mb*32
                for nb in range(2):
                    cs = 24 + 2*nb
                    for aa in range(2):
                        a = ACC + (mb*2+nb)*16 + aa*8
                        o = 160 + 4*(n % 2); n += 1
                        for p in range(0, 8, 2):
                            k.e(f"v_pk_fma_f32 v[{a+p}:{a+p+1}], v[{b+16+aa*8+p}:{b+16+aa*8+p+1}], v[{cs}:{cs+1}], v[{a+p}:{a+p+1}] op_sel_hi:[1,0,1]")
                        for p in range(0, 8, 2):
                            k.e(f"v_pk_mul_f32 v[{a+p}:{a+p+1}], v[{a+p}:{a+p+1}], v[{b+aa*8+p}:{b+aa*8+p+1}]")
                        for p in range(0, 8, 2):
                            k.e(f"v_cvt_pk_bf16_f32 v{o+p//2}, v{a+p}, v{a+p+1}")
                        k.e(f"buffer_store_dwordx4 v[{o}:{o+3}], v{18+nb}, s[12:15], s27 offen offset:{mb*1280 + aa*640}")
            ts_mark(k, TS, 3)
            ts_end(k, TS, 0, 12, 40)
            k.e("s_endpgm")
    k.label('end')
    k.e("s_endpgm")
    return k
```

```python
from common import *
from ts import ts_begin, ts_end, ts_mark, ts_cyc

def kernel_B(TS=False, force_slow=False, prio=True):
    GCH = 12288
    SLOT = 2*GCH
    NSLOT = 4
    ONES = NSLOT*SLOT
    FLAG = ONES + 5120
    MRG = FLAG + 64
    UBUF = (MRG + 24576 + 2047)//2048*2048
    k = K("attn_kernel", 256, 512, UBUF + 16384, 212)
    uS1, uS2, uTb, uD1, uD2, uS, uT, uD, uR = 198, 199, 200, 201, 202, 203, 204, 205, 208
    L = k.L
    Q = 12
    KF = [22, 28]
    VF = [36, 44]
    P = 52
    O = 68
    SB = [100, 132]
    CM = 164
    vK1, vK2, vV = 2, 3, 4
    bK1, bK2, bV, mV = 8, 9, 10, 11
    vD = 5
    ts_begin(k, TS)
    k.e(f"""s_cmp_ge_u32 s2, 256
s_cbranch_scc1 {L('end')}
s_load_dwordx2 s[12:13], s[0:1], {KA['ws']}
s_load_dwordx2 s[60:61], s[0:1], {KA['w1']}
s_load_dwordx2 s[64:65], s[0:1], {KA['w2']}
v_lshrrev_b32 v2, 6, v0
v_and_b32 v1, 63, v0
v_readfirstlane_b32 s18, v2
s_and_b32 s20, s2, 7
s_lshr_b32 s21, s2, 3
s_lshl_b32 s16, s20, 2
s_lshr_b32 s22, s21, 3
s_add_u32 s16, s16, s22
s_and_b32 s17, s21, 7
s_lshl_b32 s17, s17, 8
s_lshr_b32 s22, s16, 1
s_and_b32 s23, s16, 1
s_mul_i32 s24, s22, 5
s_add_u32 s25, s24, 2
s_mul_i32 s26, s23, 3
s_add_u32 s24, s24, s26
s_lshl_b32 s24, s24, 15
s_lshl_b32 s25, s25, 15
s_lshl_b32 s23, s23, 3
s_and_b32 s19, s18, 3
s_lshr_b32 s20, s18, 2
v_and_b32 v6, 31, v1
v_lshrrev_b32 v7, 5, v1
v_lshlrev_b32 v{vD}, 4, v1
; DMA sources: n = 3j+i ; n<6: plane (n/2), half n%2 ; n>=6: V piece n-6
s_lshl_b32 s21, s20, 14
s_add_u32 s21, s21, {WS_KP}
s_add_u32 s26, s24, s21
s_add_u32 s27, s25, s21
s_mul_i32 s28, s16, 81920
s_mul_i32 s29, s20, 40960
s_add_u32 s28, s28, s29
s_add_u32 s28, s28, {WS_VP}
s_mov_b32 s46, s26
s_add_u32 s47, s26, 1024
s_add_u32 s48, s26, 32768
s_cmp_eq_u32 s19, 1
s_cbranch_scc0 {L('nj1')}
s_add_u32 s46, s26, {32768+1024}
s_mov_b32 s47, s27
s_add_u32 s48, s27, 1024""")
    k.label('nj1')
    k.e(f"""s_mov_b32 s49, 2048
s_cmp_ge_u32 s19, 2
s_cbranch_scc0 {L('nj2')}
s_sub_u32 s29, s19, 2
s_mul_i32 s29, s29, 3072
s_add_u32 s46, s28, s29
s_add_u32 s47, s46, 1024
s_add_u32 s48, s46, 2048
s_mov_b32 s49, 5120""")
    k.label('nj2')
    k.e(f"""s_mul_i32 s50, s20, {GCH}
s_mul_i32 s29, s19, 3072
s_add_u32 s50, s50, s29
s_lshl_b32 s29, s19, 6
s_add_u32 s17, s17, s29
s_lshl_b32 s29, s17, 4
s_add_u32 s30, s24, s29
s_add_u32 s31, s25, s29
s_add_u32 s31, s31, s23
v_lshlrev_b32 v{bK2}, 4, v6
v_lshl_add_u32 v34, v7, 15, v{bK2}
s_waitcnt lgkmcnt(0)""")
    k.srd(12, 12, WS_SIZE)
    assert WS_QP == 0
    def issue():
        out = []
        for i in range(3):
            out += [f"s_add_u32 m0, s51, {i*1024}", f"s_add_u32 s{52+i}, s{52+i}, s49",
                    f"buffer_load_dwordx4 v{vD}, s[12:15], s{52+i} offen lds"]
        out += [f"s_add_u32 s51, s51, {SLOT}", f"s_cmp_ge_u32 s51, {NSLOT*SLOT}", f"s_cselect_b32 s51, s50, s51"]
        return out
    k.e("s_mov_b32 s37, 0")
    k.label('main')
    k.e(f"""s_mov_b32 s51, s50
s_sub_u32 s52, s46, s49
s_sub_u32 s53, s47, s49
s_sub_u32 s54, s48, s49""")
    for s_ in issue(): k.e(s_)
    k.e(f"""buffer_load_dwordx4 v[{Q}:{Q+3}], v34, s[12:15], s30 offen
buffer_load_dwordx4 v[{Q+4}:{Q+7}], v34, s[12:15], s30 offen offset:512
buffer_load_dwordx2 v[{Q+8}:{Q+9}], v{vD}, s[12:15], s31 offen""")
    k.e(f"""s_cmp_lg_u32 s37, 0
s_cbranch_scc1 {L('inited')}""")
    unit_src_voff(k, uS1, 1, 3072, 196)
    unit_src_voff(k, uS2, 1, 4096, 196)
    unit_tr_addr(k, uTb, 1, 196)
    k.e(f"""s_lshl_b32 s75, s18, 11
s_add_u32 s75, s75, {UBUF}
v_add_u32 v{uTb}, s75, v{uTb}
v_lshrrev_b32 v196, 4, v1
v_and_b32 v197, 15, v1
v_lshlrev_b32 v197, 4, v197
v_lshl_add_u32 v{uD1}, v196, 16, v197
v_mul_u32_u24 v196, 49152, v196
v_add_u32 v{uD2}, v196, v197""")
    for r in range(32): k.e(f"v_mov_b32 v{CM+r}, 0")
    k.e(f"""s_mul_i32 s29, s20, {GCH}
v_lshl_add_u32 v{bK1}, v7, 11, v{bK2}
v_add_u32 v{bK1}, s29, v{bK1}
v_mul_u32_u24 v{bV}, 320, v7
v_add_u32 v{bV}, v{bV}, v{bK2}
s_add_u32 s21, s29, 6144
v_add_u32 v{bV}, s21, v{bV}
s_add_u32 s21, s29, 4096
s_add_u32 s21, s21, s23
v_add_u32 v{bK2}, s21, v{bK2}
v_cmp_gt_u32 vcc, 20, v6
v_cmp_eq_u32 s[40:41], 20, v6
v_mov_b32 v35, {ONES+16}
v_mov_b32 v{mV}, {ONES}
v_cndmask_b32 v35, v35, v{mV}, s[40:41]
v_cndmask_b32 v{bV}, v35, v{bV}, vcc
v_cndmask_b32 v{mV}, 0, 1, vcc
v_and_b32 v35, 7, v1
v_cmp_gt_u32 vcc, 4, v35
v_mov_b32 v{O}, 0x3f803f80
v_lshrrev_b32 v{O+1}, 3, v1
v_cndmask_b32 v{O}, 0, v{O}, vcc
v_mul_u32_u24 v{O+1}, 640, v{O+1}
v_lshl_add_u32 v35, v35, 2, v{O+1}
v_add_u32 v35, {ONES}, v35
ds_write_b32 v35, v{O}
v_mov_b32 v{O+2}, {FLAG}
v_mov_b32 v{O+3}, 0
ds_write_b32 v{O+2}, v{O+3}
s_waitcnt lgkmcnt(0)""")
    k.label('inited')
    k.srd(68, 60, SZ['w1'])
    k.e(f"""s_lshr_b32 s26, s2, 2
s_and_b32 s27, s2, 3
s_mul_i32 s72, s26, {32*3072}
s_mul_i32 s28, s27, {4*3072}
s_add_u32 s72, s72, s28
s_mul_i32 s28, s18, 384
s_add_u32 s72, s72, s28
s_mul_i32 s78, s18, {12*65536}
s_lshl_b32 s28, s2, 8
s_add_u32 s78, s78, s28
s_add_u32 s78, s78, {WS_W1}
s_mov_b32 s76, 0x80000000
s_mov_b32 s77, 0x80000000
s_mov_b32 s79, s75
v_mov_b32 v{uS}, v{uS1}
v_mov_b32 v{uD}, v{uD1}
v_mov_b32 v{uT}, v{uTb}""")
    def m2b(kf, s):  return f"v_mfma_f32_32x32x4_2b_bf16 v[{s}:{s+31}], v[{kf+4}:{kf+5}], v[{Q+8}:{Q+9}], v[{CM}:{CM+31}]"
    def k16(kf, b, s): return f"v_mfma_f32_32x32x16_bf16 v[{s+16*b}:{s+16*b+15}], v[{kf}:{kf+3}], v[{Q+4*b}:{Q+4*b+3}], v[{s+16*b}:{s+16*b+15}]"
    def pv(vf, b, a):
        o = O + 16*b; p = P + 8*b + 4*a
        return f"v_mfma_f32_32x32x16_bf16 v[{o}:{o+15}], v[{vf+4*a}:{vf+4*a+3}], v[{p}:{p+3}], v[{o}:{o+15}]"
    def group(s, gi):
        b = s + 8*gi; p = P + 4*gi
        E = lambda i: f"v_exp_f32 v{b+i}, v{b+i}"
        C = lambda i: f"v_cvt_pk_bf16_f32 v{p+i}, v{b+2*i}, v{b+2*i+1}"
        return [E(0), E(1), E(2), C(0), E(3), E(4), C(1), E(5), E(6), C(2), E(7)], C(3)
    def rdK(kf, tile): return [f"ds_read_b128 v[{kf}:{kf+3}], v{vK1} offset:{tile*512}", f"ds_read_b64 v[{kf+4}:{kf+5}], v{vK2} offset:{tile*512}"]
    def rdV(vf, tile): return [f"ds_read_b128 v[{vf}:{vf+3}], v{vV} offset:{tile*1280}", f"ds_read_b128 v[{vf+4}:{vf+7}], v{vV} offset:{tile*1280+640}"]
    for r in range(32): k.e(f"v_mov_b32 v{O+r}, 0")
    for r in range(4): k.e(f"v_mov_b32 v{P+12+r}, 0\nv_mov_b32 v{VF[1]+4+r}, 0")
    k.e(f"v_mov_b32 v{SB[1]+30}, 0\nv_mov_b32 v{SB[1]+31}, 0")
    k.e(f"""v_mov_b32 v{vK1}, v{bK1}
v_mov_b32 v{vK2}, v{bK2}
v_mov_b32 v{vV}, v{bV}
s_mov_b32 s55, 0
s_mov_b32 s36, 0
s_waitcnt vmcnt(0) lgkmcnt(0)""")
    ts_mark(k, TS, 0)
    k.e("s_barrier")
    ts_mark(k, TS, 1); ts_cyc(k, TS, 4)
    for s_ in rdK(KF[0], 0) + rdK(KF[1], 1) + rdV(VF[0], 0): k.e(s_)
    k.e("s_waitcnt lgkmcnt(4)" if not TS else "s_waitcnt lgkmcnt(0)")
    k.e(m2b(KF[0], SB[0]))
    for s_ in issue(): k.e(s_)
    assert WS_UI == WS_HN + S*D*2 and WS_WO == WS_UI + D*F*2
    for r in range(4): k.e(f"v_mov_b32 v{uR+r}, -1")
    k.e(f"""s_lshl_b32 s26, s2, 3
s_add_u32 s26, s26, s18
s_lshl_b32 s27, s26, 10
s_add_u32 s27, s27, {WS_HN + 4096*1024}
s_cmp_lt_u32 s26, 384
s_cselect_b32 s27, s27, s76
s_lshl_b32 s26, s26, 11
s_add_u32 s26, s26, {WS_HN}
buffer_store_dwordx4 v[{uR}:{uR+3}], v{vD}, s[12:15], s27 offen sc0 sc1""")
    k.e(k16(KF[0], 0, SB[0])); k.e(k16(KF[0], 1, SB[0]))
    for s_ in issue(): k.e(s_)
    k.e(f"buffer_store_dwordx4 v[{uR}:{uR+3}], v{vD}, s[12:15], s26 offen sc0 sc1\nbuffer_store_dwordx4 v[{uR}:{uR+3}], v{vD}, s[12:15], s26 offen offset:1024 sc0 sc1")
    k.e(".p2align 3")
    k.label('chunk')
    cost = lambda x: 8 if "v_exp" in x else 4
    for t in range(4):
        cur, nxt = SB[t & 1], SB[(t+1) & 1]
        kf = KF[(t+1) & 1]; kn = KF[t & 1]
        vf = VF[t & 1]; vn = VF[(t+1) & 1]
        G = [group(cur, i) for i in range(4)]
        V = [group(nxt, 3)[1]] + G[0][0] + G[1][0][:1] + [G[0][1]] + G[1][0][1:] + G[2][0][:1] + [G[1][1]] + G[2][0][1:] + G[3][0][:1] + [G[2][1]] + G[3][0][1:]
        rk = rdK(kn, (t+2) % 4); rv = rdV(vn, (t+1) % 4)
        seq = []
        if t == 2: seq += ["s_waitcnt vmcnt(5) lgkmcnt(0)", "s_barrier"]
        else: seq += ["s_waitcnt lgkmcnt(0)"]
        if prio: seq += [f"s_setprio {3 - (t+2) % 4}"]
        ev = [(4, [m2b(kf, nxt), rk[0]]), (76, [pv(vn, 1, 1), rk[1]]), (116, [pv(vf, 0, 0), rv[0]]), (156, [k16(kf, 0, nxt), rv[1]]),
              (196, [pv(vf, 0, 1)]), (236, [k16(kf, 1, nxt)]), (280, [pv(vf, 1, 0)])]
        if t == 1:
            ev[6][1].extend([f"s_add_u32 s55, s55, {SLOT}", f"s_cmp_ge_u32 s55, {NSLOT*SLOT}", "s_cselect_b32 s55, 0, s55"])
            V += [f"v_add_u32 v{vK1}, s55, v{bK1}", f"v_add_u32 v{vK2}, s55, v{bK2}"]
        if t == 2:
            iss = issue()
            ev[4][1].extend(iss[0:3]); ev[5][1].extend(iss[3:6]); ev[6][1].extend(iss[6:])
            V += [f"v_mad_u32_u24 v{vV}, v{mV}, s55, v{bV}"]
        if t == 2:
            ev[1][1].append(f"ds_read_b64_tr_b16 v[{uR}:{uR+1}], v{uT}")
            ev[2][1].append(f"ds_read_b64_tr_b16 v[{uR+2}:{uR+3}], v{uT} offset:512")
            V += [f"v_xor_b32 v{uT}, 1024, v{uT}"]
        if t == 3:
            ev[4][1].extend([f"buffer_store_dwordx4 v[{uR}:{uR+3}], v{uD}, s[12:15], s76 offen sc0 sc1", "s_mov_b32 m0, s79", "s_mov_b32 s76, s77"])
            ev[5][1].extend([f"buffer_load_dwordx4 v{uS}, s[68:71], s72 offen lds", "s_mov_b32 s77, s78", "s_xor_b32 s79, s79, 1024"])
            ev[6][1].extend(["s_add_u32 s36, s36, 1", "s_cmp_lt_u32 s36, 8"])
        if t == 0:
            ev[4][1].extend(["s_cmp_ge_u32 s36, 3", f"s_cbranch_scc1 {L('uw2')}", "s_cmp_eq_u32 s36, 0", f"s_cbranch_scc1 {L('udone')}",
                             "s_add_u32 s72, s72, 128", f"s_add_u32 s78, s78, {4*65536}", f"{L('udone')}:"])
        tm = 0
        for v in V:
            while ev and ev[0][0] <= tm: seq += ev.pop(0)[1]
            seq.append(v); tm += cost(v)
        assert not ev
        assert seq.index(k16(kf, 0, nxt)) - seq.index(m2b(kf, nxt)) > 18
        for (b_, a_, c_) in ((0, 0, G[0][1]), (0, 1, G[1][1]), (1, 0, G[2][1])):
            assert seq.index(pv(vf, b_, a_)) - seq.index(c_) > 2
        for s_ in seq: k.e(s_)
    k.e(f"s_cbranch_scc1 {L('chunk')}")
    k.e(group(SB[1], 3)[1]); k.e("s_nop 1")
    k.e(pv(VF[1], 1, 1))
    ts_mark(k, TS, 2); ts_cyc(k, TS, 5)
    T = SB[0]; KP = SB[1]
    k.e(f"""s_setprio 0
s_lshl_b32 s27, s20, 5
s_add_u32 s27, s27, s17
v_add_u32 v{T+16}, s27, v6
v_lshrrev_b32 v{T+17}, 4, v{T+16}
v_mul_u32_u24 v{T+17}, 20480, v{T+17}
v_and_b32 v{T+16}, 15, v{T+16}
v_lshl_add_u32 v{T+17}, v{T+16}, 4, v{T+17}
v_add_u32 v{T+17}, {WS_OI}, v{T+17}
s_mul_i32 s27, s16, 5
v_add_u32 v{T+16}, s27, v7
s_mul_i32 s21, s18, 3072
s_add_u32 s21, s21, {MRG}
v_add_u32 v2, s21, v{vD}
s_xor_b32 s21, s18, 4
s_mul_i32 s21, s21, 3072
s_add_u32 s21, s21, {MRG}
v_add_u32 v3, s21, v{vD}
s_cmp_eq_u32 s20, 0
s_cbranch_scc1 {L('keep0')}""")
    for g in range(3): k.e(f"ds_write_b128 v2, v[{O+4*g}:{O+4*g+3}] offset:{g*1024}")
    for r in range(12): k.e(f"v_mov_b32 v{KP+r}, v{O+16+r}")
    k.e(f"s_branch {L('kept')}")
    k.label('keep0')
    for g in range(3): k.e(f"ds_write_b128 v2, v[{O+16+4*g}:{O+16+4*g+3}] offset:{g*1024}")
    for r in range(12): k.e(f"v_mov_b32 v{KP+r}, v{O+r}")
    k.label('kept')
    k.e(f"""s_mov_b32 s38, {f2u(2.0**-30)}
s_mov_b32 s39, {f2u(2.0**99)}
v_mul_f32 v{T+14}, 0, v{O}
v_mul_f32 v{T+15}, 0, v{O+16}""")
    for r in range(1, 12): k.e(f"v_fmac_f32 v{T+14}, 0, v{O+r}\nv_fmac_f32 v{T+15}, 0, v{O+16+r}")
    k.e(f"""v_min_f32 v{T+12}, v{O+8}, v{O+24}
v_max_f32 v{T+13}, v{O+8}, v{O+24}
v_cmp_u_f32 vcc, v{T+14}, v{T+15}
v_cmp_nge_f32 s[40:41], v{T+12}, s38
v_cmp_nle_f32 s[42:43], v{T+13}, s39
v_mov_b32 v{T+12}, {FLAG}
v_mov_b32 v{T+13}, 1
s_or_b32 s41, s41, s43
s_or_b32 s40, vcc_lo, vcc_hi
s_or_b32 s40, s40, s41""")
    if force_slow: k.e("s_cmp_eq_u32 s37, 0")
    k.e(f"""s_cbranch_scc0 {L('noflag')}
ds_write_b32 v{T+12}, v{T+13}""")
    k.label('noflag')
    for g in range(3):
        if g: k.e(f"v_add_u32 v{T+16}, 2, v{T+16}")
        k.e(f"""v_lshrrev_b32 v{T+18}, 3, v{T+16}
v_lshl_add_u32 v{T+20+g}, v{T+18}, 10, v{T+17}
v_and_b32 v{T+18}, 3, v{T+16}
v_lshl_add_u32 v{T+20+g}, v{T+18}, 8, v{T+20+g}
v_bfe_u32 v{T+18}, v{T+16}, 2, 1
v_lshl_add_u32 v{T+20+g}, v{T+18}, 3, v{T+20+g}""")
    k.e("s_waitcnt lgkmcnt(0)\ns_barrier")
    for g in (2, 0, 1): k.e(f"ds_read_b128 v[{T+4*g}:{T+4*g+3}], v3 offset:{g*1024}")
    k.e(f"""ds_read_b32 v{T+19}, v{T+12}
s_waitcnt lgkmcnt(3)
v_pk_add_f32 v[{T+8}:{T+9}], v[{T+8}:{T+9}], v[{KP+8}:{KP+9}]
v_pk_add_f32 v[{T+10}:{T+11}], v[{T+10}:{T+11}], v[{KP+10}:{KP+11}]
v_mov_b32 v{T+13}, v{T+8}
v_mov_b32 v{T+12}, v{T+8}
s_waitcnt lgkmcnt(1)
v_pk_add_f32 v[{T}:{T+1}], v[{T}:{T+1}], v[{KP}:{KP+1}]
v_permlane32_swap_b32 v{T+13}, v{T+12}
v_pk_add_f32 v[{T+2}:{T+3}], v[{T+2}:{T+3}], v[{KP+2}:{KP+3}]
v_rcp_f32 v{T+14}, v{T+12}
v_pk_add_f32 v[{T+4}:{T+5}], v[{T+4}:{T+5}], v[{KP+4}:{KP+5}]
v_pk_add_f32 v[{T+6}:{T+7}], v[{T+6}:{T+7}], v[{KP+6}:{KP+7}]""")
    for r in range(0, 12, 2): k.e(f"v_pk_mul_f32 v[{T+r}:{T+r+1}], v[{T+r}:{T+r+1}], v[{T+14}:{T+15}] op_sel_hi:[1,0]")
    for g in range(3):
        k.e(f"v_cvt_pk_bf16_f32 v{T+24+2*g}, v{T+4*g}, v{T+4*g+1}\nv_cvt_pk_bf16_f32 v{T+25+2*g}, v{T+4*g+2}, v{T+4*g+3}")
    k.e(f"""buffer_store_dwordx2 v[{T+24}:{T+25}], v{T+20}, s[12:15], 0 offen
buffer_store_dwordx2 v[{T+26}:{T+27}], v{T+21}, s[12:15], 0 offen
s_mov_b32 exec_hi, 0
buffer_store_dwordx2 v[{T+28}:{T+29}], v{T+22}, s[12:15], 0 offen
s_mov_b32 exec_hi, -1
s_waitcnt lgkmcnt(0)
v_readfirstlane_b32 s38, v{T+19}
s_nop 3
s_cmp_gt_u32 s38, s37
s_cbranch_scc1 {L('slow')}""")
    k.label('done')
    ts_end(k, TS, 1, 12, 100)
    k.label('end')
    k.e("s_endpgm")
    k.label('uw2')
    k.e(f"""s_lshl_b32 s26, s2, 3
s_add_u32 s26, s26, s18
s_and_b32 s27, s26, 31
s_lshr_b32 s26, s26, 5
s_mul_i32 s26, s26, 3
s_add_u32 s26, s26, s36
s_sub_u32 s26, s26, 3
s_lshr_b32 s28, s26, 2
s_lshl_b32 s72, s28, 17
s_and_b32 s28, s26, 3
s_lshl_b32 s28, s28, 14
s_add_u32 s72, s72, s28
s_lshl_b32 s28, s27, 7
s_add_u32 s72, s72, s28
s_mul_i32 s78, s27, {4*49152}
s_lshl_b32 s28, s26, 8
s_add_u32 s78, s78, s28
s_add_u32 s78, s78, {WS_W2}
s_mov_b32 s68, s64
s_mov_b32 s69, s65
v_mov_b32 v{uS}, v{uS2}
s_cmp_lt_u32 s36, 5
s_cbranch_scc1 {L('udone')}
v_mov_b32 v{uD}, v{uD2}
s_cmp_lt_u32 s36, 6
s_cbranch_scc1 {L('udone')}
s_mov_b32 s72, 0x80000000
s_branch {L('udone')}""")
    k.label('slow')
    S0 = SB[0]; MX = P; kf = KF[0]
    k.e(f"""s_waitcnt vmcnt(0)
s_mov_b32 s37, 1
s_barrier
v_mov_b32 v{MX}, 0xff800000
v_mov_b32 v{MX+1}, 0xff800000
s_add_u32 s56, s24, {WS_KP}
s_add_u32 s57, s25, {WS_KP}
s_add_u32 s57, s57, s23
v_lshlrev_b32 v35, 4, v6
s_mov_b32 s36, 0""")
    k.label('mloop')
    k.e(f"""buffer_load_dwordx4 v[{kf}:{kf+3}], v34, s[12:15], s56 offen
buffer_load_dwordx2 v[{kf+4}:{kf+5}], v35, s[12:15], s57 offen
s_add_u32 s56, s56, 512
s_add_u32 s57, s57, 512
s_waitcnt vmcnt(0)""")
    k.e(m2b(kf, S0)); k.e("s_nop 15\ns_nop 3")
    k.e(k16(kf, 0, S0)); k.e(k16(kf, 1, S0)); k.e("s_nop 11")
    for b in range(2):
        for r in range(0, 16, 2):
            k.e(f"v_max3_f32 v{MX+b}, v{S0+16*b+r}, v{S0+16*b+r+1}, v{MX+b}")
    k.e(f"""s_add_u32 s36, s36, 1
s_cmp_lt_u32 s36, 64
s_cbranch_scc1 {L('mloop')}
v_mov_b32 v{MX+2}, v{MX}
v_mov_b32 v{MX+3}, v{MX+1}
s_nop 1
v_permlane32_swap_b32 v{MX}, v{MX+2}
v_permlane32_swap_b32 v{MX+1}, v{MX+3}
s_nop 1
v_max_f32 v{MX}, v{MX}, v{MX+2}
v_max_f32 v{MX+1}, v{MX+1}, v{MX+3}""")
    for b in range(2):
        for r in range(16): k.e(f"v_sub_f32 v{CM+16*b+r}, 0, v{MX+b}")
    k.e(f"s_branch {L('main')}")
    return k
```

```python
from common import *
from ts import *
import math

def row160_offsets(k, lane, dst, n, pitch, t0=3):
    for u in range(64*n): assert (u*6554) >> 16 == u//10
    for i in range(n):
        k.e(f"""v_add_u32 v{t0}, {64*i}, v{lane}
v_mul_u32_u24 v{t0+1}, 6554, v{t0}
v_lshrrev_b32 v{t0+1}, 16, v{t0+1}
v_mul_u32_u24 v{t0+1}, {pitch-160}, v{t0+1}
v_lshl_add_u32 v{dst+i}, v{t0}, 4, v{t0+1}""")

def rowsum(k, a, t):
    for sw in ("v_permlane32_swap_b32", "v_permlane16_swap_b32"):
        k.e(f"""v_mov_b32 v{t}, v{a}
v_mov_b32 v{t+1}, v{a+1}
s_nop 1
{sw} v{a}, v{t}
{sw} v{a+1}, v{t+1}
s_nop 1
v_pk_add_f32 v[{a}:{a+1}], v[{a}:{a+1}], v[{t}:{t+1}]""")

SPIN = 0x8000

def kernel_F(TS=False, NR1=23, NR2=19, PL=32, PL2=24, SL1=12, SL2=32, SL3=24, SLR=4, SLS=60, W2S=11, W2X=3, DSC=None, ESC=None):
    XT = 0; RED = 12288; WO = 32768
    DS = 5; W1L = DS*16384; NL1 = 32 - NR1
    ES = 5; W2L = ES*20480; NL2 = 24 - NR2
    CNT = 160*1024 - 64
    assert W1L + NL1*8192 <= CNT and W2L + NL2*8192 <= CNT and WO + 102400 <= CNT
    k = K("tail_kernel", 256, 512, 160*1024, 256)
    L = k.L
    mk = lambda i: f"s_memrealtime s[{84+2*i}:{85+2*i}]" if TS else ""
    OF = 32; ACC = 112; WF = 132
    ts_begin(k, TS)
    k.e(f"""s_cmp_ge_u32 s2, 256
s_cbranch_scc1 {L('end')}
s_load_dwordx2 s[12:13], s[0:1], {KA['ws']}
s_load_dwordx2 s[4:5], s[0:1], {KA['x']}
s_load_dwordx2 s[8:9], s[0:1], {KA['b1']}
s_load_dwordx4 s[40:43], s[0:1], {KA['b2']}
s_load_dwordx2 s[48:49], s[0:1], {KA['dbg']}
v_lshrrev_b32 v2, 6, v0
v_and_b32 v1, 63, v0
v_readfirstlane_b32 s18, v2
; x = wg%8, i = wg/8 : token block s16 = 8*(x>>1) + i%8, d block s17 = 4*(x&1) + i/8
s_lshr_b32 s21, s2, 3
s_and_b32 s16, s21, 7
s_and_b32 s22, s2, 6
s_lshl_b32 s22, s22, 2
s_add_u32 s16, s16, s22
s_lshr_b32 s17, s21, 3
s_and_b32 s22, s2, 1
s_lshl_b32 s22, s22, 2
s_add_u32 s17, s17, s22
s_and_b32 s25, s18, 3
s_and_b32 s56, s18, 1
s_bfe_u32 s57, s18, 0x10001
s_lshl_b32 s19, s16, 2
s_add_u32 s19, s19, s25
s_mul_i32 s29, s25, 5120
s_mul_i32 s28, s17, 102400
s_add_u32 s28, s28, s29
s_add_u32 s28, s28, {WS_WO}
s_add_u32 s29, s29, {WO}
s_mul_i32 s30, s19, 20480
s_add_u32 s30, s30, {WS_OI}
v_lshlrev_b32 v2, 4, v1
s_mov_b32 m0, s29
v_mov_b32 v10, 0
v_and_b32 v6, 15, v1
v_lshrrev_b32 v7, 4, v1
; D tile: s52 = d block (64), s53 = f block (64) ; s54 = 1 if this workgroup has one
s_mul_i32 s52, s21, 43
s_lshr_b32 s52, s52, 8
s_mul_i32 s53, s52, 6
s_sub_u32 s53, s21, s53
s_and_b32 s22, s2, 1
s_mul_i32 s22, s22, 5
s_add_u32 s52, s52, s22
s_bfe_u32 s22, s2, 0x20001
s_mul_i32 s22, s22, 6
s_add_u32 s53, s53, s22
s_cmp_lt_u32 s21, 30
s_cselect_b32 s54, 1, 0
s_waitcnt lgkmcnt(0)""")
    k.srd(12, 12, WS_SIZE); k.srd(48, 48, 256)
    def get_tag():
        n = k.uid; k.uid += 1
        k.e(f"s_mov_b32 s33, {SPIN}")
        k.label(f'tp{n}')
        k.e(f"""s_waitcnt vmcnt(0)
v_readfirstlane_b32 s55, v11
s_sub_u32 s33, s33, 1
s_cmp_lg_u32 s55, 0
s_cbranch_scc1 {L(f'tg{n}')}
s_cmp_eq_u32 s33, 0
s_cbranch_scc1 {L(f'tg{n}')}
buffer_load_dword v11, v10, s[48:51], 0 offen sc1
s_branch {L(f'tp{n}')}""")
        k.label(f'tg{n}')
    stubs = []
    def loader(nm, N, slots, sched, issue, nops, chk, post={}):
        q = []
        k.e(f"s_mov_b32 s33, {SPIN}")
        k.label(nm + 'rs')
        for c in sched[0]:
            for x in issue(c): k.e(x)
            q += [c]*nops
        for cc in range(N):
            last = max(i for i, c in enumerate(q) if c == cc)
            k.e(f"s_waitcnt vmcnt({min(63, len(q)-1-last)})")
            q = q[last+1:]
            for x in chk(cc): k.e(x)
            if cc:
                for c in sched.get(cc, []):
                    for x in issue(c): k.e(x)
                    q += [c]*nops
                for x in post.get(cc, []):
                    k.e(x)
                    if x.startswith("buffer_"): q.append(-1)
            k.label(nm + f'c{cc}')
            k.e("s_waitcnt lgkmcnt(0)")
            if len(chk(cc)) > 1: k.e("v_max_u32 v40, v40, v41")
            k.e(f"v_cmp_eq_u32 vcc, -1, v40\ns_cbranch_vccnz {L(nm + f'r{cc}')}")
            k.label(nm + f'k{cc}')
            k.e("s_barrier")
            st = [f"{L(nm + f'r{cc}')}:", "s_sub_u32 s33, s33, 1", "s_cmp_lt_i32 s33, 1", f"s_cbranch_scc1 {L(nm + f'k{cc}')}", "s_waitcnt vmcnt(0)", f"s_sleep {SLR}"]
            if cc == 0: st += [f"s_branch {L(nm + 'rs')}"]
            else: st += issue(cc) + ["s_waitcnt vmcnt(0)"] + chk(cc) + [f"s_branch {L(nm + f'c{cc}')}"]
            stubs.extend(st)
            if TS and cc == 0 and nm == 'le': k.e("s_memrealtime s[86:87]")
            if TS and cc == 0: k.e(f"s_sub_u32 s65, {SPIN}, s33")
        if TS: k.e(f"s_sub_u32 s84, {SPIN}, s33\ns_sub_u32 s84, s84, s65\ns_mul_i32 s84, s84, 100\ns_mul_i32 s65, s65, 10000\ns_add_u32 s84, s84, s65\ns_add_u32 s84, s84, s96")
        return q
    def wfree(off=8):
        n = k.uid; k.uid += 1
        k.e(f"v_mov_b32 v3, {CNT+off}\ns_mov_b32 s33, {SPIN*16}")
        k.label(f'wf{n}')
        k.e(f"""ds_read_b32 v4, v3
s_sub_u32 s33, s33, 1
s_waitcnt lgkmcnt(0)
v_readfirstlane_b32 s32, v4
s_cmp_eq_u32 s33, 0
s_cbranch_scc1 {L(f'wd{n}')}
s_cmp_lt_u32 s32, 4
s_cbranch_scc1 {L(f'wf{n}')}""")
        k.label(f'wd{n}')
    k.e(f"""s_cmp_ge_u32 s18, 4
s_cbranch_scc1 {L('Y')}""")
    for p in range(5):
        for n in range(4): k.e(f"buffer_load_dwordx4 v2, s[12:15], s28 offen offset:{n*1024} lds")
        k.e(f"""s_add_u32 m0, s29, 4096
s_add_u32 s28, s28, 4096
buffer_load_dwordx4 v2, s[12:15], s28 offen lds
s_add_u32 s29, s29, {4*5120}
s_mov_b32 m0, s29
s_add_u32 s28, s28, {4*5120-4096}""")
        if p >= 2: k.e("s_waitcnt vmcnt(10)\ns_barrier")
    k.srd(4, 4, SZ['x'])
    row160_offsets(k, 1, 24, 3, 1280)
    k.e(f"""s_mul_i32 s32, s19, {16*1280}
s_mul_i32 s33, s17, 160
s_add_u32 s32, s32, s33
s_mul_i32 s31, s25, 3072
s_add_u32 m0, s31, {XT}
s_nop 0
buffer_load_dwordx4 v24, s[4:7], s32 offen lds
s_add_u32 m0, s31, {XT+1024}
s_nop 0
buffer_load_dwordx4 v25, s[4:7], s32 offen lds
s_add_u32 m0, s31, {XT+2048}
s_mov_b32 exec_hi, 0
buffer_load_dwordx4 v26, s[4:7], s32 offen lds
s_mov_b32 exec_hi, -1
s_waitcnt vmcnt(8)
s_barrier
s_lshl_b32 s27, s53, 2
s_lshl_b32 s28, s56, 1
s_add_u32 s27, s27, s28
s_lshl_b32 s27, s27, 16
s_lshl_b32 s28, s57, 11
s_add_u32 s27, s27, s28
s_add_u32 s27, s27, {WS_W1}
s_add_u32 s28, s27, 65536
s_mul_i32 s29, s18, {NL1*2048}
s_add_u32 s29, s29, {W1L}
s_cmp_eq_u32 s54, 0
s_cbranch_scc0 {L('Xd')}
s_waitcnt vmcnt(0)
s_barrier""")
    wfree()
    k.e(f"s_sleep {SLS}\ns_sleep {SLS}\ns_branch {L('Xe')}")
    k.label('Xd')
    DACC = 8; HF = 40; W1R = 72
    assert W1R + NR1*8 <= 256
    cnt = 0
    for n in range(32):
        if n == NR1:
            wfree()
        for ft in range(2):
            if n >= NR1:
                d = ((n-NR1)*2+ft)*1024 - (n % 2)*1024
                k.e(f"s_add_u32 m0, s29, {d}\ns_nop 0" if d >= 0 else f"s_sub_u32 m0, s29, {-d}\ns_nop 0")
                k.e(f"buffer_load_dwordx4 v2, s[12:15], s{27+ft} offen offset:{(n%2)*1024} lds")
            else:
                r = W1R + n*8 + 4*ft
                k.e(f"buffer_load_dwordx4 v[{r}:{r+3}], v2, s[12:15], s{27+ft} offen offset:{(n%2)*1024}")
            cnt += 1
            if cnt == 4: k.e("s_waitcnt vmcnt(4)\ns_barrier")
            if cnt > PL: k.e(f"s_waitcnt vmcnt({PL})")
        if n % 2 == 1: k.e("s_add_u32 s27, s27, 4096\ns_add_u32 s28, s28, 4096")
    k.e(mk(1))
    DSLOT = [0, 1, 2, 3, 4, 0, 1, 2, 3, 4, 5, 6, 7, 8, 0, 1]
    DSCHED = {0: [0, 1, 2], 1: [3], 2: [4], 3: [5], 4: [6], 5: [7], 6: [8], 7: [9, 10], 8: [11, 12], 9: [13, 14], 10: [15]}
    if DSC: DSCHED = DSC
    assert NL1 <= 9 and W1L == 5*16384
    k.e(f"""v_bfe_u32 v3, v1, 5, 1
v_lshlrev_b32 v3, 8, v3
v_bfe_u32 v4, v1, 1, 1
v_lshl_add_u32 v3, v4, 7, v3
v_bfe_u32 v4, v1, 2, 3
v_lshl_add_u32 v3, v4, 4, v3
v_and_b32 v4, 1, v1
v_lshl_add_u32 v3, v4, 3, v3
s_lshl_b32 s27, s57, 11
v_add_u32 v3, s27, v3
v_add_u32 v4, 65536, v3
v_add_u32 v6, 131072, v3
v_add_u32 v5, s29, v2
s_waitcnt vmcnt(0)""")
    k.e(mk(2))
    def hreads(n):
        c, s = n//2, n % 2
        slot = DSLOT[c]; base = (3, 4, 6)[slot//4]; off = (slot % 4)*16384 + s*1024
        b = HF + 16*(n & 1)
        return [f"ds_read_b64_tr_b16 v[{b+4*dt+2*j}:{b+4*dt+2*j+1}], v{base} offset:{off + dt*4096 + j*512}" for dt in range(4) for j in range(2)]
    def wsrc(i, ft): return W1R + (i if i < NR1 else i - NR1)*8 + 4*ft
    def wread(i): return [f"ds_read_b128 v[{wsrc(i, ft)}:{wsrc(i, ft)+3}], v5 offset:{((i-NR1)*2+ft)*1024}" for ft in range(2)]
    k.e("s_barrier")
    k.e(mk(3) + ("\ns_waitcnt lgkmcnt(0)" if TS else ""))
    for r in hreads(0): k.e(r)
    pend = 0
    for i in range(32):
        b = HF + 16*(i & 1)
        rd = hreads(i+1) if i < 31 else []
        for dt in range(4):
            k.e(f"s_waitcnt lgkmcnt({6 + pend if rd else 6-2*dt})")
            for ft in range(2):
                a = DACC + 8*dt + 4*ft
                c = "0" if i == 0 else f"v[{a}:{a+3}]"
                k.e(f"v_mfma_f32_16x16x32_bf16 v[{a}:{a+3}], v[{wsrc(i, ft)}:{wsrc(i, ft)+3}], v[{b+4*dt}:{b+4*dt+3}], {c}")
                if dt == 0 and ft == 0 and i % 2 == 1 and i < 31: k.e("s_barrier")
                if rd: k.e(rd[2*dt+ft])
        pend = 0
        if i < NL1:
            for r in wread(NR1 + i): k.e(r)
            pend = 2
        if i == 24:
            k.srd(8, 8, SZ['b1'])
            k.e(f"""s_lshl_b32 s27, s53, 7
s_lshl_b32 s28, s56, 6
s_add_u32 s27, s27, s28
v_lshlrev_b32 v204, 3, v7
buffer_load_dwordx2 v[200:201], v204, s[8:11], s27 offen
buffer_load_dwordx2 v[202:203], v204, s[8:11], s27 offen offset:32""")
    assert W1R + NL1*8 <= 200
    k.e(mk(4))
    k.e('s_setprio 3')
    c1 = -2.0*math.log2(math.e)*math.sqrt(2.0/math.pi); c2 = c1*0.044715
    KP = 208; T2 = 224
    k.e(f"""s_lshl_b32 s28, s18, 12
s_add_u32 s28, s28, 32768
v_add_u32 v3, s28, v2
s_xor_b32 s28, s28, 8192
v_add_u32 v4, s28, v2
s_cmp_eq_u32 s57, 0
s_waitcnt vmcnt(0)
s_nop 0
s_cbranch_scc1 {L('dk0')}""")
    for q in (1, 0):
        if q == 0: k.label('dk0')
        for p in range(4):
            a = DACC + 16*(q ^ 1) + 4*p
            k.e(f"ds_write_b128 v3, v[{a}:{a+3}] offset:{p*1024}")
        for r in range(8):
            bq = 200 + r//2
            k.e(f"v_lshlrev_b32 v{T2+r}, 16, v{bq}" if r % 2 == 0 else f"v_and_b32 v{T2+r}, 0xffff0000, v{bq}")
        for r in range(0, 16, 2):
            k.e(f"v_pk_add_f32 v[{KP+r}:{KP+r+1}], v[{T2+r%8}:{T2+r%8+1}], v[{DACC+16*q+r}:{DACC+16*q+r+1}]")
        if q == 1: k.e(f"s_branch {L('dkd')}")
    k.label('dkd')
    k.e(f"""; u fragment: ((4 dblk + 2kh + j)*48 + 2 fblk + wn)*1024
s_lshl_b32 s27, s52, 2
s_lshl_b32 s28, s57, 1
s_add_u32 s27, s27, s28
s_mul_i32 s27, s27, 48
s_lshl_b32 s28, s53, 1
s_add_u32 s27, s27, s28
s_add_u32 s27, s27, s56
s_lshl_b32 s27, s27, 10
s_add_u32 s27, s27, {WS_UI}
s_add_u32 s28, s27, 49152
s_mov_b32 s20, {f2u(c1)}
s_mov_b32 s21, {f2u(c2)}
v_mov_b32 v6, s20
s_waitcnt lgkmcnt(0)
s_barrier""")
    for p in range(4): k.e(f"ds_read_b128 v[{40+4*p}:{43+4*p}], v4 offset:{p*1024}")
    for hf in range(2):
        R = range(8*hf, 8*hf+8); R2 = range(8*hf, 8*hf+8, 2)
        k.e(f"s_waitcnt lgkmcnt({2-2*hf})")
        for r in R2: k.e(f"v_pk_add_f32 v[{KP+r}:{KP+r+1}], v[{KP+r}:{KP+r+1}], v[{40+r}:{41+r}]")
        for r in R2: k.e(f"v_pk_mul_f32 v[{T2+r}:{T2+r+1}], v[{KP+r}:{KP+r+1}], v[{KP+r}:{KP+r+1}]")
        for r in R: k.e(f"v_fma_f32 v{T2+r}, v{T2+r}, s21, v6")
        for r in R2: k.e(f"v_pk_mul_f32 v[{T2+r}:{T2+r+1}], v[{T2+r}:{T2+r+1}], v[{KP+r}:{KP+r+1}]")
        for r in R: k.e(f"v_exp_f32 v{T2+r}, v{T2+r}")
        for r in R: k.e(f"v_add_f32 v{T2+r}, 1.0, v{T2+r}")
        for r in R: k.e(f"v_rcp_f32 v{T2+r}, v{T2+r}")
        for r in R2: k.e(f"v_pk_mul_f32 v[{T2+r}:{T2+r+1}], v[{T2+r}:{T2+r+1}], v[{KP+r}:{KP+r+1}]")
        for r in range(4): k.e(f"v_cvt_pk_bf16_f32 v{60+4*hf+r}, v{T2+8*hf+2*r}, v{T2+8*hf+2*r+1}")
        for r in range(4): k.e(f"v_min_u32 v{60+4*hf+r}, -2, v{60+4*hf+r}")
        k.e(f"buffer_store_dwordx4 v[{60+4*hf}:{63+4*hf}], v2, s[12:15], s{27+hf} offen sc0 sc1")
    k.e(mk(5))
    if SL3: k.e(f"s_sleep {SL3}")
    k.label('Xe')
    ESLOT = [0, 1, 2, 3, 4, 7, 0, 1, 2, 5, 6, 3]
    ESCHED = {0: [0, 1, 2], 1: [3], 2: [4], 3: [5], 4: [6, 7], 5: [8], 6: [9, 10], 7: [11]}
    if ESC: ESCHED = ESC
    assert NL2 <= 5 and W2L == 5*20480
    def chkaddr(dst, t):
        k.e(f"v_bfe_u32 v{t}, v1, 1, 4\nv_lshlrev_b32 v{t}, 2, v{t}\nv_lshl_add_u32 v{dst}, v1, 6, v{t}")
    k.e(f"""s_mul_i32 s29, s17, {5*49152}
s_add_u32 s29, s29, {WS_UI}
s_lshl_b32 s27, s18, 10
s_add_u32 s30, s29, s27
s_add_u32 s30, s30, {4*49152}
s_add_u32 s28, s27, 16384
s_mul_i32 s27, s18, 49152
s_add_u32 s29, s29, s27
s_lshl_b32 s27, s18, 12""")
    chkaddr(44, 42)
    k.e(f"""v_and_b32 v47, 1023, v44
v_add_u32 v44, s27, v44
v_add_u32 v45, 61440, v44
v_add_u32 v46, {2*61440}, v44
v_add_u32 v47, s28, v47
v_add_u32 v48, 61440, v47
v_add_u32 v49, {2*61440}, v47
s_barrier""")
    def eissue(c):
        o = ESLOT[c]*20480
        return ([f"s_add_u32 m0, s27, {o}", f"s_add_u32 s32, s29, {c*4096}"] +
                [f"buffer_load_dwordx4 v2, s[12:15], s32 offen offset:{i*1024} sc1 lds" for i in range(4)] +
                [f"s_add_u32 m0, s28, {o}", f"s_add_u32 s32, s30, {c*4096}", "buffer_load_dwordx4 v2, s[12:15], s32 offen sc1 lds"])
    def echk(c):
        sl = ESLOT[c]
        return [f"ds_read_b32 v40, v{44+sl//3} offset:{(sl%3)*20480}", f"ds_read_b32 v41, v{47+sl//3} offset:{(sl%3)*20480}"]
    loader('le', 12, ESLOT, ESCHED, eissue, 5, echk)
    ts_end(k, TS, 2, 12, 40)
    k.e("s_endpgm")
    k.label('Y')
    HR = 14
    k.e(f"""s_setprio 3
s_and_b32 s36, s18, 3
s_or_b32 s36, s36, s2
s_cmp_lg_u32 s36, 0
s_cbranch_scc1 {L('notag')}
s_memrealtime s[36:37]
s_waitcnt lgkmcnt(0)
s_or_b32 s36, s36, 1
v_mov_b32 v11, s36
s_mov_b64 exec, 1
buffer_store_dword v11, v10, s[48:51], 0 offen sc0 sc1
s_mov_b64 exec, -1""")
    k.label('notag')
    def oload(a_, b_):
        for j in range(a_, b_):
            k.e(f"buffer_load_dwordx4 v[{OF+4*j}:{OF+4*j+3}], v2, s[12:15], s30 offen offset:{(j%4)*1024}")
            if j % 4 == 3: k.e("s_add_u32 s30, s30, 4096")
    oload(0, 12)
    k.e(f"""v_add_u32 v3, {WO}, v2
v_add_u32 v4, {WO+61440}, v2
v_mul_u32_u24 v5, 160, v6
v_lshl_add_u32 v5, v7, 3, v5
s_mul_i32 s31, s25, 3072
v_add_u32 v5, s31, v5
v_mov_b32 v8, {CNT}
ds_write2_b32 v8, v10, v10 offset0:0 offset1:1
ds_write_b32 v8, v10 offset:8""")
    assert XT == 0
    def reads(j):
        return [f"ds_read_b128 v[{WF+20*(j&1)+4*nt}:{WF+20*(j&1)+4*nt+3}], v{3 if j < 12 else 4} offset:{(j if j < 12 else j-12)*5120 + nt*1024}" for nt in range(5)]
    for p in range(5):
        k.e(f"s_waitcnt vmcnt({(8, 8, 9, 5, 1)[p]}) lgkmcnt(0)\ns_barrier")
        if p == 0: k.e(mk(0) + ("\ns_waitcnt lgkmcnt(0)" if TS else ""))
        for r in reads(4*p): k.e(r)
        if p < 2: oload(12+4*p, 16+4*p)
        if p == 1: k.e("buffer_load_dword v11, v10, s[48:51], 0 offen sc1")
        for j in range(4*p, 4*p+4):
            nxt = reads(j+1) if j+1 < 4*p+4 else []
            for nt in range(5):
                w = WF + 20*(j & 1) + 4*nt
                if nxt: k.e(nxt[nt])
                k.e(f"s_waitcnt lgkmcnt({5 if nxt else 4-nt})")
                c = "0" if j == 0 else f"v[{ACC+4*nt}:{ACC+4*nt+3}]"
                k.e(f"v_mfma_f32_16x16x32_bf16 v[{ACC+4*nt}:{ACC+4*nt+3}], v[{w}:{w+3}], v[{OF+4*j}:{OF+4*j+3}], {c}")
    for nt in range(5): k.e(f"ds_read_b64 v[{HR+2*nt}:{HR+2*nt+1}], v5 offset:{nt*32}")
    k.e(f"""v_mov_b32 v28, 1
s_mov_b64 exec, 1
ds_add_u32 v8, v28 offset:8
s_mov_b64 exec, -1""")
    get_tag()
    k.e(f"""v_mov_b32 v28, 0
v_mov_b32 v29, 0
v_mov_b32 v5, 0x3f803f80
v_lshlrev_b32 v8, 4, v6
s_lshl_b32 s34, s19, 11
s_add_u32 s34, s34, {WS_ST}
s_lshl_b32 s31, s17, 8
s_add_u32 s31, s31, s34
s_waitcnt lgkmcnt(0)""")
    for nt in range(5):
        a_ = ACC + 4*nt; x = HR + 2*nt
        k.e(f"""v_lshlrev_b32 v24, 16, v{x}
v_and_b32 v25, 0xffff0000, v{x}
v_lshlrev_b32 v26, 16, v{x+1}
v_and_b32 v27, 0xffff0000, v{x+1}
v_pk_add_f32 v[{a_}:{a_+1}], v[{a_}:{a_+1}], v[24:25]
v_pk_add_f32 v[{a_+2}:{a_+3}], v[{a_+2}:{a_+3}], v[26:27]
v_cvt_pk_bf16_f32 v{x}, v{a_}, v{a_+1}
v_cvt_pk_bf16_f32 v{x+1}, v{a_+2}, v{a_+3}
v_dot2c_f32_bf16 v28, v{x}, v5
v_dot2c_f32_bf16 v29, v{x}, v{x}
v_dot2c_f32_bf16 v28, v{x+1}, v5
v_dot2c_f32_bf16 v29, v{x+1}, v{x+1}""")
    k.e("v_mov_b32 v30, s55\nv_mov_b32 v31, s55\ns_nop 0")
    rowsum(k, 28, 24)
    k.e(f"""s_mov_b64 exec, 0xffff
buffer_store_dwordx4 v[28:31], v8, s[12:15], s31 offen sc0 sc1
s_mov_b64 exec, -1
v_lshl_add_u32 v8, v7, 9, v8
s_mov_b32 s33, {SPIN}
{mk(1)}""")
    if SL1: k.e(f"s_sleep {SL1}")
    k.label('spoll')
    k.e(f"""buffer_load_dwordx4 v[32:35], v8, s[12:15], s34 offen sc1
buffer_load_dwordx4 v[36:39], v8, s[12:15], s34 offen offset:256 sc1
s_sub_u32 s33, s33, 1
s_waitcnt vmcnt(0)
v_cmp_ne_u32 vcc, s55, v34
v_cmp_ne_u32 s[36:37], s55, v38
s_cmp_eq_u32 s33, 0
s_cbranch_scc1 {L('sgot')}
s_or_b64 vcc, vcc, s[36:37]
s_cbranch_scc1 {L('spoll')}""")
    k.label('sgot')
    k.e(f"{mk(2)}\nv_pk_add_f32 v[28:29], v[32:33], v[36:37]\ns_mov_b32 s20, {f2u(1e-5)}")
    rowsum(k, 28, 24)
    k.e(f"""v_mul_f32 v28, {f2u(-1.0/D)}, v28
v_mul_f32 v29, {f2u(1.0/D)}, v29
v_fma_f32 v29, -v28, v28, v29
v_max_f32 v29, 0, v29
v_add_f32 v24, s20, v29
v_rcp_f32 v25, v24
v_rsq_f32 v24, v24
v_fma_f32 v25, v25, v29, s20
v_rsq_f32 v25, v25
s_mul_i32 s31, s17, {5*65536}
v_mul_f32 v24, v24, v25
v_mul_f32 v25, v24, v28
s_lshl_b32 s32, s19, 9
s_add_u32 s31, s31, s32
s_add_u32 s31, s31, {WS_HN}
s_add_u32 s32, s31, {2*65536}
s_add_u32 s35, s31, {4*65536}
v_bfe_u32 v26, v1, 3, 1
v_lshlrev_b32 v9, 8, v26
v_and_b32 v26, 7, v1
v_lshl_add_u32 v9, v26, 4, v9
v_lshrrev_b32 v26, 1, v7
v_lshl_add_u32 v9, v26, 7, v9
v_and_b32 v26, 1, v7
v_lshl_add_u32 v8, v26, 16, v9""")
    for nt in range(5):
        a = ACC + 4*nt; x = WF + 2*nt
        k.e(f"""v_pk_fma_f32 v[{a}:{a+1}], v[{a}:{a+1}], v[24:25], v[24:25] op_sel:[0,0,1] op_sel_hi:[1,0,1]
v_pk_fma_f32 v[{a+2}:{a+3}], v[{a+2}:{a+3}], v[24:25], v[24:25] op_sel:[0,0,1] op_sel_hi:[1,0,1]
v_cvt_pk_bf16_f32 v{x}, v{a}, v{a+1}
v_cvt_pk_bf16_f32 v{x+1}, v{a+2}, v{a+3}""")
    X = WF
    for r in (8, 9): k.e(f"v_min_u32 v{X+r+2}, -2, v{X+r}")
    for r in (8, 9, 0, 1, 2, 3, 4, 5, 6, 7): k.e(f"v_min_u32 v{X+r}, -2, v{X+r}")
    k.e(f"""v_permlane16_swap_b32 v{X+8}, v{X+10}
v_permlane16_swap_b32 v{X+9}, v{X+11}
v_permlane16_swap_b32 v{X}, v{X+2}
v_permlane16_swap_b32 v{X+1}, v{X+3}
v_permlane16_swap_b32 v{X+4}, v{X+6}
v_permlane16_swap_b32 v{X+5}, v{X+7}
buffer_store_dwordx4 v[{X}:{X+3}], v8, s[12:15], s31 offen sc0 sc1
buffer_store_dwordx4 v[{X+4}:{X+7}], v8, s[12:15], s32 offen sc0 sc1
s_mov_b32 exec_lo, 0xffff
s_mov_b32 exec_hi, 0xffff
buffer_store_dwordx4 v[{X+8}:{X+11}], v9, s[12:15], s35 offen sc0 sc1
s_mov_b64 exec, -1
{mk(3)}""")
    wfree()
    EACC = 24; UF = 64; W2R = 104
    assert W2R + NR2*8 <= 256
    k.e(f"""s_lshl_b32 s62, s16, 2
s_lshl_b32 s63, s57, 1
s_add_u32 s62, s62, s63
s_mul_i32 s62, s62, 49152
s_lshl_b32 s63, s56, 11
s_add_u32 s62, s62, s63
s_add_u32 s62, s62, {WS_W2}
s_add_u32 s63, s62, 49152
s_mul_i32 s64, s25, {NL2*2048}
s_add_u32 s64, s64, {W2L}""")
    def w2load(n):
        out = []
        for t in range(2):
            if n >= NR2:
                d = ((n-NR2)*2+t)*1024 - (n % 2)*1024
                out += [f"s_add_u32 m0, s64, {d}" if d >= 0 else f"s_sub_u32 m0, s64, {-d}", "s_nop 0",
                        f"buffer_load_dwordx4 v2, s[12:15], s{62+t} offen offset:{(n%2)*1024} lds"]
            else:
                r = W2R + n*8 + 4*t
                out += [f"buffer_load_dwordx4 v[{r}:{r+3}], v2, s[12:15], s{62+t} offen offset:{(n%2)*1024}"]
        if n % 2 == 1: out += ["s_add_u32 s62, s62, 4096", "s_add_u32 s63, s63, 4096"]
        return out
    k.e(f"""s_cmp_eq_u32 s54, 0
s_cbranch_scc1 {L('Yskip')}
s_lshl_b32 s29, s52, 18
s_lshl_b32 s27, s25, 16
s_add_u32 s29, s29, s27
s_add_u32 s29, s29, {WS_HN}
s_lshl_b32 s27, s25, 12""")
    chkaddr(44, 42)
    k.e("v_add_u32 v44, s27, v44\nv_add_u32 v45, 65536, v44\nv_add_u32 v46, 131072, v44")
    if SL2: k.e(f"s_sleep {SL2}")
    def dissue(c):
        return ([f"s_add_u32 m0, s27, {DSLOT[c]*16384}", f"s_add_u32 s32, s29, {c*4096}"] +
                [f"buffer_load_dwordx4 v2, s[12:15], s32 offen offset:{i*1024} sc1 lds" for i in range(4)])
    def dchk(c): return [f"ds_read_b32 v40, v{44+DSLOT[c]//4} offset:{(DSLOT[c]%4)*16384}"]
    post = {}; n2 = 0
    for cc in range(W2S, 16):
        post[cc] = w2load(n2) + w2load(n2+1); n2 += 2
    loader('ld', 16, DSLOT, DSCHED, dissue, 4, dchk, post)
    k.e("s_setprio 0")
    for _ in range(W2X):
        for x in w2load(n2): k.e(x)
        n2 += 1
    assert n2 <= NR2
    k.e(f"s_barrier\ns_branch {L('Yw2')}")
    k.label('Yskip')
    k.e("s_setprio 0")
    for n in range(n2):
        for x in w2load(n): k.e(x)
    k.label('Yw2')
    for n in range(n2, 24):
        for x in w2load(n): k.e(x)
        k.e(f"s_waitcnt vmcnt({PL2})")
    k.e(f"""s_mov_b32 s44, s42
s_mov_b32 s45, s43""")
    k.srd(40, 40, SZ['b2']); k.srd(44, 44, SZ['out'])
    k.e(f"""s_lshl_b32 s27, s19, 4
v_add_u32 v8, s27, v6
v_mul_u32_u24 v9, 1280, v8
v_lshl_add_u32 v9, v7, 3, v9
s_mul_i32 s27, s17, 160
v_add_u32 v9, s27, v9
v_lshlrev_b32 v8, 1, v8
buffer_load_ushort v12, v8, s[40:43], 0 offen
s_lshl_b32 s27, s56, 11
v_add_u32 v3, s27, v2
v_add_u32 v4, 61440, v3
v_add_u32 v10, {2*61440}, v3
v_add_u32 v5, s64, v2
s_barrier""")
    def ureads(i):
        c, s = i//2, i % 2
        sl = ESLOT[c]; base = (3, 4, 10)[sl//3]; off = (sl % 3)*20480 + s*1024
        b = UF + 20*(i & 1)
        return [f"ds_read_b128 v[{b+4*nt}:{b+4*nt+3}], v{base} offset:{off + nt*4096}" for nt in range(5)]
    def w2src(i, t): return W2R + (i if i < NR2 else i - NR2)*8 + 4*t
    def w2read(i): return [f"ds_read_b128 v[{w2src(i, t)}:{w2src(i, t)+3}], v5 offset:{((i-NR2)*2+t)*1024}" for t in range(2)]
    k.e("s_waitcnt vmcnt(0)\ns_barrier")
    k.e(mk(4))
    if TS: k.e("s_waitcnt lgkmcnt(0)")
    for r in ureads(0): k.e(r)
    k.e("s_setprio 3")
    pend = 0
    for i in range(24):
        b = UF + 20*(i & 1)
        rd = ureads(i+1) if i < 23 else []
        for nt in range(5):
            k.e(f"s_waitcnt lgkmcnt({4 + pend if rd else 4-nt})")
            for t in range(2):
                a = EACC + 20*t + 4*nt
                c = "0" if i == 0 else f"v[{a}:{a+3}]"
                k.e(f"v_mfma_f32_16x16x32_bf16 v[{a}:{a+3}], v[{b+4*nt}:{b+4*nt+3}], v[{w2src(i, t)}:{w2src(i, t)+3}], {c}")
                if nt == 0 and t == 0 and i % 2 == 1 and i < 23: k.e("s_barrier")
                if rd and t == 0: k.e(rd[nt])
        pend = 0
        if i < NL2:
            for r in w2read(NR2 + i): k.e(r)
            pend = 2
    k.e(mk(5))
    KP = 160
    k.e(f"""s_mul_i32 s28, s25, 5120
s_add_u32 s28, s28, {4*20480}
v_add_u32 v3, s28, v2
s_xor_b32 s28, s25, 1
s_mul_i32 s28, s28, 5120
s_add_u32 s28, s28, {4*20480}
v_add_u32 v4, s28, v2
v_lshlrev_b32 v12, 16, v12
s_cmp_eq_u32 s56, 0
s_cbranch_scc1 {L('ek0')}""")
    for q in (1, 0):
        if q == 0: k.label('ek0')
        for nt in range(5):
            a = EACC + 20*(q ^ 1) + 4*nt
            k.e(f"ds_write_b128 v3, v[{a}:{a+3}] offset:{nt*1024}")
        for nt in range(5):
            a = EACC + 20*q + 4*nt; x = HR + 2*nt; p = KP + 4*nt
            k.e(f"""v_lshlrev_b32 v{p}, 16, v{x}
v_and_b32 v{p+1}, 0xffff0000, v{x}
v_lshlrev_b32 v{p+2}, 16, v{x+1}
v_and_b32 v{p+3}, 0xffff0000, v{x+1}
v_pk_add_f32 v[{a}:{a+1}], v[{a}:{a+1}], v[12:13] op_sel_hi:[1,0]
v_pk_add_f32 v[{a+2}:{a+3}], v[{a+2}:{a+3}], v[12:13] op_sel_hi:[1,0]
v_pk_add_f32 v[{p}:{p+1}], v[{p}:{p+1}], v[{a}:{a+1}]
v_pk_add_f32 v[{p+2}:{p+3}], v[{p+2}:{p+3}], v[{a+2}:{a+3}]""")
        if q == 1: k.e(f"s_branch {L('ekd')}")
    k.label('ekd')
    k.e("""v_and_b32 v8, 1, v7
v_mul_u32_u24 v8, 24, v8
v_add_u32 v8, v9, v8
s_waitcnt lgkmcnt(0)
s_barrier""")
    for nt in range(5): k.e(f"ds_read_b128 v[{180+4*nt}:{183+4*nt}], v4 offset:{nt*1024}")
    X = 200
    for nt in range(5):
        p = KP + 4*nt; w = 180 + 4*nt; x = X + 2*nt
        k.e(f"""s_waitcnt lgkmcnt({4-nt})
v_pk_add_f32 v[{p}:{p+1}], v[{p}:{p+1}], v[{w}:{w+1}]
v_pk_add_f32 v[{p+2}:{p+3}], v[{p+2}:{p+3}], v[{w+2}:{w+3}]
v_cvt_pk_bf16_f32 v{x}, v{p}, v{p+1}
v_cvt_pk_bf16_f32 v{x+1}, v{p+2}, v{p+3}""")
    k.e(f"""v_permlane16_swap_b32 v{X}, v{X+2}
v_permlane16_swap_b32 v{X+1}, v{X+3}
v_permlane16_swap_b32 v{X+4}, v{X+6}
v_permlane16_swap_b32 v{X+5}, v{X+7}
buffer_store_dwordx2 v[{X+8}:{X+9}], v9, s[44:47], 0 offen offset:128
buffer_store_dwordx4 v[{X}:{X+3}], v8, s[44:47], 0 offen
buffer_store_dwordx4 v[{X+4}:{X+7}], v8, s[44:47], 0 offen offset:64""")
    ts_end(k, TS, 2, 12, 40)
    k.label('end')
    k.e("s_endpgm")
    for x in stubs: k.e(x)
    return k
```

```python
from variant import *
import re
def cyc(s):
    a = s.index("tail_kernel:\n"); y = s.index("L_tail_kernel_Y:")
    X = s[a:y]; Y = s[y:]
    X = X.replace("s_memrealtime s[94:95]", "s_nop 0").replace("s_memrealtime s[92:93]", "s_memtime s[94:95]").replace("s_memrealtime s[90:91]", "s_memtime s[92:93]")
    Y = Y.replace("s_memrealtime s[92:93]", "s_memtime s[92:93]").replace("s_memrealtime s[94:95]", "s_memtime s[94:95]")
    return s[:a] + X + Y
V = {"cyc": cyc(build(TS=True)),
     "nodma_cyc": cyc(variant("tail_kernel", drop=[r"sc1 lds", r"s_cbranch_vccnz L_tail_kernel_l"])),
     "nodma": variant("tail_kernel", drop=[r"sc1 lds", r"s_cbranch_vccnz L_tail_kernel_l"]),
     "nomfma": variant("tail_kernel", drop=[r"v_mfma_f32_16x16x32_bf16 v\[([0-9]|[0-5][0-9]|6[0-3]):"]),
     "nomfma_cyc": cyc(variant("tail_kernel", drop=[r"v_mfma_f32_16x16x32_bf16 v\[([0-9]|[0-5][0-9]|6[0-3]):"])),
}
for n, s in V.items(): open(f"v_{n}.s", "w").write(s)
```

```python
NAME = "sequential_preLN__mha_block__mixer_token_mlp__prompt"
S, D, H, DH, F = 2048, 640, 32, 20, 1536
KA = dict(x=0, wqkv=8, wo=16, bx=24, w1=32, b1=40, w2=48, b2=56, out=64, dbg=72, ws=80)
SZ = dict(x=S*D*2, wqkv=D*3*D*2, wo=D*D*2, w1=S*F*2, b1=F*2, w2=F*S*2, b2=S*2, out=S*D*2, dbg=256)
WS_QP = 0x000000
WS_KP = 0x280000
WS_VP = 0x500000
WS_OI = 0x780000
WS_HN = 0xA00000
WS_UI = 0xC80000
WS_WO = 0xE60000
WS_ST = 0xF40000
WS_PX = 0xF80000
WS_PW = 0xFD0000
WS_FC = 0xFF8000
WS_FD = 0x1000000
WS_FB = 0x1008000
WS_FA = 0x1010000
WS_W1 = 0x1020000
WS_W2 = 0x1620000
WS_TS = 0x1C20000
WS_SIZE = 0x1D20000

def vr(a, n=1):
    return f"v{a}" if n == 1 else f"v[{a}:{a+n-1}]"
def sr(a, n=1):
    return f"s{a}" if n == 1 else f"s[{a}:{a+n-1}]"

class K:
    def __init__(self, name, grid, block, lds, vgpr, sgpr=102):
        self.name, self.grid, self.block, self.lds, self.vgpr, self.sgpr = name, grid, block, lds, vgpr, sgpr
        self.lines = []
        self.uid = 0
    def e(self, s):
        for l in s.strip("\n").split("\n"):
            l = l.strip()
            if not l: continue
            if l.endswith(":") or l.startswith(".") or l.startswith(";"):
                self.lines.append(l)
            else:
                self.lines.append("    " + l)
    def L(self, n): return f"L_{self.name}_{n}"
    def label(self, n): self.lines.append(self.L(n) + ":")
    def srd(self, dst, ptr, nbytes, add=0):
        if add:
            self.e(f"s_add_u32 s{dst}, s{ptr}, {add}\ns_addc_u32 s{dst+1}, s{ptr+1}, 0")
        else:
            if dst != ptr:
                self.e(f"s_mov_b32 s{dst}, s{ptr}\ns_mov_b32 s{dst+1}, s{ptr+1}")
        self.e(f"s_mov_b32 s{dst+2}, {nbytes}\ns_mov_b32 s{dst+3}, 0x00020000")
    def launch_line(self):
        return f"; @launch kernel={self.name} grid=({self.grid},1,1) block=({self.block},1,1) lds={self.lds}"
    def text(self):
        acc = (self.vgpr + 3)//4*4
        return (f".text\n.globl {self.name}\n.p2align 8\n.type {self.name},@function\n{self.name}:\n" + "\n".join(self.lines) + "\n")
    def desc(self):
        acc = (self.vgpr + 3)//4*4
        return f""".p2align 6
.amdhsa_kernel {self.name}
  .amdhsa_next_free_vgpr {self.vgpr}
  .amdhsa_next_free_sgpr {self.sgpr}
  .amdhsa_accum_offset {acc}
  .amdhsa_group_segment_fixed_size 0
  .amdhsa_kernarg_size 88
  .amdhsa_user_sgpr_count 2
  .amdhsa_user_sgpr_kernarg_segment_ptr 1
  .amdhsa_system_sgpr_workgroup_id_x 1
.end_amdhsa_kernel
"""

def f2u(x):
    import struct
    return "0x%08x" % struct.unpack("<I", struct.pack("<f", x))[0]

def assemble_file(kernels, header_comment=""):
    out = []
    out.append(header_comment.rstrip("\n")) if header_comment else None
    for k in kernels: out.append(k.launch_line())
    out.append('.amdgcn_target "amdgcn-amd-amdhsa--gfx950"')
    seen = []
    for k in kernels:
        if k not in seen:
            out.append(k.text()); seen.append(k)
    out.append('.section .rodata,"a"')
    for k in seen: out.append(k.desc())
    return "\n".join(out)

def stamp(k, idx, sreg):
    k.e(f"s_memrealtime s[{sreg}:{sreg+1}]")

def unit_src_voff(k, dst, lane, pitch, t0, gap=16):
    k.e(f"""v_bfe_u32 v{t0}, v{lane}, 3, 2
v_bfe_u32 v{t0+1}, v{lane}, 5, 1
v_mul_u32_u24 v{t0+1}, {gap}, v{t0+1}
v_add_u32 v{t0}, v{t0}, v{t0+1}
v_mul_u32_u24 v{dst}, {pitch}, v{t0}
v_bfe_u32 v{t0}, v{lane}, 4, 1
v_lshlrev_b32 v{t0}, 2, v{t0}
v_and_b32 v{t0+1}, 7, v{lane}
v_xor_b32 v{t0}, v{t0}, v{t0+1}
v_lshl_add_u32 v{dst}, v{t0}, 4, v{dst}""")

def unit_tr_addr(k, dst, lane, t0):
    k.e(f"""v_bfe_u32 v{t0}, v{lane}, 2, 2
v_lshlrev_b32 v{dst}, 7, v{t0}
v_lshrrev_b32 v{t0+1}, 4, v{lane}
v_lshlrev_b32 v{t0+1}, 1, v{t0+1}
v_bfe_u32 v{t0}, v{lane}, 1, 1
v_add_u32 v{t0+1}, v{t0+1}, v{t0}
v_bfe_u32 v{t0}, v{lane}, 3, 1
v_lshlrev_b32 v{t0}, 2, v{t0}
v_xor_b32 v{t0+1}, v{t0+1}, v{t0}
v_lshl_add_u32 v{dst}, v{t0+1}, 4, v{dst}
v_and_b32 v{t0}, 1, v{lane}
v_lshl_add_u32 v{dst}, v{t0}, 3, v{dst}""")

def code_touch(k, start, end, first_s, vt, lane=1, sp=38, n=1):
    u = k.uid; k.uid += 1
    k.e(f"s_getpc_b64 s[{sp}:{sp+1}]")
    k.label(f'pc{u}')
    k.e(f"""s_add_u32 s{sp}, s{sp}, {start}-{k.L(f'pc{u}')}
s_addc_u32 s{sp+1}, s{sp+1}, 0""")
    out = []
    for j in range(n):
        k.e(f"""v_add_u32 v{vt+2*j}, {first_s}, v{lane}
v_add_u32 v{vt+2*j}, {64*j}, v{vt+2*j}
v_lshlrev_b32 v{vt+2*j}, 7, v{vt+2*j}
v_min_u32 v{vt+2*j}, {end}-{start}-4, v{vt+2*j}
v_mov_b32 v{vt+2*j+1}, s{sp+1}
v_add_co_u32 v{vt+2*j}, vcc, s{sp}, v{vt+2*j}
s_nop 1
v_addc_co_u32 v{vt+2*j+1}, vcc, 0, v{vt+2*j+1}, vcc""")
        out.append(f"global_load_dword v{vt+2*j}, v[{vt+2*j}:{vt+2*j+1}], off")
    return out
```

```python
from common import *
from ts import *
import math

def kernel_A(TS=False, TOUCH=0):
    k = K("qkv_kernel", 256, 768, 131072 + 4096, 168)
    STAT = 131072
    L = k.L
    mk = lambda i: f"s_memrealtime s[{84+2*i}:{85+2*i}]" if TS else ""
    ts_begin(k, TS)
    k.e(f"""s_cmp_ge_u32 s2, 256
s_cbranch_scc1 {L('end')}
s_load_dwordx4 s[4:7], s[0:1], {KA['x']}
s_load_dwordx2 s[12:13], s[0:1], {KA['ws']}
s_load_dwordx2 s[40:41], s[0:1], {KA['wo']}
s_load_dwordx2 s[44:45], s[0:1], {KA['dbg']}
s_load_dwordx2 s[48:49], s[0:1], {KA['w1']}
s_load_dwordx2 s[52:53], s[0:1], {KA['w2']}
v_lshrrev_b32 v2, 6, v0
v_and_b32 v1, 63, v0
v_readfirstlane_b32 s18, v2
s_and_b32 s20, s2, 7
s_lshr_b32 s21, s2, 3
s_lshr_b32 s22, s20, 1
s_lshl_b32 s22, s22, 2
s_and_b32 s23, s21, 3
s_add_u32 s22, s22, s23
s_lshl_b32 s16, s22, 7
s_lshr_b32 s23, s21, 2
s_and_b32 s24, s20, 1
s_lshl_b32 s24, s24, 3
s_add_u32 s19, s23, s24
s_lshl_b32 s17, s19, 7
; first K chunk c0 = (rt + ct) % 10
s_add_u32 s35, s22, s19
s_mul_i32 s36, s35, 26
s_lshr_b32 s36, s36, 8
s_mul_i32 s36, s36, 10
s_sub_u32 s35, s35, s36
s_cmp_eq_u32 s19, 15
s_cbranch_scc1 {L('spare')}
s_cmp_lt_u32 s18, 8
s_cbranch_scc1 {L('notloader')}""")
    k.e(f"""s_sub_u32 s25, s18, 8
; vX = (row0 + 8j + l/8)*1280 + ((l%8) ^ ((4j + l/16)&7))*16
v_lshrrev_b32 v2, 3, v1
s_lshl_b32 s26, s25, 3
s_add_u32 s26, s26, s16
v_add_u32 v2, s26, v2
v_mul_u32_u24 v2, 1280, v2
v_lshrrev_b32 v4, 4, v1
s_lshl_b32 s26, s25, 2
v_add_u32 v5, s26, v4
v_and_b32 v6, 7, v5
v_and_b32 v7, 7, v1
v_xor_b32 v6, v6, v7
v_lshl_add_u32 v2, v6, 4, v2
; vW = (4j + l/16)*3840 + col0*2 + ((l%16) ^ ((l/16)<<2))*16
v_mul_u32_u24 v3, 3840, v5
v_and_b32 v6, 15, v1
v_lshlrev_b32 v7, 2, v4
v_xor_b32 v6, v6, v7
v_lshl_add_u32 v3, v6, 4, v3
s_lshl_b32 s26, s17, 1
v_add_u32 v3, s26, v3
s_lshl_b32 s30, s25, 10
s_lshl_b32 s28, s35, 7
s_mul_i32 s29, s35, {64*3840}
s_mov_b32 s33, 0
s_waitcnt lgkmcnt(0)
s_mov_b32 s8, s6
s_mov_b32 s9, s7""")
    k.srd(4, 4, SZ['x']); k.srd(8, 8, SZ['wqkv'])
    if TS: k.srd(12, 12, WS_SIZE)
    k.label('lloop')
    for i in range(4):
        k.e(f"""s_add_u32 m0, s30, {i*4096}
s_add_u32 s32, s28, {i*40960}
buffer_load_dwordx4 v2, s[4:7], s32 offen lds
s_add_u32 m0, s30, {16384 + i*4096}
s_add_u32 s32, s29, {i*61440}
buffer_load_dwordx4 v3, s[8:11], s32 offen lds""")
    k.e(f"""s_add_u32 s28, s28, 128
s_add_u32 s29, s29, {64*3840}
s_cmp_eq_u32 s28, 1280
s_cselect_b32 s28, 0, s28
s_cselect_b32 s29, 0, s29
s_add_u32 s30, s30, 32768
s_and_b32 s30, s30, 0x1ffff
s_add_u32 s33, s33, 1
s_cmp_lt_u32 s33, 3
s_cbranch_scc1 {L('lloop')}
s_waitcnt vmcnt(16)
s_barrier
s_cmp_lt_u32 s33, 10
s_cbranch_scc1 {L('lloop')}""")
    if TOUCH:
      k.srd(48, 48, SZ['w1']); k.srd(52, 52, SZ['w2'])
      k.e(f"""s_mul_i32 s26, s22, 15
s_add_u32 s26, s26, s19
s_lshl_b32 s26, s26, 2
s_add_u32 s26, s26, s25
s_mul_i32 s26, s26, {52*128}
v_lshlrev_b32 v4, 7, v1""")
    tch = """s_mov_b32 exec_hi, 0xfffff
buffer_load_dword v5, v4, s[48:51], s26 offen
buffer_load_dword v6, v4, s[52:55], s26 offen
s_mov_b32 exec_hi, -1"""
    n = 2 if TOUCH == 7 else 0
    if TOUCH == 7: k.e(tch)
    k.e(f"s_waitcnt vmcnt({8+n})\ns_barrier\ns_waitcnt vmcnt({n})\ns_barrier")
    if TOUCH == 9: k.e(tch)
    k.e("s_barrier")
    if TOUCH == 10: k.e(tch)
    ts_end(k, TS, 0, 12, 40, wait=False)
    k.e("s_endpgm")
    k.label('spare')
    k.e(f"s_cmp_lt_u32 s18, 10\ns_cbranch_scc1 {L('spw')}")
    k.e(f"s_cmp_eq_u32 s18, 11\ns_cbranch_scc1 {L('end')}\ns_lshl_b32 s20, s22, 5\ns_mov_b32 exec_hi, 0")
    for x in code_touch(k, "main_kernel", "L_main_kernel_last", "s20", 4): k.e(x)
    k.e("s_endpgm")
    k.label('spw')
    unit_src_voff(k, 2, 1, 1280, 4, gap=8)
    unit_src_voff(k, 6, 1, 1280, 4, gap=80)
    unit_tr_addr(k, 3, 1, 4)
    for n in range(40): assert (n*52) >> 8 == n//5
    k.e(f"""v_lshrrev_b32 v4, 4, v1
s_lshl_b32 s20, s18, 2
v_add_u32 v4, s20, v4
v_mul_u32_u24 v5, 52, v4
v_lshrrev_b32 v5, 8, v5
s_mov_b32 s21, {102400 - 5120}
v_lshlrev_b32 v4, 10, v4
v_mad_u32_u24 v4, v5, s21, v4
v_and_b32 v5, 15, v1
v_lshl_add_u32 v4, v5, 4, v4
s_mul_i32 s23, s18, 5120
v_add_u32 v3, s23, v3
s_mul_i32 s24, s22, 5
s_lshl_b32 s25, s18, 7
s_waitcnt lgkmcnt(0)""")
    k.srd(12, 12, WS_SIZE); k.srd(40, 40, SZ['wo'])
    for m in range(5):
        k.e(f"""s_add_u32 s26, s24, {m}
s_lshr_b32 s27, s26, 2
s_and_b32 s36, s26, 3
s_lshr_b32 s28, s26, 1
s_mul_i32 s28, s28, 20
s_and_b32 s29, s26, 1
s_lshl_b32 s29, s29, 2
s_add_u32 s28, s28, s29
s_sub_u32 s29, s27, 16
s_lshl_b32 s29, s29, 3
s_add_u32 s29, s29, s36
s_mul_i32 s29, s29, 20
s_add_u32 s29, s29, 16
s_cmp_lt_u32 s26, 64
s_cselect_b32 s28, s28, s29
s_cselect_b64 vcc, -1, 0
s_mul_i32 s28, s28, 1280
s_add_u32 s28, s28, s25
v_cndmask_b32 v7, v6, v2, vcc
s_add_u32 m0, s23, {m*1024}
s_mul_i32 s27, s27, 5120
buffer_load_dwordx4 v7, s[40:43], s28 offen lds
s_lshl_b32 s36, s36, 8
s_add_u32 s27, s27, s36
s_add_u32 s{30+m}, s27, {WS_WO}""")
    k.e("s_waitcnt vmcnt(0)")
    for m in range(5):
        k.e(f"ds_read_b64_tr_b16 v[{16+4*m}:{17+4*m}], v3 offset:{m*1024}\nds_read_b64_tr_b16 v[{18+4*m}:{19+4*m}], v3 offset:{m*1024+512}")
    k.e("s_waitcnt lgkmcnt(0)")
    for m in range(5):
        k.e(f"buffer_store_dwordx4 v[{16+4*m}:{19+4*m}], v4, s[12:15], s{30+m} offen")
    k.e("s_endpgm")
    k.label('notloader')
    def addr_regs(xrow_s, wblk_s):
        k.e(f"""v_add_u32 v4, {xrow_s}, v10
v_lshlrev_b32 v4, 7, v4
v_lshrrev_b32 v5, 1, v10
v_and_b32 v5, 7, v5
v_xor_b32 v5, v5, v11
v_lshl_add_u32 v12, v5, 4, v4
v_xor_b32 v13, 32, v12
v_xor_b32 v14, 64, v12
v_xor_b32 v15, 96, v12
v_bfe_u32 v4, v1, 2, 2
v_lshl_add_u32 v5, v11, 3, v4
v_lshlrev_b32 v5, 8, v5
v_bfe_u32 v6, v1, 4, 1
v_lshlrev_b32 v6, 1, v6
v_bfe_u32 v7, v1, 1, 1
v_add_u32 v6, v6, v7
v_add_u32 v6, {wblk_s}, v6
v_lshlrev_b32 v4, 2, v4
v_xor_b32 v6, v6, v4
v_lshl_add_u32 v5, v6, 4, v5
v_and_b32 v6, 1, v1
v_lshl_add_u32 v5, v6, 3, v5
v_add_u32 v16, 16384, v5""")
    k.e(f"""v_and_b32 v10, 31, v1
v_lshrrev_b32 v11, 5, v1
s_waitcnt lgkmcnt(0)""")
    k.srd(12, 12, WS_SIZE)
    k.e(f"""s_cmp_lt_u32 s18, 4
s_cbranch_scc1 {L('compute')}""")
    k.e("s_sub_u32 s25, s18, 4\ns_lshl_b32 s26, s25, 5\ns_lshl_b32 s27, s25, 2")
    addr_regs("s26", "s27")
    k.e(f"""v_mov_b32 v24, 0x3f803f80
v_mov_b32 v26, 0
v_mov_b32 v27, 0
v_mov_b32 v28, 0
v_mov_b32 v29, 0
v_mov_b32 v30, 0
v_mov_b32 v31, 0
s_mov_b32 s33, 0
s_mov_b32 s34, 0""")
    for v in range(31): assert (v*26) >> 8 == v//10
    k.srd(44, 44, 256)
    k.e(f"""v_mov_b32 v22, 0
s_or_b32 s36, s2, s25
s_cmp_lg_u32 s36, 0
s_cbranch_scc1 {L('notag')}
s_memrealtime s[36:37]
s_waitcnt lgkmcnt(0)
s_or_b32 s36, s36, 1
v_mov_b32 v23, s36
s_mov_b64 exec, 1
buffer_store_dword v23, v22, s[44:47], 0 offen sc0 sc1
s_mov_b64 exec, -1""")
    k.label('notag')
    k.e(f"""v_add_u32 v8, s26, v10
v_lshlrev_b32 v18, 4, v8
v_lshlrev_b32 v19, 3, v8
s_mul_i32 s28, s22, 20480
s_add_u32 s28, s28, {WS_PX}
s_mul_i32 s29, s19, 10240
s_add_u32 s29, s29, {WS_PW}
s_lshl_b32 s30, s35, 11
s_add_u32 s30, s30, s28
s_lshl_b32 s31, s35, 10
s_add_u32 s31, s31, s29
s_mov_b32 s33, 0x200000
s_barrier
buffer_load_dword v23, v22, s[44:47], 0 offen sc1""")
    for ks in range(4):
        k.e(f"ds_read_b128 v[{32+4*ks}:{35+4*ks}], v{12+ks}")
    for t in range(8):
        k.e(f"ds_read_b64_tr_b16 v[{48+2*t}:{49+2*t}], v16 offset:{(16*(t//2)+4*(t%2))*256}")
    for ks in range(4):
        k.e(f"s_waitcnt lgkmcnt({11-ks})")
        for d in range(4):
            r = 32+4*ks+d
            k.e(f"v_dot2c_f32_bf16 v{26+2*(d&1)}, v{r}, v24\nv_dot2c_f32_bf16 v{27+2*(d&1)}, v{r}, v{r}")
    k.e("s_waitcnt lgkmcnt(0)\ns_barrier")
    for d in range(16):
        k.e(f"v_dot2c_f32_bf16 v{30+(d&1)}, v{48+d}, v24")
    def halves():
        k.e("""v_mov_b32 v28, v26
v_mov_b32 v29, v27
v_mov_b32 v31, v30
s_nop 1
v_permlane32_swap_b32 v26, v28
v_permlane32_swap_b32 v27, v29
v_permlane32_swap_b32 v30, v31
s_nop 1
v_pk_add_f32 v[26:27], v[26:27], v[28:29]
v_add_f32 v30, v30, v31""")
    k.e("""v_pk_add_f32 v[26:27], v[26:27], v[28:29]
s_nop 2
v_add_f32 v30, v30, v31""")
    halves()
    k.e(f"{mk(0)}\ns_barrier")
    k.label('tpoll')
    k.e(f"""s_waitcnt vmcnt(0)
v_cmp_eq_u32 vcc, 0, v23
s_sub_u32 s33, s33, 1
s_cbranch_vccz {L('tgot')}
s_cmp_eq_u32 s33, 0
s_cbranch_scc1 {L('tgot')}
buffer_load_dword v23, v22, s[44:47], 0 offen sc1
s_branch {L('tpoll')}""")
    k.label('tgot')
    k.e(f"""{mk(1)}
v_mov_b32 v28, v23
v_mov_b32 v29, v23
v_mov_b32 v31, v23
s_mov_b32 exec_hi, 0
buffer_store_dwordx4 v[26:29], v18, s[12:15], s30 offen sc0 sc1
buffer_store_dwordx2 v[30:31], v19, s[12:15], s31 offen sc0 sc1
s_mov_b32 exec_hi, -1
v_mul_u32_u24 v21, 10240, v11
v_add_u32 v18, v18, v21
v_lshrrev_b32 v21, 1, v21
v_add_u32 v19, v19, v21
s_add_u32 s30, s28, 4096
s_add_u32 s31, s28, 8192
s_add_u32 s32, s29, 4096
s_barrier
s_barrier
s_barrier
s_barrier
{mk(2)}""")
    def gather():
        for n in range(5):
            k.e(f"buffer_load_dwordx4 v[{32+4*n}:{35+4*n}], v18, s[12:15], s{(28,28,30,30,31)[n]} offen offset:{(n%2)*2048} sc1")
        for n in range(5):
            k.e(f"buffer_load_dwordx2 v[{52+2*n}:{53+2*n}], v19, s[12:15], s{(29,29,29,29,32)[n]} offen offset:{(n%4)*1024} sc1")
    gather()
    k.e(f"s_barrier\ns_barrier\n{mk(3)}")
    k.label('poll')
    k.e("s_waitcnt vmcnt(0)\nv_xor_b32 v20, v23, v34")
    for r in (38, 42, 46, 50, 53, 55, 57, 59, 61):
        k.e(f"v_xor_b32 v21, v23, v{r}\nv_or_b32 v20, v20, v21")
    k.e(f"""v_cmp_ne_u32 vcc, 0, v20
s_sub_u32 s33, s33, 1
s_cbranch_vccz {L('got')}
s_cmp_lt_i32 s33, 1
s_cbranch_scc1 {L('got')}""")
    gather()
    k.e(f"s_branch {L('poll')}")
    k.label('got')
    csc = (DH ** -0.5) * math.log2(math.e)
    k.e(f"""{mk(4)}
s_barrier
v_pk_add_f32 v[32:33], v[32:33], v[36:37]
v_pk_add_f32 v[40:41], v[40:41], v[44:45]
v_add_f32 v52, v52, v54
v_add_f32 v56, v56, v58
v_pk_add_f32 v[32:33], v[32:33], v[48:49]
v_add_f32 v52, v52, v60
v_pk_add_f32 v[26:27], v[32:33], v[40:41]
v_add_f32 v30, v52, v56""")
    halves()
    k.e(f"""v_mul_f32 v26, {f2u(-1.0/D)}, v26
v_mul_f32 v28, {f2u(1.0/D)}, v27
v_fma_f32 v28, -v26, v26, v28
v_max_f32 v28, 0, v28
v_add_f32 v28, {f2u(1e-5)}, v28
v_rsq_f32 v27, v28
s_cmp_lt_u32 s19, 5
s_cselect_b32 s27, {f2u(csc)}, 1.0
v_mul_f32 v27, s27, v27
v_lshlrev_b32 v5, 2, v8
v_add_u32 v5, {STAT}, v5
v_lshlrev_b32 v6, 3, v8
v_add_u32 v6, {STAT}, v6
ds_write_b32 v5, v27
ds_write_b32 v5, v26 offset:512
ds_write_b32 v5, v30 offset:1024
ds_write_b64 v6, v[26:27] offset:2048
s_waitcnt lgkmcnt(0)
s_barrier""")
    ts_end(k, TS, 0, 12, 40)
    k.e("s_endpgm")
    k.label('compute')
    k.e("s_setprio 2\ns_lshr_b32 s25, s18, 1\ns_and_b32 s26, s18, 1\ns_lshl_b32 s27, s25, 6\ns_lshl_b32 s28, s26, 3")
    addr_regs("s27", "s28")
    k.e("v_xor_b32 v17, 64, v16")
    ACC = 96; FR = 32
    for r in range(64): k.e(f"v_mov_b32 v{ACC+r}, 0")
    def reads(ks):
        b = FR + 16*ks
        return [f"ds_read_b128 v[{b}:{b+3}], v{18+ks}",
                f"ds_read_b64_tr_b16 v[{b+8}:{b+9}], v22 offset:{16*ks*256}",
                f"ds_read_b64_tr_b16 v[{b+10}:{b+11}], v22 offset:{(16*ks+4)*256}",
                f"ds_read_b128 v[{b+4}:{b+7}], v{18+ks} offset:4096",
                f"ds_read_b64_tr_b16 v[{b+12}:{b+13}], v23 offset:{16*ks*256}",
                f"ds_read_b64_tr_b16 v[{b+14}:{b+15}], v23 offset:{(16*ks+4)*256}"]
    def mfmas(ks, vmode):
        b = FR + 16*ks
        out = []
        for (mb, nb) in ((0,0),(1,0),(0,1),(1,1)):
            a = ACC + (mb*2+nb)*16
            X = f"v[{b+4*mb}:{b+4*mb+3}]"; W = f"v[{b+8+4*nb}:{b+8+4*nb+3}]"
            A, B = (X, W) if vmode else (W, X)
            out.append(f"v_mfma_f32_32x32x16_bf16 v[{a}:{a+15}], {A}, {B}, v[{a}:{a+15}]")
        return out
    k.e("s_mov_b32 s33, 0\ns_mov_b32 s34, 0")
    for t in range(6): k.e(f"v_mov_b32 v{18+t}, v{12+t}")
    ts_mark(k, TS, 0)
    k.e("s_barrier")
    ts_mark(k, TS, 1); ts_cyc(k, TS, 4)
    if TS: k.e("s_waitcnt lgkmcnt(0)")
    for r in reads(0) + reads(1): k.e(r)
    k.e(f"""s_cmp_ge_u32 s19, 10
s_cbranch_scc1 {L('cloopV')}""")
    for vmode in (0, 1):
        k.label('cloopV' if vmode else 'cloopQ')
        for ks in range(4):
            rd = reads((ks+2) % 4); mf = mfmas(ks, vmode)
            if ks == 2:
                k.e("s_waitcnt lgkmcnt(6)"); k.e(mf[0])
                k.e("s_add_u32 s34, s34, 32768\ns_and_b32 s34, s34, 0x1ffff")
                for t in range(6): k.e(f"v_add_u32 v{18+t}, s34, v{12+t}")
                k.e(mf[1]); k.e("s_waitcnt lgkmcnt(0)\ns_barrier")
                k.e(rd[0]); k.e(rd[1]); k.e(mf[2]); k.e(rd[2]); k.e(rd[3]); k.e(mf[3]); k.e(rd[4]); k.e(rd[5])
            else:
                if ks != 3: k.e("s_waitcnt lgkmcnt(6)")
                k.e(mf[0]); k.e(rd[0]); k.e(rd[1])
                k.e(mf[1]); k.e(rd[2]); k.e(rd[3])
                k.e(mf[2]); k.e(rd[4]); k.e(rd[5])
                if ks == 3: k.e("s_add_u32 s33, s33, 1\ns_cmp_lt_u32 s33, 10")
                k.e(mf[3])
        k.e(f"""s_cbranch_scc1 {L('cloopV' if vmode else 'cloopQ')}
s_waitcnt lgkmcnt(0)""")
        ts_mark(k, TS, 2); ts_cyc(k, TS, 5)
        if TS: k.e("s_waitcnt lgkmcnt(0)")
        E0 = 32
        if not vmode:
            k.e(f"""s_lshl_b32 s27, s26, 8
v_lshlrev_b32 v4, 4, v11
v_add_u32 v4, s27, v4
v_add_u32 v4, {STAT+1024}, v4
s_lshl_b32 s27, s25, 6
v_add_u32 v6, s27, v10
v_lshlrev_b32 v5, 3, v6
v_add_u32 v5, {STAT+2048}, v5
ds_read_b64 v[{E0+32}:{E0+33}], v5
ds_read_b64 v[{E0+34}:{E0+35}], v5 offset:256""")
            for nb in range(2):
                for g in range(4):
                    r = E0 + nb*16 + g*4
                    k.e(f"ds_read_b128 v[{r}:{r+3}], v4 offset:{nb*128 + g*32}")
            k.e(f"""v_add_u32 v6, s16, v6
v_lshlrev_b32 v6, 4, v6
v_lshl_add_u32 v6, v11, 15, v6
s_lshl_b32 s27, s19, 4
s_lshl_b32 s28, s26, 3
s_add_u32 s27, s27, s28
s_lshl_b32 s27, s27, 15""")
            assert WS_KP == WS_QP + 80*32768 and WS_QP == 0
            n = 0
            for nb in range(2):
                for gp in range(2):
                    k.e(f"s_add_u32 s28, s27, {(nb*4+gp*2)*32768}")
                    k.e(f"s_waitcnt lgkmcnt({6 - nb*4 - gp*2})")
                    for mb in range(2):
                        a = ACC + (mb*2+nb)*16 + gp*8
                        c = E0 + nb*16 + gp*8
                        m = E0 + 32 + 2*mb
                        o = E0 + 36 + 4*(n % 3); n += 1
                        for p in range(0, 8, 2):
                            k.e(f"v_pk_fma_f32 v[{a+p}:{a+p+1}], v[{c+p}:{c+p+1}], v[{m}:{m+1}], v[{a+p}:{a+p+1}] op_sel_hi:[1,0,1]")
                        for p in range(0, 8, 2):
                            k.e(f"v_pk_mul_f32 v[{a+p}:{a+p+1}], v[{a+p}:{a+p+1}], v[{m}:{m+1}] op_sel:[0,1] op_sel_hi:[1,1]")
                        for p in (0, 4, 2, 6):
                            k.e(f"v_cvt_pk_bf16_f32 v{o+p//2}, v{a+p}, v{a+p+1}")
                        k.e(f"s_nop 0\nv_permlane32_swap_b32 v{o}, v{o+2}\nv_permlane32_swap_b32 v{o+1}, v{o+3}")
                        k.e(f"buffer_store_dwordx4 v[{o}:{o+3}], v6, s[12:15], s28 offen offset:{mb*512}")
            ts_mark(k, TS, 3)
            ts_end(k, TS, 0, 12, 40)
            k.e("s_endpgm")
        else:
            for nv in range(640): assert (nv*3277) >> 16 == nv//20
            k.e(f"""s_lshl_b32 s27, s25, 8
v_lshlrev_b32 v4, 4, v11
v_add_u32 v4, s27, v4
v_add_u32 v4, {STAT}, v4
s_lshl_b32 s27, s26, 6
v_add_u32 v6, s27, v10
v_lshlrev_b32 v5, 2, v6
v_add_u32 v5, {STAT+1024}, v5
ds_read_b32 v24, v5
ds_read_b32 v26, v5 offset:128""")
            for mb in range(2):
                for g in range(4):
                    b = E0 + mb*32
                    k.e(f"ds_read_b128 v[{b+g*4}:{b+g*4+3}], v4 offset:{mb*128 + g*32}")
                    k.e(f"ds_read_b128 v[{b+16+g*4}:{b+16+g*4+3}], v4 offset:{512 + mb*128 + g*32}")
                if mb == 0:
                    k.e(f"""s_sub_u32 s27, s17, 1280
v_add_u32 v6, s27, v6
v_mul_u32_u24 v7, 320, v11
v_add_u32 v7, {WS_VP}, v7
s_mov_b32 s28, 81920""")
                    for nb in range(2):
                        if nb: k.e("v_add_u32 v6, 32, v6")
                        k.e(f"""v_mul_u32_u24 v8, 3277, v6
v_lshrrev_b32 v8, 16, v8
v_mul_u32_u24 v9, 20, v8
v_sub_u32 v9, v6, v9
v_lshl_add_u32 v9, v9, 4, v7
v_mad_u32_u24 v{18+nb}, v8, s28, v9""")
                    k.e(f"""s_lshr_b32 s27, s16, 5
s_lshl_b32 s28, s25, 1
s_add_u32 s27, s27, s28
s_mul_i32 s27, s27, 1280
s_waitcnt lgkmcnt(4)""")
            n = 0
            for mb in range(2):
                k.e(f"s_waitcnt lgkmcnt({8 - 8*mb})")
                b = E0 + mb*32
                for nb in range(2):
                    cs = 24 + 2*nb
                    for aa in range(2):
                        a = ACC + (mb*2+nb)*16 + aa*8
                        o = 160 + 4*(n % 2); n += 1
                        for p in range(0, 8, 2):
                            k.e(f"v_pk_fma_f32 v[{a+p}:{a+p+1}], v[{b+16+aa*8+p}:{b+16+aa*8+p+1}], v[{cs}:{cs+1}], v[{a+p}:{a+p+1}] op_sel_hi:[1,0,1]")
                        for p in range(0, 8, 2):
                            k.e(f"v_pk_mul_f32 v[{a+p}:{a+p+1}], v[{a+p}:{a+p+1}], v[{b+aa*8+p}:{b+aa*8+p+1}]")
                        for p in range(0, 8, 2):
                            k.e(f"v_cvt_pk_bf16_f32 v{o+p//2}, v{a+p}, v{a+p+1}")
                        k.e(f"buffer_store_dwordx4 v[{o}:{o+3}], v{18+nb}, s[12:15], s27 offen offset:{mb*1280 + aa*640}")
            ts_mark(k, TS, 3)
            ts_end(k, TS, 0, 12, 40)
            k.e("s_endpgm")
    k.label('end')
    k.e("s_endpgm")
    return k
```

```python
from common import *
from ts import *
from kT import tail, SPIN, tile_map

OOB = 0x80000000

def kernel_G(TS=False, force_slow=False, T={}, LOCAL=False, AN0='merge', TCH=(0, 3, 7, 11), FILL=(20, 22, 21)):
    GCH = 12288; SLOT = 2*GCH
    ONES = 4*SLOT; FLAG = ONES + 5120
    MRG = 104448
    WOX = MRG + 24576
    CNT = 160*1024 - 64
    NE1, NE2 = 14, 19
    assert WOX + 32768 <= CNT
    k = K("main_kernel", 256, 512, 160*1024, 256)
    L = k.L
    Q = 12; KF = [22, 28]; VF = [36, 44]; P = 52; O = 68; SB = [100, 132]
    vD = 5
    aK1 = [2, 3]; aK2 = [8, 9]; aV = [4, 10, 11, 164]
    vR = [165, 166, 167]
    oA, oB, vTag, vZ = 168, 169, 170, 171
    XREG = 172
    PRE = 184
    uS1, uS2, uT, uD1, uD2, vX = 190, 191, 192, 193, 194, 195
    uR = 200; vF = 212; t0 = 230; uT2 = 196; vC = 216; vP1 = 218; vP2 = 219; vM = 220
    AMAP = "s_lshr_b32 s16, s2, 3\ns_and_b32 s17, s2, 7\ns_lshl_b32 s17, s17, 8" if LOCAL else """s_and_b32 s20, s2, 7
s_lshr_b32 s21, s2, 3
s_lshl_b32 s16, s20, 2
s_lshr_b32 s22, s21, 3
s_add_u32 s16, s16, s22
s_and_b32 s17, s21, 7
s_lshl_b32 s17, s17, 8"""
    ts_begin(k, TS)
    k.e(f"""s_cmp_ge_u32 s2, 256
s_cbranch_scc1 {L('end')}
s_load_dwordx2 s[12:13], s[0:1], {KA['ws']}
s_load_dwordx2 s[60:61], s[0:1], {KA['w1']}
s_load_dwordx2 s[64:65], s[0:1], {KA['w2']}
s_load_dwordx2 s[68:69], s[0:1], {KA['x']}
s_load_dwordx2 s[4:5], s[0:1], {KA['dbg']}
v_lshrrev_b32 v2, 6, v0
v_and_b32 v1, 63, v0
v_readfirstlane_b32 s18, v2
{AMAP}
s_lshr_b32 s22, s16, 1
s_and_b32 s23, s16, 1
s_mul_i32 s24, s22, 5
s_add_u32 s25, s24, 2
s_mul_i32 s26, s23, 3
s_add_u32 s24, s24, s26
s_lshl_b32 s24, s24, 15
s_lshl_b32 s25, s25, 15
s_lshl_b32 s23, s23, 3
s_and_b32 s19, s18, 3
s_lshr_b32 s20, s18, 2
v_and_b32 v6, 31, v1
v_lshrrev_b32 v7, 5, v1
v_lshlrev_b32 v{vD}, 4, v1
s_lshl_b32 s21, s20, 14
s_add_u32 s21, s21, {WS_KP}
s_add_u32 s26, s24, s21
s_add_u32 s27, s25, s21
s_mul_i32 s28, s16, 81920
s_mul_i32 s29, s20, 40960
s_add_u32 s28, s28, s29
s_add_u32 s28, s28, {WS_VP}
s_mov_b32 s46, s26
s_mov_b32 s47, s26
s_add_u32 s48, s26, {32768-2048}
s_cmp_eq_u32 s19, 1
s_cbranch_scc0 {L('nj1')}
s_add_u32 s46, s26, {32768+1024}
s_sub_u32 s47, s27, 1024
s_mov_b32 s48, s47""")
    k.label('nj1')
    k.e(f"""s_mov_b32 s49, 2048
s_cmp_ge_u32 s19, 2
s_cbranch_scc0 {L('nj2')}
s_sub_u32 s29, s19, 2
s_mul_i32 s29, s29, 3072
s_add_u32 s46, s28, s29
s_mov_b32 s47, s46
s_mov_b32 s48, s46
s_mov_b32 s49, 5120""")
    k.label('nj2')
    k.e(f"""v_add_u32 v{vR[0]}, s46, v{vD}
v_add_u32 v{vR[1]}, s47, v{vD}
v_add_u32 v{vR[2]}, s48, v{vD}
s_mul_i32 s50, s18, 3072
s_lshl_b32 s29, s19, 6
s_add_u32 s17, s17, s29
s_lshl_b32 s29, s17, 4
s_add_u32 s30, s24, s29
s_add_u32 s31, s25, s29
s_add_u32 s31, s31, s23
v_lshlrev_b32 v35, 4, v6
v_lshl_add_u32 v34, v7, 15, v35
s_mov_b32 s37, 0
s_waitcnt lgkmcnt(0)""")
    k.srd(12, 12, WS_SIZE)
    assert WS_QP == 0
    q = []
    def ring(c):
        if c < 8:
            return ([f"s_add_u32 m0, s50, {(c%4)*SLOT}", "s_mov_b32 s52, 0" if c == 0 else "s_add_u32 s52, s52, s49"] +
                    [f"buffer_load_dwordx4 v{vR[i]}, s[12:15], s52 offen offset:{i*1024} lds ;D{c}" for i in range(3)])
        return ([f"s_add_u32 m0, s50, {(c%4)*SLOT}", f"s_add_u32 s52, s79, {(c-8)*SLOT}"] +
                [f"buffer_load_dwordx4 v{vD}, s[12:15], s52 offen offset:{i*1024} lds ;D{c}" for i in range(3)])
    def emit(x):
        if x.startswith("!"): return k.e(x[1:])
        if x.startswith("buffer_") or x.startswith("global_"): q.append(x.split(";")[1] if ";" in x else "-")
        k.e(x.split(";")[0])
    def need(*names):
        last = max([i for i, n in enumerate(q) if n in names] + [-1])
        n = len(q) - 1 - last
        del q[:last+1]
        return min(n, 63)
    for x in ring(0): k.e(x.split(";")[0])
    k.e(f"""buffer_load_dwordx4 v[{Q}:{Q+3}], v34, s[12:15], s30 offen
buffer_load_dwordx4 v[{Q+4}:{Q+7}], v34, s[12:15], s30 offen offset:512
buffer_load_dwordx2 v[{Q+8}:{Q+9}], v{vD}, s[12:15], s31 offen""")
    k.srd(4, 4, 256)
    k.e(f"""v_mov_b32 v{vZ}, 0
s_or_b32 s36, s2, s18
s_cmp_lg_u32 s36, 0
s_cbranch_scc1 {L('notag')}
s_memrealtime s[38:39]
s_waitcnt lgkmcnt(0)
s_lshl_b32 s38, s38, 2
s_or_b32 s38, s38, 1
v_mov_b32 v{vTag}, s38
s_mov_b64 exec, 1
buffer_store_dword v{vTag}, v{vZ}, s[4:7], 0 offen sc0 sc1
s_mov_b64 exec, -1""")
    k.label('notag')
    k.e(f"""s_mul_i32 s29, s20, {GCH}
v_lshl_add_u32 v{aK1[0]}, v7, 11, v35
v_add_u32 v{aK1[0]}, s29, v{aK1[0]}
v_add_u32 v{aK1[1]}, {2*SLOT}, v{aK1[0]}
s_add_u32 s21, s29, 4096
s_add_u32 s21, s21, s23
v_add_u32 v{aK2[0]}, s21, v35
v_add_u32 v{aK2[1]}, {2*SLOT}, v{aK2[0]}
v_mul_u32_u24 v{t0+1}, 320, v7
v_add_u32 v{t0+1}, v{t0+1}, v35
s_add_u32 s21, s29, 6144
v_add_u32 v{t0+1}, s21, v{t0+1}
v_cmp_gt_u32 vcc, 20, v6
v_cmp_eq_u32 s[40:41], 20, v6
v_mov_b32 v{t0+2}, {ONES+16}
v_mov_b32 v{t0+3}, {ONES}
v_cndmask_b32 v{t0+2}, v{t0+2}, v{t0+3}, s[40:41]""")
    for sl in range(4):
        if sl: k.e(f"v_add_u32 v{t0+1}, {SLOT}, v{t0+1}")
        k.e(f"v_cndmask_b32 v{aV[sl]}, v{t0+2}, v{t0+1}, vcc")
    k.e(f"""v_and_b32 v{t0+1}, 7, v1
v_cmp_gt_u32 vcc, 4, v{t0+1}
v_mov_b32 v{t0+2}, 0x3f803f80
v_lshrrev_b32 v{t0+3}, 3, v1
v_cndmask_b32 v{t0+2}, 0, v{t0+2}, vcc
v_mul_u32_u24 v{t0+3}, 640, v{t0+3}
v_lshl_add_u32 v{t0+1}, v{t0+1}, 2, v{t0+3}
v_add_u32 v{t0+1}, {ONES}, v{t0+1}
ds_write_b32 v{t0+1}, v{t0+2}
v_mov_b32 v{t0+4}, {FLAG}
ds_write_b32 v{t0+4}, v{vZ}
v_mov_b32 v{t0+5}, {CNT}
ds_write2_b32 v{t0+5}, v{vZ}, v{vZ} offset0:1 offset1:2
ds_write2_b32 v{t0+5}, v{vZ}, v{vZ} offset0:0 offset1:3
ds_write_b32 v{t0+5}, v{vZ} offset:16""")
    k.srd(60, 60, SZ['w1']); k.srd(64, 64, SZ['w2']); k.srd(68, 68, SZ['x'])
    unit_src_voff(k, uS1, 1, 3072, t0+6)
    unit_src_voff(k, uS2, 1, 4096, t0+6)
    unit_tr_addr(k, uT, 1, t0+6)
    k.e(f"""s_add_u32 s75, s50, {MRG}
s_lshl_b32 s54, s18, 12
s_add_u32 s54, s54, {WOX}
v_add_u32 v{uT2}, s75, v{uT}
v_add_u32 v{uT}, s54, v{uT}
v_lshrrev_b32 v{t0+6}, 4, v1
v_and_b32 v{t0+7}, 15, v1
v_lshlrev_b32 v{t0+8}, 4, v{t0+7}
v_lshl_add_u32 v{uD1}, v{t0+6}, 16, v{t0+8}
v_mul_u32_u24 v{uD2}, 49152, v{t0+6}
v_add_u32 v{uD2}, v{uD2}, v{t0+8}
v_mul_u32_u24 v{vX}, 1280, v{t0+7}
v_lshl_add_u32 v{vX}, v{t0+6}, 3, v{vX}
s_lshr_b32 s26, s2, 2
s_and_b32 s27, s2, 3
s_mul_i32 s72, s26, {32*3072}
s_mul_i32 s28, s27, {4*3072}
s_add_u32 s72, s72, s28
s_mul_i32 s28, s18, 384
s_add_u32 s72, s72, s28
s_mul_i32 s78, s18, {12*65536}
s_lshl_b32 s28, s2, 8
s_add_u32 s78, s78, s28
s_add_u32 s78, s78, {WS_W1}
; w2 units: column block gw%32, (kk,g) = 3*(gw/32) + it
s_lshl_b32 s26, s2, 3
s_add_u32 s26, s26, s18
s_and_b32 s27, s26, 31
s_lshr_b32 s26, s26, 5
s_mul_i32 s26, s26, 3
s_mul_i32 s77, s27, {4*49152}
s_lshl_b32 s28, s26, 8
s_add_u32 s77, s77, s28
s_add_u32 s77, s77, {WS_W2}
s_lshl_b32 s27, s27, 7""")
    for it, sr_ in enumerate((73, 74, 76)):
        k.e(f"""s_lshr_b32 s28, s26, 2
s_lshl_b32 s{sr_}, s28, 17
s_and_b32 s28, s26, 3
s_lshl_b32 s28, s28, 14
s_add_u32 s{sr_}, s{sr_}, s28
s_add_u32 s{sr_}, s{sr_}, s27
s_add_u32 s26, s26, 1""")
    k.e(f"""; tail tiles of this workgroup: token block s26, d block s27
{tile_map(26, 27, LOCAL)}
s_mul_i32 s79, s27, 102400
s_add_u32 s79, s79, {WS_WO}
s_lshl_b32 s28, s18, 12
s_add_u32 s53, s79, s28
s_add_u32 s53, s53, 73728
s_add_u32 s79, s79, s50
s_mul_i32 s28, s27, 5
s_add_u32 s28, s28, s18
s_lshl_b32 s28, s28, 16
s_lshl_b32 s29, s26, 11
s_add_u32 s28, s28, s29
s_add_u32 s28, s28, {WS_HN}
s_cmp_lt_u32 s18, 5
s_cselect_b32 s80, s28, {OOB}
s_lshl_b32 s28, s26, 2
s_add_u32 s28, s28, s19
s_lshl_b32 s28, s28, 11
s_lshl_b32 s29, s27, 8
s_add_u32 s28, s28, s29
s_add_u32 s28, s28, {WS_ST}
s_lshl_b32 s29, s2, 7
s_mul_i32 s59, s18, {WS_FD - WS_FC}
s_add_u32 s59, s59, s29
s_add_u32 s59, s59, {WS_FC}
s_cmp_ge_u32 s18, 4
s_cselect_b32 s59, s28, s59
s_cmp_eq_u32 s18, 2
s_cselect_b32 s59, {OOB}, s59
s_lshl_b32 s28, s26, 2
s_add_u32 s28, s28, s19
s_mul_i32 s28, s28, {16*1280}
s_mul_i32 s29, s27, 160
s_add_u32 s28, s28, s29
s_cmp_ge_u32 s18, 4
s_cselect_b32 s82, s28, {OOB}
s_lshl_b32 s44, s26, 2
s_and_b32 s28, s18, 2
s_add_u32 s44, s44, s28
s_mul_i32 s44, s44, 49152
s_and_b32 s28, s18, 1
s_lshl_b32 s28, s28, 11
s_add_u32 s44, s44, s28
s_add_u32 s44, s44, {WS_W2 + (NE2//2)*4096}
s_add_u32 s45, s44, 49152
; u marks: fragment (4 dblk + w/2, 2 fblk + w%2)
s_mul_i32 s26, s21, 43
s_lshr_b32 s26, s26, 8
s_mul_i32 s27, s26, 6
s_sub_u32 s27, s21, s27
s_and_b32 s22, s2, 1
s_mul_i32 s22, s22, 5
s_add_u32 s26, s26, s22
s_bfe_u32 s22, s2, 0x20001
s_mul_i32 s22, s22, 6
s_add_u32 s27, s27, s22
s_lshl_b32 s28, s27, 1
s_and_b32 s29, s18, 1
s_add_u32 s28, s28, s29
s_lshl_b32 s28, s28, 17
s_and_b32 s29, s18, 2
s_lshl_b32 s29, s29, 10
s_add_u32 s28, s28, s29
s_add_u32 s28, s28, {WS_W1}
s_add_u32 s29, s2, 1
s_lshl_b32 s29, s29, 13
s_mul_i32 s29, s29, {1 if T.get('ROT', False) else 0}
s_add_u32 s29, s29, {(NE1//2)*4096}
s_and_b32 s29, s29, 0xffff
s_cmp_lt_u32 s18, 4
s_cselect_b32 s46, s28, s44
s_cselect_b32 s47, s29, 0
s_mov_b32 s48, 49152
s_cselect_b32 s48, 65536, s48
s_add_u32 s44, s46, s47
s_add_u32 s45, s44, s48
s_lshl_b32 s26, s26, 2
s_lshr_b32 s28, s18, 1
s_add_u32 s26, s26, s28
s_mul_i32 s26, s26, 48
s_lshl_b32 s27, s27, 1
s_add_u32 s26, s26, s27
s_and_b32 s28, s18, 1
s_add_u32 s26, s26, s28
s_lshl_b32 s26, s26, 10
s_add_u32 s26, s26, {WS_UI}
s_cmp_lt_u32 s21, 30
s_cselect_b32 s81, s26, {OOB}
s_lshl_b32 s26, s2, 2
s_add_u32 s26, s26, {WS_FB}
s_cmp_eq_u32 s18, 0
s_cselect_b32 s83, s26, {OOB}
s_lshr_b32 s26, s17, 8
s_lshl_b32 s26, s26, 5
s_add_u32 s26, s26, s16
s_lshl_b32 s26, s26, 7
s_add_u32 s26, s26, {WS_FA}
s_cmp_eq_u32 s18, 0
s_cselect_b32 s51, s26, {OOB}
s_lshl_b32 s27, s20, 5
s_add_u32 s27, s27, s17
v_add_u32 v{t0+6}, s27, v6
v_lshrrev_b32 v{t0+6}, 4, v{t0+6}
v_mul_u32_u24 v{t0+6}, 20480, v{t0+6}
s_lshl_b32 s27, s16, 9
s_add_u32 s27, s27, {WS_OI}
v_add_u32 v{oA}, s27, v{t0+6}
v_add_u32 v{oA}, v{oA}, v{t0+8}
v_lshl_add_u32 v{oA}, v7, 8, v{oA}
s_lshl_b32 s27, s16, 7
s_add_u32 s27, s27, {WS_OI + 16384}
v_add_u32 v{oB}, s27, v{t0+6}
v_lshl_add_u32 v{oB}, v{t0+7}, 3, v{oB}""")
    k.e(f"""v_and_b32 v{t0}, 3, v1
v_bfe_u32 v{t0+1}, v1, 2, 1
v_lshl_add_u32 v{t0}, v{t0+1}, 4, v{t0}
v_lshrrev_b32 v{t0+1}, 3, v1
v_mul_u32_u24 v{vP1}, 3072, v{t0}
v_lshl_add_u32 v{vP1}, v{t0+1}, 7, v{vP1}
v_mov_b32 v{t0+2}, s73
v_mov_b32 v{t0+3}, s74
v_cmp_eq_u32 vcc, 1, v{t0+1}
v_mov_b32 v{t0+4}, s76
v_cmp_eq_u32 s[40:41], 2, v{t0+1}
v_cndmask_b32 v{t0+2}, v{t0+2}, v{t0+3}, vcc
s_nop 0
v_cndmask_b32 v{t0+2}, v{t0+2}, v{t0+4}, s[40:41]
v_lshl_add_u32 v{vP2}, v{t0}, 12, v{t0+2}""")
    k.e("s_lshr_b32 s26, s2, 3\ns_lshl_b32 s26, s26, 4\ns_cmp_eq_u32 s18, 0\ns_cselect_b32 s26, s26, 0")
    ct = code_touch(k, L('body'), L('last'), "s26", vC)
    k.label('body')
    for r in range(4): k.e(f"v_mov_b32 v{vM+r}, -1")
    def m2b(kf, s, c="0"):  return f"v_mfma_f32_32x32x4_2b_bf16 v[{s}:{s+31}], v[{kf+4}:{kf+5}], v[{Q+8}:{Q+9}], {c}"
    def k16(kf, b, s): return f"v_mfma_f32_32x32x16_bf16 v[{s+16*b}:{s+16*b+15}], v[{kf}:{kf+3}], v[{Q+4*b}:{Q+4*b+3}], v[{s+16*b}:{s+16*b+15}]"
    def pv(vf, b, a, first=False):
        o = O + 16*b; p = P + 8*b + 4*a
        return f"v_mfma_f32_32x32x16_bf16 v[{o}:{o+15}], v[{vf+4*a}:{vf+4*a+3}], v[{p}:{p+3}], " + ("0" if first else f"v[{o}:{o+15}]")
    def group(s, gi):
        b = s + 8*gi; p = P + 4*gi
        E = lambda i: f"v_exp_f32 v{b+i}, v{b+i}"
        C = lambda i: f"v_cvt_pk_bf16_f32 v{p+i}, v{b+2*i}, v{b+2*i+1}"
        return [E(0), E(1), E(2), C(0), E(3), E(4), C(1), E(5), E(6), C(2), E(7)], C(3)
    def rdK(kf, n):
        sl = (n//4) % 4; off = (sl % 2)*SLOT + (n % 4)*512
        return [f"ds_read_b128 v[{kf}:{kf+3}], v{aK1[sl//2]} offset:{off}", f"ds_read_b64 v[{kf+4}:{kf+5}], v{aK2[sl//2]} offset:{off}"]
    def rdV(vf, n):
        sl = (n//4) % 4; off = (n % 4)*1280
        return [f"ds_read_b128 v[{vf}:{vf+3}], v{aV[sl]} offset:{off}", f"ds_read_b128 v[{vf+4}:{vf+7}], v{aV[sl]} offset:{off+640}"]
    def U(n):
        if n < 3: return [f"s_add_u32 m0, s54, {n*1024 - n*128}", f"buffer_load_dwordx4 v{uS1}, s[60:63], s72 offen offset:{n*128} lds ;U"]
        return [f"s_add_u32 m0, s{54 if n < 4 else 75}, {(n%4)*1024}", f"buffer_load_dwordx4 v{uS2}, s[64:67], s{(73,74,76)[n-3]} offen lds ;U"]
    def St(n):
        r = uR + 4*(n % 3)
        if n < 3: return [f"s_add_u32 s26, s78, {n*4*65536}", f"buffer_store_dwordx4 v[{r}:{r+3}], v{uD1}, s[12:15], s26 offen sc0 sc1 ;S"]
        return [f"buffer_store_dwordx4 v[{r}:{r+3}], v{uD2}, s[12:15], s77 offen offset:{(n-3)*256} sc0 sc1 ;S"]
    def Tr(n):
        r = uR + 4*(n % 3)
        return [f"ds_read_b64_tr_b16 v[{r+2*j}:{r+2*j+1}], v{uT if n < 4 else uT2} offset:{(n%4)*1024 + j*512}" for j in range(2)]
    early = []
    for e in range(9):
        for ft in range(2):
            r = PRE + 8*e + 4*ft
            early.append([f"buffer_load_dwordx4 v[{r}:{r+3}], v{vD}, s[12:15], s{44+ft} offen offset:{(e%2)*1024} ;W"] +
                         (["s_add_u32 s47, s47, 4096", "s_and_b32 s47, s47, 0xffff", "s_add_u32 s44, s46, s47", "s_add_u32 s45, s44, s48"] if e % 2 and ft else []))
    k.e("s_waitcnt vmcnt(0) lgkmcnt(0)")
    ts_mark(k, TS, 0)
    k.e("s_barrier")
    ts_mark(k, TS, 1); ts_cyc(k, TS, 4)
    for s_ in rdK(KF[0], 0) + rdK(KF[1], 1) + rdV(VF[0], 0): k.e(s_)
    for x in ring(1): emit(x)
    k.e("s_waitcnt lgkmcnt(4)" if not TS else "s_waitcnt lgkmcnt(0)")
    k.e(m2b(KF[0], SB[0]))
    for x in ring(2): emit(x)
    k.e("s_nop 13")
    k.e(k16(KF[0], 0, SB[0])); k.e(k16(KF[0], 1, SB[0])); k.e("s_nop 7")
    cost = lambda x: 8 if "v_exp" in x else 4
    stubs = []
    for n in range(32):
        c, t = n//4, n % 4
        cur, nxt = SB[n & 1], SB[(n+1) & 1]
        kf = KF[(n+1) & 1]; kn = KF[n & 1]
        vf = VF[n & 1]; vn = VF[(n+1) & 1]
        G = [group(cur, i) for i in range(4)]
        V = ([group(nxt, 3)[1]] if n else []) + G[0][0] + G[1][0][:1] + [G[0][1]] + G[1][0][1:] + G[2][0][:1] + [G[1][1]] + G[2][0][1:] + G[3][0][:1] + [G[2][1]] + G[3][0][1:]
        rk = rdK(kn, n+2) if n+2 < 32 else [None, None]
        rv = rdV(vn, n+1) if n+1 < 32 else [None, None]
        qk = n+1 < 32
        seq = []
        if t == 2:
            names = [f"D{c+1}"] if c < 7 else []
            if c in (3, 4): names += ["U"]
            if c == 4: names.append("tag")
            if c == 4: names += ["S"]
            if c == 6: names += ["S", "fill"]
            seq += [f"s_waitcnt vmcnt({need(*names)}) lgkmcnt(0)", "s_barrier"]
        elif n == 24: seq += [f"s_waitcnt vmcnt({need('poll')}) lgkmcnt(0)"]
        else: seq += ["s_waitcnt lgkmcnt(0)"]
        seq += [f"s_setprio {3 - (t+2) % 4}"]
        ev = [(4 if n else 0, [m2b(kf, nxt) if qk else None, rk[0]]), (76, [pv(vn, 1, 1) if n else None, rk[1]]), (116, [pv(vf, 0, 0, n == 0), rv[0]]),
              (156, [k16(kf, 0, nxt) if qk else None, rv[1]]), (196, [pv(vf, 0, 1)]), (236, [k16(kf, 1, nxt) if qk else None]), (280, [pv(vf, 1, 0, n == 0)])]
        if t == 2:
            r = ring(c+3)
            ev[3][1].extend(r[0:2]); ev[4][1].append(r[2]); ev[5][1].append(r[3]); ev[6][1].append(r[4])
            if 3 <= c <= 4:
                tr = Tr(3*c-9) + Tr(3*c-8) + Tr(3*c-7)
                for i in range(6): ev[i][1].insert(2 if i < 4 else 1, tr[i])
            if c == 4:
                ev[0][1].extend([f"v_readfirstlane_b32 s55, v{vTag}"])
                ev[1][1].extend(["s_cmp_eq_u32 s55, 0", f"s_cbranch_scc1 {L('tagw')}", f"{L('tagd')}:"])
                stubs += [f"{L('tagw')}:", f"s_mov_b32 s33, {SPIN}", f"{L('tagl')}:", f"buffer_load_dword v{vTag}, v{vZ}, s[4:7], 0 offen sc1", "s_sub_u32 s33, s33, 1",
                          "s_waitcnt vmcnt(0)", f"v_readfirstlane_b32 s55, v{vTag}", "s_cmp_lt_i32 s33, 1", f"s_cbranch_scc1 {L('tagd')}",
                          "s_cmp_eq_u32 s55, 0", f"s_cbranch_scc1 {L('tagl')}", f"s_branch {L('tagd')}"]
            if c == 4:
                ev[2][1].extend(["s_mov_b64 exec, 1", f"buffer_store_dword v{vTag}, v{vZ}, s[12:15], s83 offen sc0 sc1 ;flag", "s_mov_b64 exec, -1"])
            if c == 6:
                ev[2][1].extend(["s_mov_b64 exec, 1", f"buffer_store_dword v{vTag}, v{vZ}, s[12:15], s83 offen offset:1024 sc0 sc1 ;flag", "s_mov_b64 exec, -1"])
            if c == 5:
                ev[0][1].extend([f"s_mov_b32 s26, {WS_FB}", f"buffer_load_dwordx4 v[{vF}:{vF+3}], v{vD}, s[12:15], s26 offen sc1 ;poll", f"s_mov_b32 s33, {SPIN}"])
        if n == 0:
            ev[0][1].extend(["s_mov_b64 exec, 0xffff", ct[0] + " ;C", "s_mov_b64 exec, -1"])
        if t == 3:
            ex = []
            if 3 <= c <= 4: ex += [St(3*c-9), St(3*c-8), St(3*c-7)]
            if c == 2: ex += [[f"buffer_load_dword v{vTag}, v{vZ}, s[4:7], 0 offen sc1 ;tag"]]
            if c == 1:
                ex += [[f"buffer_load_dwordx2 v[{XREG+2*i}:{XREG+2*i+1}], v{vX}, s[68:71], s82 offen offset:{32*i} ;x"] for i in range(5)]
            if c == 5:
                ex += [["s_mov_b32 m0, s54"]] + [[f"buffer_load_dwordx4 v{vD}, s[12:15], s53 offen offset:{i*1024} lds ;wox"] for i in range(4)]
            assert len(ex) <= 7
            for i, x in enumerate(ex): ev[i][1].extend(x)
            if c in (2, 3):
                for i in range(3):
                    u = U(3*c-6+i); ev[3+i][1].append(u[0]); ev[4+i][1].append(u[1])
        f = f"buffer_store_dwordx4 v[{vM}:{vM+3}], "
        assert WS_FB - WS_FD == WS_FD - WS_FC == WS_FA - WS_FB
        fl = {FILL[0]: [[f + f"v{oA}, s[12:15], 0 offen sc0 sc1 ;fill"],
                        ["s_mov_b32 exec_hi, 0", f"buffer_store_dwordx2 v[{vM}:{vM+1}], v{oB}, s[12:15], 0 offen sc0 sc1 ;fill", "s_cmp_ge_u32 s18, 4", "s_movk_i32 s26, 0xff",
                         "s_cselect_b32 exec_lo, 0xffff, s26", f + f"v{vD}, s[12:15], s59 offen sc0 sc1 ;fill", "s_mov_b64 exec, -1"]],
              FILL[1]: [[f + f"v{vD}, s[12:15], s81 offen sc0 sc1 ;fill"]],
              FILL[2]: [[f + f"v{vD}, s[12:15], s80 offen sc0 sc1 ;fill"], [f + f"v{vD}, s[12:15], s80 offen offset:1024 sc0 sc1 ;fill"]]}.get(n, [])
        for i, x in enumerate(fl): ev[(1 if t == 2 else 4)+i][1].extend(x)
        if n in TCH:
            i = TCH.index(n)
            ld = f"buffer_load_dword v{vP1}, v{vP1}, s[60:63], s72 offen" if i < 2 else f"buffer_load_dword v{vP2}, v{vP2}, s[64:67], 0 offen"
            ev[6][1].extend([f"s_cmp_lg_u32 s20, {i & 1}", f"s_cbranch_scc1 {L(f'nt{i}')}", "s_mov_b64 exec, 0xffffff", "!" + ld, "s_mov_b64 exec, -1", f"{L(f'nt{i}')}:"])
        if n == 30:
            ev[0][1].extend([f"s_mov_b32 s26, {WS_FB + 1024}", f"buffer_load_dwordx4 v[{KF[0]}:{KF[0]+3}], v{vD}, s[12:15], s26 offen sc1 ;poll2"])
        if n == 24:
            ev[0][1].extend([f"{L('f1')}:"] + [f"v_xor_b32 v{vF+i}, s55, v{vF+i}" for i in range(4)] +
                            [f"v_or3_b32 v{vF}, v{vF}, v{vF+1}, v{vF+2}", f"v_or_b32 v{vF}, v{vF}, v{vF+3}", f"v_cmp_ne_u32 vcc, 0, v{vF}",
                             f"s_cbranch_vccnz {L('f1r')}", f"{L('f1d')}:"])
            stubs += [f"{L('f1r')}:", "s_sub_u32 s33, s33, 1", "s_cmp_lt_i32 s33, 1", f"s_cbranch_scc1 {L('f1d')}", "s_sleep 8",
                      f"buffer_load_dwordx4 v[{vF}:{vF+3}], v{vD}, s[12:15], s26 offen sc1", "s_waitcnt vmcnt(0)", f"s_branch {L('f1')}"]
        if n >= 24:
            slots = {24: (4, 6), 25: (4,), 26: (0,), 27: (1, 3, 5), 28: (4, 6)}.get(n, ())
            for i in slots:
                e = early.pop(0) + early.pop(0)
                ev[i][1].extend(["s_cmp_lg_u32 s20, 0", f"s_cbranch_scc1 {L(f'ne{n}_{i}')}"] + ["!" + x.split(";")[0] for x in e] + [f"{L(f'ne{n}_{i}')}:"])
        tm = 0
        for v in V:
            while ev and ev[0][0] <= tm: seq += [x for x in ev.pop(0)[1] if x]
            seq.append(v); tm += cost(v)
        assert not ev
        if qk: assert seq.index(k16(kf, 0, nxt)) - seq.index(m2b(kf, nxt)) > 18
        for (b_, a_, c_) in ((0, 0, G[0][1]), (0, 1, G[1][1]), (1, 0, G[2][1])):
            assert seq.index(pv(vf, b_, a_, n == 0 and a_ == 0)) - seq.index(c_) > 2
        for s_ in seq: emit(s_)
    assert not early
    k.e("s_setprio 3"); k.e(group(SB[1], 3)[1]); k.e("s_nop 1")
    k.e(pv(VF[1], 1, 1))
    k.label('merge')
    ts_mark(k, TS, 2); ts_cyc(k, TS, 5)
    Tm = SB[0]; KP = SB[1]
    ANN = f"""v_lshlrev_b32 v{Tm+18}, 2, v1
s_mov_b32 exec_hi, 0
buffer_store_dword v{vTag}, v{Tm+18}, s[12:15], s51 offen sc0 sc1
s_mov_b32 exec_hi, -1"""
    k.e(f"""v_add_u32 v{Tm+16}, s75, v{vD}
s_xor_b32 s21, s18, 4
s_mul_i32 s21, s21, 3072
s_add_u32 s21, s21, {MRG}
v_add_u32 v{Tm+17}, s21, v{vD}
s_mov_b32 s38, {f2u(2.0**-30)}
s_mov_b32 s39, {f2u(2.0**99)}
v_mul_f32 v{Tm+14}, 0, v{O}""")
    for r in range(1, 12): k.e(f"v_fmac_f32 v{Tm+14}, 0, v{O+r}")
    k.e(f"s_cmp_eq_u32 s20, 0\ns_cbranch_scc1 {L('keep0')}")
    for g in range(3): k.e(f"ds_write_b128 v{Tm+16}, v[{O+4*g}:{O+4*g+3}] offset:{g*1024}")
    for r in range(12): k.e(f"v_mov_b32 v{KP+r}, v{O+16+r}")
    k.e(f"s_branch {L('kept')}")
    k.label('keep0')
    for g in range(3): k.e(f"ds_write_b128 v{Tm+16}, v[{O+16+4*g}:{O+16+4*g+3}] offset:{g*1024}")
    for r in range(12): k.e(f"v_mov_b32 v{KP+r}, v{O+r}")
    k.label('kept')
    for r in range(0, 12): k.e(f"v_fmac_f32 v{Tm+14}, 0, v{O+16+r}")
    k.e(f"""v_min_f32 v{Tm+12}, v{O+8}, v{O+24}
v_max_f32 v{Tm+13}, v{O+8}, v{O+24}
v_cmp_u_f32 vcc, v{Tm+14}, v{Tm+14}
v_cmp_nge_f32 s[40:41], v{Tm+12}, s38
v_cmp_nle_f32 s[42:43], v{Tm+13}, s39
v_mov_b32 v{Tm+12}, {FLAG}
v_mov_b32 v{Tm+13}, 1
s_or_b32 s41, s41, s43
s_or_b32 s40, vcc_lo, vcc_hi
s_or_b32 s40, s40, s41""")
    if force_slow: k.e("s_cmp_eq_u32 s37, 0")
    k.e(f"""s_cbranch_scc0 {L('noflag')}
ds_write_b32 v{Tm+12}, v{Tm+13}""")
    k.label('noflag')
    F2 = KF[0]
    k.e(f"s_mov_b32 s33, {SPIN}\ns_cmp_lg_u32 s37, 0\ns_waitcnt vmcnt(0)\ns_cbranch_scc1 {L('g2d')}")
    k.label('g2')
    for i in range(4): k.e(f"v_xor_b32 v{F2+i}, s55, v{F2+i}")
    k.e(f"""v_or3_b32 v{F2}, v{F2}, v{F2+1}, v{F2+2}
v_or_b32 v{F2}, v{F2}, v{F2+3}
v_cmp_ne_u32 vcc, 0, v{F2}
s_cbranch_vccnz {L('g2r')}""")
    k.label('g2d')
    stubs += [f"{L('g2r')}:", "s_sub_u32 s33, s33, 1", "s_cmp_lt_i32 s33, 1", f"s_cbranch_scc1 {L('g2d')}", "s_sleep 8",
              f"buffer_load_dwordx4 v[{F2}:{F2+3}], v{vD}, s[12:15], s26 offen sc1", "s_waitcnt vmcnt(0)", f"s_branch {L('g2')}"]
    k.e("s_waitcnt lgkmcnt(0)\ns_barrier")
    k.e(f"ds_read_b32 v{Tm+19}, v{Tm+12}")
    for g in (2, 0, 1): k.e(f"ds_read_b128 v[{Tm+4*g}:{Tm+4*g+3}], v{Tm+17} offset:{g*1024}")
    k.e(f"""s_waitcnt lgkmcnt(2)
v_readfirstlane_b32 s38, v{Tm+19}
v_pk_add_f32 v[{Tm+8}:{Tm+9}], v[{Tm+8}:{Tm+9}], v[{KP+8}:{KP+9}]
v_pk_add_f32 v[{Tm+10}:{Tm+11}], v[{Tm+10}:{Tm+11}], v[{KP+10}:{KP+11}]
v_mov_b32 v{Tm+13}, v{Tm+8}
v_mov_b32 v{Tm+12}, v{Tm+8}
s_cmp_gt_u32 s38, s37
s_waitcnt lgkmcnt(0)
s_cbranch_scc1 {L('slow')}
{ANN if AN0 == 'merge' else ''}
v_permlane32_swap_b32 v{Tm+13}, v{Tm+12}
v_pk_add_f32 v[{Tm}:{Tm+1}], v[{Tm}:{Tm+1}], v[{KP}:{KP+1}]
v_rcp_f32 v{Tm+14}, v{Tm+12}
v_pk_add_f32 v[{Tm+2}:{Tm+3}], v[{Tm+2}:{Tm+3}], v[{KP+2}:{KP+3}]
v_pk_add_f32 v[{Tm+4}:{Tm+5}], v[{Tm+4}:{Tm+5}], v[{KP+4}:{KP+5}]
v_pk_add_f32 v[{Tm+6}:{Tm+7}], v[{Tm+6}:{Tm+7}], v[{KP+6}:{KP+7}]""")
    for r in range(0, 12, 2): k.e(f"v_pk_mul_f32 v[{Tm+r}:{Tm+r+1}], v[{Tm+r}:{Tm+r+1}], v[{Tm+14}:{Tm+15}] op_sel_hi:[1,0]")
    for r in range(6): k.e(f"v_cvt_pk_bf16_f32 v{Tm+24+r}, v{Tm+2*r}, v{Tm+2*r+1}")
    for r in range(6): k.e(f"v_min_u32 v{Tm+24+r}, -2, v{Tm+24+r}")
    k.e(f"""buffer_store_dwordx4 v[{Tm+24}:{Tm+27}], v{oA}, s[12:15], 0 offen sc0 sc1
s_mov_b32 exec_hi, 0
buffer_store_dwordx2 v[{Tm+28}:{Tm+29}], v{oB}, s[12:15], 0 offen sc0 sc1
s_mov_b32 exec_hi, -1
{ANN if AN0 == 'after' else ''}""")
    if TS:
        ts_end(k, TS, 1, 12, 52, wait=False)
        k.e("s_mov_b64 exec, -1")
        ts_begin(k, TS)
    tail(k, TS, WOX, XREG, NE1, NE2, PRE, LOCAL, **T)
    k.label('end')
    k.e("s_endpgm")
    for x in stubs: k.e(x)
    k.label('slow')
    S0 = SB[0]; MX = P; kf = KF[0]
    k.e(f"""s_mov_b32 s37, 1
s_barrier
v_mov_b32 v{MX}, 0xff800000
v_mov_b32 v{MX+1}, 0xff800000
s_add_u32 s56, s24, {WS_KP}
s_add_u32 s57, s25, {WS_KP}
s_add_u32 s57, s57, s23
s_mov_b32 s36, 0""")
    k.label('mloop')
    k.e(f"""buffer_load_dwordx4 v[{kf}:{kf+3}], v34, s[12:15], s56 offen
buffer_load_dwordx2 v[{kf+4}:{kf+5}], v35, s[12:15], s57 offen
s_add_u32 s56, s56, 512
s_add_u32 s57, s57, 512
s_waitcnt vmcnt(0)""")
    k.e(m2b(kf, S0)); k.e("s_nop 15\ns_nop 3")
    k.e(k16(kf, 0, S0)); k.e(k16(kf, 1, S0)); k.e("s_nop 11")
    for b in range(2):
        for r in range(0, 16, 2):
            k.e(f"v_max3_f32 v{MX+b}, v{S0+16*b+r}, v{S0+16*b+r+1}, v{MX+b}")
    k.e(f"""s_add_u32 s36, s36, 1
s_cmp_lt_u32 s36, 64
s_cbranch_scc1 {L('mloop')}
v_mov_b32 v{MX+2}, v{MX}
v_mov_b32 v{MX+3}, v{MX+1}
s_nop 1
v_permlane32_swap_b32 v{MX}, v{MX+2}
v_permlane32_swap_b32 v{MX+1}, v{MX+3}
s_nop 1
v_max_f32 v{MX}, v{MX}, v{MX+2}
v_max_f32 v{MX+1}, v{MX+1}, v{MX+3}""")
    CM = SB[1]; vf = VF[0]
    for b in range(2):
        for r in range(16): k.e(f"v_sub_f32 v{CM+16*b+r}, 0, v{MX+b}")
    for r in range(32): k.e(f"v_mov_b32 v{O+r}, 0")
    k.e(f"""v_cmp_eq_u32 vcc, 20, v6
v_mov_b32 v{VF[1]}, 0x3f803f80
v_mul_u32_u24 v{VF[1]+1}, 320, v7
v_add_u32 v{VF[1]+1}, v{VF[1]+1}, v35""")
    for r in range(8): k.e(f"v_cndmask_b32 v{vf+r}, 0, v{VF[1]}, vcc")
    k.e(f"""s_lshl_b32 s21, s20, 14
s_add_u32 s21, s21, {WS_KP}
s_add_u32 s56, s24, s21
s_add_u32 s57, s25, s21
s_add_u32 s57, s57, s23
s_mul_i32 s58, s16, 81920
s_mul_i32 s21, s20, 40960
s_add_u32 s58, s58, s21
s_add_u32 s58, s58, {WS_VP}
s_mov_b32 s36, 0""")
    k.label('sloop')
    k.e(f"""buffer_load_dwordx4 v[{kf}:{kf+3}], v34, s[12:15], s56 offen
buffer_load_dwordx2 v[{kf+4}:{kf+5}], v35, s[12:15], s57 offen
s_mov_b32 exec_lo, 0xfffff
s_mov_b32 exec_hi, 0xfffff
buffer_load_dwordx4 v[{vf}:{vf+3}], v{VF[1]+1}, s[12:15], s58 offen
buffer_load_dwordx4 v[{vf+4}:{vf+7}], v{VF[1]+1}, s[12:15], s58 offen offset:640
s_mov_b64 exec, -1
s_add_u32 s56, s56, 512
s_add_u32 s57, s57, 512
s_add_u32 s58, s58, 1280
s_waitcnt vmcnt(0)""")
    k.e(m2b(kf, S0, f"v[{CM}:{CM+31}]")); k.e("s_nop 15\ns_nop 3")
    k.e(k16(kf, 0, S0)); k.e(k16(kf, 1, S0)); k.e("s_nop 11")
    for gi in range(4):
        g, c = group(S0, gi)
        for x in g: k.e(x)
        k.e("s_nop 0"); k.e(c)
    k.e("s_nop 1")
    for b in range(2):
        k.e(pv(vf, b, 0)); k.e(pv(vf, b, 1))
    k.e(f"""s_add_u32 s36, s36, 1
s_cmp_lt_u32 s36, 32
s_cbranch_scc1 {L('sloop')}
s_nop 7
s_branch {L('merge')}""")
    k.label('last')
    return k
```

```python
from common import *
from ts import *
import math

def row160_offsets(k, lane, dst, n, pitch, t0=3):
    for u in range(64*n): assert (u*6554) >> 16 == u//10
    for i in range(n):
        k.e(f"""v_add_u32 v{t0}, {64*i}, v{lane}
v_mul_u32_u24 v{t0+1}, 6554, v{t0}
v_lshrrev_b32 v{t0+1}, 16, v{t0+1}
v_mul_u32_u24 v{t0+1}, {pitch-160}, v{t0+1}
v_lshl_add_u32 v{dst+i}, v{t0}, 4, v{t0+1}""")

def rowsum(k, a, t):
    for sw in ("v_permlane32_swap_b32", "v_permlane16_swap_b32"):
        k.e(f"""v_mov_b32 v{t}, v{a}
v_mov_b32 v{t+1}, v{a+1}
s_nop 1
{sw} v{a}, v{t}
{sw} v{a+1}, v{t+1}
s_nop 1
v_pk_add_f32 v[{a}:{a+1}], v[{a}:{a+1}], v[{t}:{t+1}]""")

SPIN = 0x8000

def tile_map(tb, db, LOCAL):
    if LOCAL:
        return f"""s_lshr_b32 s21, s2, 3
s_and_b32 s{tb}, s2, 7
s_lshl_b32 s{tb}, s{tb}, 2
s_lshr_b32 s22, s21, 3
s_add_u32 s{tb}, s{tb}, s22
s_and_b32 s{db}, s21, 7"""
    return f"""s_lshr_b32 s21, s2, 3
s_and_b32 s{tb}, s21, 7
s_and_b32 s22, s2, 6
s_lshl_b32 s22, s22, 2
s_add_u32 s{tb}, s{tb}, s22
s_lshr_b32 s{db}, s21, 3
s_and_b32 s22, s2, 1
s_lshl_b32 s22, s22, 2
s_add_u32 s{db}, s{db}, s22"""

def tail(k, TS, WOX, XREG, NE1, NE2, PRE, LOCAL, ROT=False, SLP=3, FAIR=True, AN2=0, SLX=8, G2=False, NR1=23, NR2=19, PL=32, PL2=24, SL0=0, SLO=8, GATE=True, SL1=20, SL2=0, SL3=0, SLR=4, SLS=60, W2S=13, W2X=4, DSC=None, ESC=None):
    DS = 5; W1L = DS*16384; NL1 = 32 - NR1
    ES = 5; W2L = ES*20480; NL2 = 24 - NR2
    CNT = 160*1024 - 64
    assert W1L + NL1*8192 <= CNT and W2L + NL2*8192 <= CNT
    L = k.L
    mk = lambda i: f"s_memrealtime s[{84+2*i}:{85+2*i}]" if TS else ""
    OF = 24; ACC = 104; WF = 124
    k.e(f"""s_load_dwordx2 s[8:9], s[0:1], {KA['b1']}
s_load_dwordx4 s[40:43], s[0:1], {KA['b2']}
{tile_map(16, 17, LOCAL)}
s_add_u32 s58, s2, 1
s_lshl_b32 s58, s58, 13
s_and_b32 s58, s58, {0xffff if ROT else 0}
s_and_b32 s25, s18, 3
s_and_b32 s56, s18, 1
s_bfe_u32 s57, s18, 0x10001
s_lshl_b32 s19, s16, 2
s_add_u32 s19, s19, s25
s_mul_i32 s30, s19, 20480
s_add_u32 s30, s30, {WS_OI}
v_lshlrev_b32 v2, 4, v1
v_and_b32 v6, 15, v1
v_lshrrev_b32 v7, 4, v1
; D tile: s52 = d block (64), s53 = f block (64) ; s54 = 1 if this workgroup has one
s_mul_i32 s52, s21, 43
s_lshr_b32 s52, s52, 8
s_mul_i32 s53, s52, 6
s_sub_u32 s53, s21, s53
s_and_b32 s22, s2, 1
s_mul_i32 s22, s22, 5
s_add_u32 s52, s52, s22
s_bfe_u32 s22, s2, 0x20001
s_mul_i32 s22, s22, 6
s_add_u32 s53, s53, s22
s_cmp_lt_u32 s21, 30
s_cselect_b32 s54, 1, 0
s_waitcnt lgkmcnt(0)""")
    stubs = []
    def loader(nm, N, slots, sched, issue, nops, chk, post={}):
        q = []
        k.e(f"s_mov_b32 s33, {SPIN}")
        k.label(nm + 'rs')
        for c in sched[0]:
            for x in issue(c): k.e(x)
            q += [c]*nops
        for cc in range(N):
            last = max(i for i, c in enumerate(q) if c == cc)
            k.e(f"s_waitcnt vmcnt({min(63, len(q)-1-last)})")
            q = q[last+1:]
            for x in chk(cc): k.e(x)
            if cc:
                for c in sched.get(cc, []):
                    for x in issue(c): k.e(x)
                    q += [c]*nops
                for x in post.get(cc, []):
                    k.e(x)
                    if x.startswith("buffer_"): q.append(-1)
            k.label(nm + f'c{cc}')
            k.e("s_waitcnt lgkmcnt(0)")
            if len(chk(cc)) > 1: k.e("v_max_u32 v40, v40, v41")
            k.e(f"v_cmp_eq_u32 vcc, -1, v40\ns_cbranch_vccnz {L(nm + f'r{cc}')}")
            k.label(nm + f'k{cc}')
            k.e("s_barrier")
            st = [f"{L(nm + f'r{cc}')}:", "s_sub_u32 s33, s33, 1", "s_cmp_lt_i32 s33, 1", f"s_cbranch_scc1 {L(nm + f'k{cc}')}", "s_waitcnt vmcnt(0)", f"s_sleep {SLR}"]
            if cc == 0: st += [f"s_branch {L(nm + 'rs')}"]
            else: st += issue(cc) + ["s_waitcnt vmcnt(0)"] + chk(cc) + [f"s_branch {L(nm + f'c{cc}')}"]
            stubs.extend(st)
            if TS and cc == 0 and nm == 'le': k.e("s_memrealtime s[86:87]")
            if TS and cc == 0: k.e(f"s_sub_u32 s65, {SPIN}, s33")
        if TS and nm == "le": k.e(f"s_sub_u32 s84, {SPIN}, s33\ns_sub_u32 s84, s84, s65\ns_mul_i32 s84, s84, 100\ns_mul_i32 s65, s65, 10000\ns_add_u32 s84, s84, s65\ns_add_u32 s84, s84, s96")
        return q
    def poll(vaddr, vt):
        n = k.uid; k.uid += 1
        k.e(f"s_mov_b32 s33, {SPIN}")
        k.label(f'pl{n}')
        k.e(f"""buffer_load_dword v{vt}, v{vaddr}, s[12:15], 0 offen sc1
s_sub_u32 s33, s33, 1
s_waitcnt vmcnt(0)
v_cmp_ne_u32 vcc, s55, v{vt}
s_cbranch_vccz {L(f'pg{n}')}
s_cmp_lt_i32 s33, 1
s_cbranch_scc1 {L(f'pg{n}')}
s_sleep {SLP}
s_branch {L(f'pl{n}')}""")
        k.label(f'pg{n}')
    def post(off, vt):
        k.e(f"""v_mov_b32 v{vt}, {CNT}
v_mov_b32 v{vt+1}, 1
s_mov_b64 exec, 1
ds_add_u32 v{vt}, v{vt+1} offset:{off}
s_mov_b64 exec, -1""")
    def announce(soff, vt):
        k.e(f"""v_lshlrev_b32 v{vt}, 2, v1
v_mov_b32 v{vt+1}, s55
s_mov_b32 exec_hi, 0
buffer_store_dword v{vt+1}, v{vt}, s[12:15], {soff} offen sc0 sc1
s_mov_b32 exec_hi, -1""")
    def wfree(off=8, cnt=8, v=3):
        n = k.uid; k.uid += 1
        k.e(f"v_mov_b32 v{v}, {CNT+off}\ns_mov_b32 s33, {SPIN*16}")
        k.label(f'wf{n}')
        k.e(f"""ds_read_b32 v{v+1}, v{v}
s_sub_u32 s33, s33, 1
s_waitcnt lgkmcnt(0)
v_readfirstlane_b32 s32, v{v+1}
s_cmp_eq_u32 s33, 0
s_cbranch_scc1 {L(f'wd{n}')}
s_cmp_lt_u32 s32, {cnt}
s_cbranch_scc1 {L(f'wf{n}')}""")
        k.label(f'wd{n}')
    k.e(f"""s_cmp_ge_u32 s18, 4
s_cbranch_scc1 {L('Y')}""")
    k.e(f"""s_setprio 0
v_mov_b32 v8, {CNT}
v_mov_b32 v9, 1
s_mov_b64 exec, 1
ds_add_u32 v8, v9 offset:8
s_mov_b64 exec, -1
s_lshl_b32 s27, s53, 2
s_lshl_b32 s28, s56, 1
s_add_u32 s27, s27, s28
s_lshl_b32 s27, s27, 16
s_lshl_b32 s28, s57, 11
s_add_u32 s27, s27, s28
s_add_u32 s30, s27, {WS_W1}
s_mov_b32 s31, s58
s_add_u32 s27, s30, s31
s_add_u32 s28, s27, 65536
s_lshl_b32 s29, s18, 11
s_add_u32 s29, s29, {W1L}
s_cmp_eq_u32 s54, 0
s_cbranch_scc0 {L('Xd')}""")
    wfree()
    k.e(f"s_sleep {SLS}\ns_sleep {SLS}\ns_branch {L('Xe')}")
    k.label('Xd')
    if GATE: wfree(4, 4)
    DACC = 8; HF = 40; W1R = 72
    assert W1R + NR1*8 == 256 and W1R + NE1*8 == PRE
    cnt = 0
    for n in range(32):
        if n == NR1:
            wfree()
            if G2: wfree(12, 4)
        for ft in range(2):
            if n >= NR1:
                d = (n-NR1)*8192 + ft*1024 - (n % 2)*1024
                k.e(f"s_add_u32 m0, s29, {d}\ns_nop 0" if d >= 0 else f"s_sub_u32 m0, s29, {-d}\ns_nop 0")
                k.e(f"buffer_load_dwordx4 v2, s[12:15], s{27+ft} offen offset:{(n%2)*1024} lds")
            elif n >= NE1: continue
            else:
                r = W1R + n*8 + 4*ft
                k.e(f"buffer_load_dwordx4 v[{r}:{r+3}], v2, s[12:15], s{27+ft} offen offset:{(n%2)*1024}")
            cnt += 1
            if cnt > PL: k.e(f"s_waitcnt vmcnt({PL})")
        if n % 2 == 1: k.e("s_add_u32 s31, s31, 4096\ns_and_b32 s31, s31, 0xffff\ns_add_u32 s27, s30, s31\ns_add_u32 s28, s27, 65536")
    k.e(mk(1))
    DSLOT = [0, 1, 2, 3, 4, 0, 5, 1, 6, 2, 7, 3, 8, 4, 0, 5]
    DSCHED = {0: [0, 1, 2, 3], 1: [4], 3: [5, 6], 4: [7], 5: [8], 6: [9], 7: [10], 8: [11], 9: [12], 10: [13], 11: [14], 12: [15]}
    if DSC: DSCHED = DSC
    for it, cs in DSCHED.items():
        for c in cs:
            prev = [p for p in range(c) if DSLOT[p] == DSLOT[c]]
            assert (not prev or prev[-1] <= it - 3) and (DSLOT[c] < 5 or it >= DSLOT[c] - 2)
    assert NL1 <= 9 and W1L == 5*16384
    k.e(f"""v_bfe_u32 v3, v1, 5, 1
v_lshlrev_b32 v3, 8, v3
v_bfe_u32 v4, v1, 1, 1
v_lshl_add_u32 v3, v4, 7, v3
v_bfe_u32 v4, v1, 2, 3
v_lshl_add_u32 v3, v4, 4, v3
v_and_b32 v4, 1, v1
v_lshl_add_u32 v3, v4, 3, v3
s_lshl_b32 s27, s57, 11
v_add_u32 v3, s27, v3
v_add_u32 v4, 65536, v3
v_add_u32 v6, 131072, v3
v_add_u32 v5, s29, v2
v_add_u32 v0, {7*8192}, v5
s_waitcnt vmcnt(0)""")
    k.e(mk(2))
    def hreads(n):
        c, s = n//2, n % 2
        slot = DSLOT[c]; base = (3, 4, 6)[slot//4]; off = (slot % 4)*16384 + s*1024
        b = HF + 16*(n & 1)
        return [f"ds_read_b64_tr_b16 v[{b+4*dt+2*j}:{b+4*dt+2*j+1}], v{base} offset:{off + dt*4096 + j*512}" for dt in range(4) for j in range(2)]
    def wsrc(i, ft): return W1R + (i if i < NR1 else i - NR1)*8 + 4*ft
    def wread(i): return [f"ds_read_b128 v[{wsrc(i, ft)}:{wsrc(i, ft)+3}], v{5 if i-NR1 < 7 else 0} offset:{((i-NR1) % 7)*8192 + ft*1024}" for ft in range(2)]
    k.e("s_barrier")
    k.e(mk(3) + ("\ns_waitcnt lgkmcnt(0)" if TS else ""))
    for r in hreads(0): k.e(r)
    pend = 0
    for i in range(32):
        b = HF + 16*(i & 1)
        rd = hreads(i+1) if i < 31 else []
        for dt in range(4):
            k.e(f"s_waitcnt lgkmcnt({6 + pend if rd else 6-2*dt})")
            for ft in range(2):
                a = DACC + 8*dt + 4*ft
                c = "0" if i == 0 else f"v[{a}:{a+3}]"
                k.e(f"v_mfma_f32_16x16x32_bf16 v[{a}:{a+3}], v[{wsrc(i, ft)}:{wsrc(i, ft)+3}], v[{b+4*dt}:{b+4*dt+3}], {c}")
                if dt == 0 and ft == 0 and i % 2 == 1 and i < 31: k.e("s_barrier")
                if rd: k.e(rd[2*dt+ft])
        pend = 0
        if i < NL1:
            for r in wread(NR1 + i): k.e(r)
            pend = 2
        if i == 24:
            k.srd(8, 8, SZ['b1'])
            k.e(f"""s_lshl_b32 s27, s53, 7
s_lshl_b32 s28, s56, 6
s_add_u32 s27, s27, s28
v_lshlrev_b32 v204, 3, v7
buffer_load_dwordx2 v[200:201], v204, s[8:11], s27 offen
buffer_load_dwordx2 v[202:203], v204, s[8:11], s27 offen offset:32""")
    assert W1R + NL1*8 <= 200
    k.e(mk(4))
    k.e('s_setprio 3')
    c1 = -2.0*math.log2(math.e)*math.sqrt(2.0/math.pi); c2 = c1*0.044715
    KP = 208; T2 = 224
    k.e(f"""s_lshl_b32 s28, s18, 12
s_add_u32 s28, s28, 32768
v_add_u32 v3, s28, v2
s_xor_b32 s28, s28, 8192
v_add_u32 v4, s28, v2
s_cmp_eq_u32 s57, 0
s_waitcnt vmcnt(0)
s_nop 0
s_cbranch_scc1 {L('dk0')}""")
    for q in (1, 0):
        if q == 0: k.label('dk0')
        for p in range(4):
            a = DACC + 16*(q ^ 1) + 4*p
            k.e(f"ds_write_b128 v3, v[{a}:{a+3}] offset:{p*1024}")
        for r in range(8):
            bq = 200 + r//2
            k.e(f"v_lshlrev_b32 v{T2+r}, 16, v{bq}" if r % 2 == 0 else f"v_and_b32 v{T2+r}, 0xffff0000, v{bq}")
        for r in range(0, 16, 2):
            k.e(f"v_pk_add_f32 v[{KP+r}:{KP+r+1}], v[{T2+r%8}:{T2+r%8+1}], v[{DACC+16*q+r}:{DACC+16*q+r+1}]")
        if q == 1: k.e(f"s_branch {L('dkd')}")
    k.label('dkd')
    k.e(f"""; u fragment: ((4 dblk + 2kh + j)*48 + 2 fblk + wn)*1024
s_lshl_b32 s27, s52, 2
s_lshl_b32 s28, s57, 1
s_add_u32 s27, s27, s28
s_mul_i32 s27, s27, 48
s_lshl_b32 s28, s53, 1
s_add_u32 s27, s27, s28
s_add_u32 s27, s27, s56
s_lshl_b32 s27, s27, 10
s_add_u32 s27, s27, {WS_UI}
s_add_u32 s28, s27, 49152
s_mov_b32 s20, {f2u(c1)}
s_mov_b32 s21, {f2u(c2)}
v_mov_b32 v6, s20
s_waitcnt lgkmcnt(0)
s_barrier""")
    k.e(f"""s_mul_i32 s32, s52, 24
s_add_u32 s32, s32, s53
s_lshl_b32 s32, s32, 7
s_add_u32 s32, s32, {WS_FD}
s_cmp_eq_u32 s18, 0
s_cselect_b32 s32, s32, 0x80000000""")
    if AN2 == 0: announce("s32", 8)
    for p in range(4): k.e(f"ds_read_b128 v[{40+4*p}:{43+4*p}], v4 offset:{p*1024}")
    for hf in range(2):
        R = range(8*hf, 8*hf+8); R2 = range(8*hf, 8*hf+8, 2)
        k.e(f"s_waitcnt lgkmcnt({2-2*hf})")
        for r in R2: k.e(f"v_pk_add_f32 v[{KP+r}:{KP+r+1}], v[{KP+r}:{KP+r+1}], v[{40+r}:{41+r}]")
        for r in R2: k.e(f"v_pk_mul_f32 v[{T2+r}:{T2+r+1}], v[{KP+r}:{KP+r+1}], v[{KP+r}:{KP+r+1}]")
        for r in R: k.e(f"v_fma_f32 v{T2+r}, v{T2+r}, s21, v6")
        for r in R2: k.e(f"v_pk_mul_f32 v[{T2+r}:{T2+r+1}], v[{T2+r}:{T2+r+1}], v[{KP+r}:{KP+r+1}]")
        for r in R: k.e(f"v_exp_f32 v{T2+r}, v{T2+r}")
        for r in R: k.e(f"v_add_f32 v{T2+r}, 1.0, v{T2+r}")
        for r in R: k.e(f"v_rcp_f32 v{T2+r}, v{T2+r}")
        for r in R2: k.e(f"v_pk_mul_f32 v[{T2+r}:{T2+r+1}], v[{T2+r}:{T2+r+1}], v[{KP+r}:{KP+r+1}]")
        for r in range(4): k.e(f"v_cvt_pk_bf16_f32 v{60+4*hf+r}, v{T2+8*hf+2*r}, v{T2+8*hf+2*r+1}")
        for r in range(4): k.e(f"v_min_u32 v{60+4*hf+r}, -2, v{60+4*hf+r}")
        k.e(f"buffer_store_dwordx4 v[{60+4*hf}:{63+4*hf}], v2, s[12:15], s{27+hf} offen sc0 sc1")
        if AN2 == hf + 1: announce("s32", 8)
    k.e(mk(5))
    k.label('Xe')
    for d in range(8): assert (80*d+79)//64 == (80*d)//64 + 1 and (5*d) >> 2 == (80*d)//64
    k.e(f"""s_cmp_lg_u32 s18, 0
s_cbranch_scc1 {L('Xnp')}
s_mul_i32 s27, s17, 5
s_lshr_b32 s27, s27, 2
s_mul_i32 s27, s27, {24*128}
s_add_u32 s27, s27, {WS_FD}
v_min_u32 v3, 47, v1
v_lshlrev_b32 v3, 7, v3
v_add_u32 v3, s27, v3""")
    poll(3, 4)
    if SL3: k.e(f"s_sleep {SL3}")
    k.label('Xnp')
    ESLOT = [0, 1, 2, 3, 4, 7, 0, 1, 2, 5, 6, 3]
    ESCHED = {0: [0, 1, 2, 3], 1: [4], 2: [5], 3: [6], 4: [7], 5: [8], 6: [9], 7: [10], 8: [11]}
    if ESC: ESCHED = ESC
    for it, cs in ESCHED.items():
        for c in cs:
            prev = [p for p in range(c) if ESLOT[p] == ESLOT[c]]
            assert (not prev or prev[-1] <= it - 3) and (ESLOT[c] not in (5, 6) or it >= 5)
    assert NL2 <= 5 and W2L == 5*20480
    def chkaddr(dst, t):
        k.e(f"v_bfe_u32 v{t}, v1, 1, 4\nv_lshlrev_b32 v{t}, 2, v{t}\nv_lshl_add_u32 v{dst}, v1, 6, v{t}")
    k.e(f"""s_mul_i32 s29, s17, {5*49152}
s_add_u32 s29, s29, {WS_UI}
s_lshl_b32 s27, s18, 10
s_add_u32 s30, s29, s27
s_add_u32 s30, s30, {4*49152}
s_add_u32 s28, s27, 16384
s_mul_i32 s27, s18, 49152
s_add_u32 s29, s29, s27
s_lshl_b32 s27, s18, 12""")
    chkaddr(44, 42)
    k.e(f"""v_and_b32 v47, 1023, v44
v_add_u32 v44, s27, v44
v_add_u32 v45, 61440, v44
v_add_u32 v46, {2*61440}, v44
v_add_u32 v47, s28, v47
v_add_u32 v48, 61440, v47
v_add_u32 v49, {2*61440}, v47
s_barrier""")
    def eissue(c):
        o = ESLOT[c]*20480
        return ([f"s_add_u32 m0, s27, {o}", f"s_add_u32 s32, s29, {c*4096}"] +
                [f"buffer_load_dwordx4 v2, s[12:15], s32 offen offset:{i*1024} sc1 lds" for i in range(4)] +
                [f"s_add_u32 m0, s28, {o}", f"s_add_u32 s32, s30, {c*4096}", "buffer_load_dwordx4 v2, s[12:15], s32 offen sc1 lds"])
    def echk(c):
        sl = ESLOT[c]
        return [f"ds_read_b32 v40, v{44+sl//3} offset:{(sl%3)*20480}", f"ds_read_b32 v41, v{47+sl//3} offset:{(sl%3)*20480}"]
    loader('le', 12, ESLOT, ESCHED, eissue, 5, echk)
    ts_end(k, TS, 2, 12, 40)
    k.e("s_endpgm")
    k.label('Y')
    HR = 14
    for r in range(10): k.e(f"v_mov_b32 v{HR+r}, v{XREG+r}")
    k.e(f"""v_add_u32 v3, 61440, v2
v_add_u32 v4, {WOX}, v2
v_lshlrev_b32 v5, 3, v1
v_mov_b32 v8, {CNT}
s_mov_b32 s33, {SPIN}""")
    for p in range(1, 5): k.e(f"s_add_u32 s{58+p}, s30, {4096*p}")
    for r in range(20): k.e(f"v_mov_b32 v{ACC+r}, 0")
    k.e("s_mov_b32 s65, 31")
    k.e(f"""s_cmp_lg_u32 s18, 4
s_cbranch_scc1 {L('ow')}
s_lshr_b32 s27, s16, 2
s_lshl_b32 s27, s27, 12
s_add_u32 s27, s27, {WS_FA}
v_and_b32 v10, 31, v1
v_lshlrev_b32 v10, 7, v10
v_add_u32 v10, s27, v10""")
    poll(10, 11)
    if SL0: k.e(f"s_sleep {SL0}")
    post(0, 10)
    k.e(f"s_branch {L('og')}")
    k.label('ow')
    wfree(0, 1, 10)
    k.label('og')
    k.e(f"s_mov_b32 s33, {SPIN}\n{mk(0)}")
    def oload(p):
        so = "s30" if p == 0 else f"s{58+p}"
        if p < 4: return [f"buffer_load_dwordx4 v[{OF+16*p+4*j}:{OF+16*p+4*j+3}], v2, s[12:15], {so} offen offset:{j*1024} sc1" for j in range(4)]
        return [f"buffer_load_dwordx2 v[{OF+64+2*j}:{OF+65+2*j}], v5, s[12:15], {so} offen offset:{j*512} sc1" for j in range(8)]
    def reads(j):
        out = []
        for nt in range(5):
            o = j*5120 + nt*1024
            base, off = (2, o) if o < 61440 else ((3, o-61440) if o < 73728 else (4, o-73728))
            out.append(f"ds_read_b128 v[{WF+20*(j%3)+4*nt}:{WF+20*(j%3)+4*nt+3}], v{base} offset:{off}")
        return out
    for p in range(5):
        if FAIR and p in (1, 2): k.e(f"s_setprio {3-p}")
        for x in oload(p): k.e(x)
    k.e("""s_setprio 3
v_mov_b32 v9, 1
s_mov_b64 exec, 1
ds_add_u32 v8, v9 offset:4
s_mov_b64 exec, -1""")
    k.label('opass')
    for p in range(5):
        k.label(f'oa{p}')
        k.e(f"s_bitcmp1_b32 s65, {p}\ns_cbranch_scc0 {L(f'oa{p+1}')}\ns_waitcnt lgkmcnt(0)")
        for r in reads(4*p) + reads(4*p+1): k.e(r)
        k.label(f'ob{p}')
        k.e(f"s_waitcnt vmcnt({(20, 16, 12, 8, 0)[p]})")
        regs = [OF+16*p+4*j for j in range(4)] if p < 4 else [OF+64+2*j for j in range(8)]
        k.e(f"v_max_u32 v9, v{regs[0]}, v{regs[1]}")
        for j in range(2, len(regs), 2): k.e(f"v_max3_u32 v9, v{regs[j]}, v{regs[j+1]}, v9")
        k.e(f"v_cmp_eq_u32 vcc, -1, v9\ns_cbranch_vccnz {L(f'oa{p+1}')}\ns_bitset0_b32 s65, {p}")
        for j in range(4*p, 4*p+4):
            nxt = reads(j+2) if j+2 < 20 else []
            k.e(f"s_waitcnt lgkmcnt({5 if j < 19 else 0})")
            for nt in range(5):
                w = WF + 20*(j % 3) + 4*nt
                k.e(f"v_mfma_f32_16x16x32_bf16 v[{ACC+4*nt}:{ACC+4*nt+3}], v[{w}:{w+3}], v[{OF+4*j}:{OF+4*j+3}], v[{ACC+4*nt}:{ACC+4*nt+3}]")
                if nxt: k.e(nxt[nt])
        if p < 4: k.e(f"s_bitcmp1_b32 s65, {p+1}\ns_cbranch_scc1 {L(f'ob{p+1}')}")
    k.label('oa5')
    k.e(f"s_cmp_lg_u32 s65, 0\ns_cbranch_scc1 {L('oretry')}")
    k.label('odone')
    st = [f"{L('oretry')}:", "s_sub_u32 s33, s33, 1", "s_cmp_lt_i32 s33, 1", f"s_cbranch_scc1 {L('odone')}"] + ([f"s_sleep {SLO}"] if SLO else [])
    for p in range(5):
        st += [f"s_bitcmp1_b32 s65, {p}", f"s_cbranch_scc0 {L(f'ot{p}')}"] + oload(p) + [f"{L(f'ot{p}')}:"]
    st += ["s_waitcnt vmcnt(0)", f"s_branch {L('opass')}"]
    stubs.extend(st)
    k.e(f"""v_mov_b32 v28, 1
s_mov_b64 exec, 1
ds_add_u32 v8, v28 offset:8
s_mov_b64 exec, -1""")
    k.e(f"""v_mov_b32 v28, 0
v_mov_b32 v29, 0
v_mov_b32 v5, 0x3f803f80
v_lshlrev_b32 v8, 4, v6
s_lshl_b32 s34, s19, 11
s_add_u32 s34, s34, {WS_ST}
s_lshl_b32 s31, s17, 8
s_add_u32 s31, s31, s34
s_waitcnt lgkmcnt(0)""")
    for nt in range(5):
        a_ = ACC + 4*nt; x = HR + 2*nt
        k.e(f"""v_lshlrev_b32 v24, 16, v{x}
v_and_b32 v25, 0xffff0000, v{x}
v_lshlrev_b32 v26, 16, v{x+1}
v_and_b32 v27, 0xffff0000, v{x+1}
v_pk_add_f32 v[{a_}:{a_+1}], v[{a_}:{a_+1}], v[24:25]
v_pk_add_f32 v[{a_+2}:{a_+3}], v[{a_+2}:{a_+3}], v[26:27]
v_cvt_pk_bf16_f32 v{x}, v{a_}, v{a_+1}
v_cvt_pk_bf16_f32 v{x+1}, v{a_+2}, v{a_+3}
v_dot2c_f32_bf16 v28, v{x}, v5
v_dot2c_f32_bf16 v29, v{x}, v{x}
v_dot2c_f32_bf16 v28, v{x+1}, v5
v_dot2c_f32_bf16 v29, v{x+1}, v{x+1}""")
    k.e("v_mov_b32 v30, s55\nv_mov_b32 v31, s55\ns_nop 0")
    rowsum(k, 28, 24)
    k.e(f"""s_mov_b64 exec, 0xffff
buffer_store_dwordx4 v[28:31], v8, s[12:15], s31 offen sc0 sc1
s_mov_b64 exec, -1
v_lshl_add_u32 v8, v7, 9, v8
s_mov_b32 s33, {SPIN}
{mk(1)}""")
    if SL1: k.e(f"s_sleep {SL1}")
    k.label('spoll')
    k.e(f"""buffer_load_dwordx4 v[32:35], v8, s[12:15], s34 offen sc1
buffer_load_dwordx4 v[36:39], v8, s[12:15], s34 offen offset:256 sc1
s_sub_u32 s33, s33, 1
s_waitcnt vmcnt(0)
v_cmp_ne_u32 vcc, s55, v34
v_cmp_ne_u32 s[36:37], s55, v38
s_cmp_eq_u32 s33, 0
s_cbranch_scc1 {L('sgot')}
s_or_b64 vcc, vcc, s[36:37]
s_cbranch_scc0 {L('sgot')}
s_sleep {SLX}
s_branch {L('spoll')}""")
    k.label('sgot')
    k.e(f"""v_mov_b32 v10, {CNT}
v_mov_b32 v11, 1
s_mov_b64 exec, 1
ds_add_rtn_u32 v11, v10, v11 offset:12
s_mov_b64 exec, -1""")
    k.e(f"{mk(2)}\nv_pk_add_f32 v[28:29], v[32:33], v[36:37]\ns_mov_b32 s20, {f2u(1e-5)}")
    rowsum(k, 28, 24)
    k.e(f"""v_mul_f32 v28, {f2u(-1.0/D)}, v28
v_mul_f32 v29, {f2u(1.0/D)}, v29
v_fma_f32 v29, -v28, v28, v29
v_max_f32 v29, 0, v29
v_add_f32 v24, s20, v29
v_rcp_f32 v25, v24
v_rsq_f32 v24, v24
v_fma_f32 v25, v25, v29, s20
v_rsq_f32 v25, v25
s_mul_i32 s31, s17, {5*65536}
v_mul_f32 v24, v24, v25
v_mul_f32 v25, v24, v28
s_lshl_b32 s32, s19, 9
s_add_u32 s31, s31, s32
s_add_u32 s31, s31, {WS_HN}
s_add_u32 s32, s31, {2*65536}
s_add_u32 s35, s31, {4*65536}
v_bfe_u32 v26, v1, 3, 1
v_lshlrev_b32 v9, 8, v26
v_and_b32 v26, 7, v1
v_lshl_add_u32 v9, v26, 4, v9
v_lshrrev_b32 v26, 1, v7
v_lshl_add_u32 v9, v26, 7, v9
v_and_b32 v26, 1, v7
v_lshl_add_u32 v8, v26, 16, v9""")
    for nt in range(5):
        a = ACC + 4*nt; x = WF + 2*nt
        k.e(f"""v_pk_fma_f32 v[{a}:{a+1}], v[{a}:{a+1}], v[24:25], v[24:25] op_sel:[0,0,1] op_sel_hi:[1,0,1]
v_pk_fma_f32 v[{a+2}:{a+3}], v[{a+2}:{a+3}], v[24:25], v[24:25] op_sel:[0,0,1] op_sel_hi:[1,0,1]
v_cvt_pk_bf16_f32 v{x}, v{a}, v{a+1}
v_cvt_pk_bf16_f32 v{x+1}, v{a+2}, v{a+3}""")
    X = WF
    k.e(f"""s_waitcnt lgkmcnt(0)
v_readfirstlane_b32 s66, v11
s_lshl_b32 s27, s17, 5
s_add_u32 s27, s27, s16
s_lshl_b32 s27, s27, 7
s_add_u32 s27, s27, {WS_FC}
s_cmp_eq_u32 s66, 3
s_cselect_b32 s27, s27, 0x80000000""")
    announce("s27", 10)
    for r in (8, 9): k.e(f"v_min_u32 v{X+r+2}, -2, v{X+r}")
    for r in (8, 9, 0, 1, 2, 3, 4, 5, 6, 7): k.e(f"v_min_u32 v{X+r}, -2, v{X+r}")
    k.e(f"""v_permlane16_swap_b32 v{X+8}, v{X+10}
v_permlane16_swap_b32 v{X+9}, v{X+11}
v_permlane16_swap_b32 v{X}, v{X+2}
v_permlane16_swap_b32 v{X+1}, v{X+3}
v_permlane16_swap_b32 v{X+4}, v{X+6}
v_permlane16_swap_b32 v{X+5}, v{X+7}
buffer_store_dwordx4 v[{X}:{X+3}], v8, s[12:15], s31 offen sc0 sc1
buffer_store_dwordx4 v[{X+4}:{X+7}], v8, s[12:15], s32 offen sc0 sc1
s_mov_b32 exec_lo, 0xffff
s_mov_b32 exec_hi, 0xffff
buffer_store_dwordx4 v[{X+8}:{X+11}], v9, s[12:15], s35 offen sc0 sc1
s_mov_b64 exec, -1
{mk(3)}""")
    wfree()
    EACC = 24; UF = 64; W2R = 104
    assert W2R + NR2*8 == 256
    k.e(f"""s_lshl_b32 s62, s16, 2
s_lshl_b32 s63, s57, 1
s_add_u32 s62, s62, s63
s_mul_i32 s62, s62, 49152
s_lshl_b32 s63, s56, 11
s_add_u32 s62, s62, s63
s_add_u32 s62, s62, {WS_W2}
s_add_u32 s63, s62, 49152
s_mul_i32 s64, s25, {NL2*2048}
s_add_u32 s64, s64, {W2L}""")
    def w2load(n):
        out = []
        for t in range(2):
            if n >= NR2:
                d = ((n-NR2)*2+t)*1024 - (n % 2)*1024
                out += [f"s_add_u32 m0, s64, {d}" if d >= 0 else f"s_sub_u32 m0, s64, {-d}", "s_nop 0",
                        f"buffer_load_dwordx4 v2, s[12:15], s{62+t} offen offset:{(n%2)*1024} lds"]
            elif n >= NE2: pass
            else:
                r = W2R + n*8 + 4*t
                out += [f"buffer_load_dwordx4 v[{r}:{r+3}], v2, s[12:15], s{62+t} offen offset:{(n%2)*1024}"]
        if n % 2 == 1: out += ["s_add_u32 s62, s62, 4096", "s_add_u32 s63, s63, 4096"]
        return out
    k.e(f"""s_cmp_eq_u32 s54, 0
s_cbranch_scc1 {L('Yskip')}
s_lshl_b32 s29, s52, 18
s_lshl_b32 s27, s25, 16
s_add_u32 s29, s29, s27
s_add_u32 s29, s29, {WS_HN}
s_lshl_b32 s27, s25, 12""")
    chkaddr(44, 42)
    k.e("v_add_u32 v44, s27, v44\nv_add_u32 v45, 65536, v44\nv_add_u32 v46, 131072, v44")
    for d in range(10): assert ((d*4*52) >> 8) == (64*d)//80 and (((d*4+3)*52) >> 8) == (64*d+63)//80
    k.e(f"""s_cmp_lg_u32 s66, 3
s_cbranch_scc1 {L('hw')}
v_lshrrev_b32 v3, 5, v1
v_mul_u32_u24 v3, 3, v3
s_lshl_b32 s32, s52, 2
v_add_u32 v3, s32, v3
v_mul_u32_u24 v3, 52, v3
v_lshrrev_b32 v3, 8, v3
v_and_b32 v4, 31, v1
v_lshl_add_u32 v3, v3, 5, v4
v_lshlrev_b32 v3, 7, v3
v_add_u32 v3, {WS_FC}, v3""")
    poll(3, 4)
    if SL2: k.e(f"s_sleep {SL2}")
    post(16, 3)
    k.e(f"s_branch {L('hg')}")
    k.label('hw')
    wfree(16, 1)
    k.label('hg')
    def dissue(c):
        return ([f"s_add_u32 s32, s58, {c*4096}", "s_and_b32 s32, s32, 0xffff", f"s_add_u32 m0, s27, {DSLOT[c]*16384}", "s_add_u32 s32, s32, s29"] +
                [f"buffer_load_dwordx4 v2, s[12:15], s32 offen offset:{i*1024} sc1 lds" for i in range(4)])
    def dchk(c): return [f"ds_read_b32 v40, v{44+DSLOT[c]//4} offset:{(DSLOT[c]%4)*16384}"]
    post = {}; n2 = 0
    for cc in range(W2S, 16):
        post[cc] = w2load(n2) + w2load(n2+1); n2 += 2
    loader('ld', 16, DSLOT, DSCHED, dissue, 4, dchk, post)
    k.e("s_setprio 0")
    for _ in range(W2X):
        for x in w2load(n2): k.e(x)
        n2 += 1
    assert n2 <= NR2
    k.e(f"s_barrier\ns_branch {L('Yw2')}")
    k.label('Yskip')
    k.e("s_setprio 0")
    for n in range(n2):
        for x in w2load(n): k.e(x)
    k.label('Yw2')
    for n in range(n2, 24):
        for x in w2load(n): k.e(x)
        k.e(f"s_waitcnt vmcnt({PL2})")
    k.e(f"""s_mov_b32 s44, s42
s_mov_b32 s45, s43""")
    k.srd(40, 40, SZ['b2']); k.srd(44, 44, SZ['out'])
    k.e(f"""s_lshl_b32 s27, s19, 4
v_add_u32 v8, s27, v6
v_mul_u32_u24 v9, 1280, v8
v_lshl_add_u32 v9, v7, 3, v9
s_mul_i32 s27, s17, 160
v_add_u32 v9, s27, v9
v_lshlrev_b32 v8, 1, v8
buffer_load_ushort v12, v8, s[40:43], 0 offen
s_lshl_b32 s27, s56, 11
v_add_u32 v3, s27, v2
v_add_u32 v4, 61440, v3
v_add_u32 v10, {2*61440}, v3
v_add_u32 v5, s64, v2
s_barrier""")
    def ureads(i):
        c, s = i//2, i % 2
        sl = ESLOT[c]; base = (3, 4, 10)[sl//3]; off = (sl % 3)*20480 + s*1024
        b = UF + 20*(i & 1)
        return [f"ds_read_b128 v[{b+4*nt}:{b+4*nt+3}], v{base} offset:{off + nt*4096}" for nt in range(5)]
    def w2src(i, t): return W2R + (i if i < NR2 else i - NR2)*8 + 4*t
    def w2read(i): return [f"ds_read_b128 v[{w2src(i, t)}:{w2src(i, t)+3}], v5 offset:{((i-NR2)*2+t)*1024}" for t in range(2)]
    k.e("s_waitcnt vmcnt(0)\ns_barrier")
    k.e(mk(4))
    if TS: k.e("s_waitcnt lgkmcnt(0)")
    for r in ureads(0): k.e(r)
    k.e("s_setprio 3")
    pend = 0
    for i in range(24):
        b = UF + 20*(i & 1)
        rd = ureads(i+1) if i < 23 else []
        for nt in range(5):
            k.e(f"s_waitcnt lgkmcnt({4 + pend if rd else 4-nt})")
            for t in range(2):
                a = EACC + 20*t + 4*nt
                c = "0" if i == 0 else f"v[{a}:{a+3}]"
                k.e(f"v_mfma_f32_16x16x32_bf16 v[{a}:{a+3}], v[{b+4*nt}:{b+4*nt+3}], v[{w2src(i, t)}:{w2src(i, t)+3}], {c}")
                if nt == 0 and t == 0 and i % 2 == 1 and i < 23: k.e("s_barrier")
                if rd and t == 0: k.e(rd[nt])
        pend = 0
        if i < NL2:
            for r in w2read(NR2 + i): k.e(r)
            pend = 2
    k.e(mk(5))
    KP = 160
    k.e(f"""s_mul_i32 s28, s25, 5120
s_add_u32 s28, s28, {4*20480}
v_add_u32 v3, s28, v2
s_xor_b32 s28, s25, 1
s_mul_i32 s28, s28, 5120
s_add_u32 s28, s28, {4*20480}
v_add_u32 v4, s28, v2
v_lshlrev_b32 v12, 16, v12
s_cmp_eq_u32 s56, 0
s_cbranch_scc1 {L('ek0')}""")
    for q in (1, 0):
        if q == 0: k.label('ek0')
        for nt in range(5):
            a = EACC + 20*(q ^ 1) + 4*nt
            k.e(f"ds_write_b128 v3, v[{a}:{a+3}] offset:{nt*1024}")
        for nt in range(5):
            a = EACC + 20*q + 4*nt; x = HR + 2*nt; p = KP + 4*nt
            k.e(f"""v_lshlrev_b32 v{p}, 16, v{x}
v_and_b32 v{p+1}, 0xffff0000, v{x}
v_lshlrev_b32 v{p+2}, 16, v{x+1}
v_and_b32 v{p+3}, 0xffff0000, v{x+1}
v_pk_add_f32 v[{a}:{a+1}], v[{a}:{a+1}], v[12:13] op_sel_hi:[1,0]
v_pk_add_f32 v[{a+2}:{a+3}], v[{a+2}:{a+3}], v[12:13] op_sel_hi:[1,0]
v_pk_add_f32 v[{p}:{p+1}], v[{p}:{p+1}], v[{a}:{a+1}]
v_pk_add_f32 v[{p+2}:{p+3}], v[{p+2}:{p+3}], v[{a+2}:{a+3}]""")
        if q == 1: k.e(f"s_branch {L('ekd')}")
    k.label('ekd')
    k.e("""v_and_b32 v8, 1, v7
v_mul_u32_u24 v8, 24, v8
v_add_u32 v8, v9, v8
s_waitcnt lgkmcnt(0)
s_barrier""")
    for nt in range(5): k.e(f"ds_read_b128 v[{180+4*nt}:{183+4*nt}], v4 offset:{nt*1024}")
    X = 200
    for nt in range(5):
        p = KP + 4*nt; w = 180 + 4*nt; x = X + 2*nt
        k.e(f"""s_waitcnt lgkmcnt({4-nt})
v_pk_add_f32 v[{p}:{p+1}], v[{p}:{p+1}], v[{w}:{w+1}]
v_pk_add_f32 v[{p+2}:{p+3}], v[{p+2}:{p+3}], v[{w+2}:{w+3}]
v_cvt_pk_bf16_f32 v{x}, v{p}, v{p+1}
v_cvt_pk_bf16_f32 v{x+1}, v{p+2}, v{p+3}""")
    k.e(f"""v_permlane16_swap_b32 v{X}, v{X+2}
v_permlane16_swap_b32 v{X+1}, v{X+3}
v_permlane16_swap_b32 v{X+4}, v{X+6}
v_permlane16_swap_b32 v{X+5}, v{X+7}
buffer_store_dwordx2 v[{X+8}:{X+9}], v9, s[44:47], 0 offen offset:128
buffer_store_dwordx4 v[{X}:{X+3}], v8, s[44:47], 0 offen
buffer_store_dwordx4 v[{X+4}:{X+7}], v8, s[44:47], 0 offen offset:64""")
    ts_end(k, TS, 2, 12, 40)
    k.e("s_endpgm")
    for x in stubs: k.e(x)
```

```python
from common import *
import math

def ts_begin(k, TS):
    if TS:
        k.e("s_memrealtime s[96:97]")
        for i in range(84, 96): k.e(f"s_mov_b32 s{i}, 0")
def ts_mark(k, TS, i):
    if TS: k.e(f"s_memrealtime s[{84+2*i}:{85+2*i}]")
def ts_cyc(k, TS, i):
    if TS: k.e(f"s_memtime s[{84+2*i}:{85+2*i}]")
def ts_end(k, TS, idx, wsrd, vtmp, wait=True):
    if not TS: return
    vtmp = (vtmp + 3)//4*4
    if wait: k.e("s_waitcnt vmcnt(0)")
    k.e(f"""s_memrealtime s[98:99]
s_waitcnt lgkmcnt(0)
s_mov_b64 exec, 1
v_mov_b32 v{vtmp}, s18
s_lshl_b32 s100, s2, 4
v_add_u32 v{vtmp}, s100, v{vtmp}
v_lshlrev_b32 v{vtmp}, 5, v{vtmp}
v_add_u32 v{vtmp}, {WS_TS + idx*131072}, v{vtmp}
v_mov_b32 v{vtmp+4}, s96
v_mov_b32 v{vtmp+5}, s98
v_mov_b32 v{vtmp+6}, s84
v_mov_b32 v{vtmp+7}, s86
v_mov_b32 v{vtmp+8}, s88
v_mov_b32 v{vtmp+9}, s90
v_mov_b32 v{vtmp+10}, s92
v_mov_b32 v{vtmp+11}, s94
buffer_store_dwordx4 v[{vtmp+4}:{vtmp+7}], v{vtmp}, s[{wsrd}:{wsrd+3}], 0 offen
buffer_store_dwordx4 v[{vtmp+8}:{vtmp+11}], v{vtmp}, s[{wsrd}:{wsrd+3}], 0 offen offset:16""")
```

```python
import sys
sys.path.insert(0, "gen")
from common import *
from kA import kernel_A
from kG import kernel_G
HDR = open("cdna_kernels/" + NAME + ".s.ref").read().split("; Override launch")[0]
def build(TS=False, force_slow=False, F={}, A={}, **kw):
    ks = [kernel_A(TS, **A), kernel_G(TS, force_slow, F, **kw)]
    return assemble_file(ks, HDR)
if __name__ == "__main__":
    open("cur.s", "w").write(build())
    open("ts.s", "w").write(build(TS=True))
    open("slow.s", "w").write(build(force_slow=True))
```

```python
import sys
sys.path.insert(0, "gen")
from common import *
from kM import kernel_M
HDR = open("cdna_kernels/" + NAME + ".s.ref").read().split("; Override launch")[0]
def build(TS=False, force_slow=False, F={}, single=False, **kw):
    return assemble_file([kernel_M(TS, force_slow, F, **kw)], HDR, single)
if __name__ == "__main__":
    open("cur.s", "w").write(build(single=True))
    open("curl.s", "w").write(build())
    open("ts.s", "w").write(build(TS=True))
    open("slow.s", "w").write(build(force_slow=True))
```

```python
NAME = "sequential_preLN__mha_block__mixer_token_mlp__prompt"
S, D, H, DH, F = 2048, 640, 32, 20, 1536
KA = dict(x=0, wqkv=8, wo=16, bx=24, w1=32, b1=40, w2=48, b2=56, out=64, dbg=72, ws=80)
SZ = dict(x=S*D*2, wqkv=D*3*D*2, wo=D*D*2, w1=S*F*2, b1=F*2, w2=F*S*2, b2=S*2, out=S*D*2, dbg=256)
WS_QP = 0x000000
WS_KP = 0x280000
WS_VP = 0x500000
WS_OI = 0x780000
WS_HN = 0xA00000
WS_UI = 0xC80000
WS_WO = 0xE60000
WS_ST = 0xF40000
WS_PX = 0xF80000
WS_PW = 0xFD0000
WS_FC = 0xFF8000
WS_FD = 0x1000000
WS_FB = 0x1008000
WS_FA = 0x1010000
WS_FQ = 0x1018000
WS_W1 = 0x1020000
WS_W2 = 0x1620000
WS_TS = 0x1C20000
WS_SIZE = 0x1D20000

def vr(a, n=1):
    return f"v{a}" if n == 1 else f"v[{a}:{a+n-1}]"
def sr(a, n=1):
    return f"s{a}" if n == 1 else f"s[{a}:{a+n-1}]"

class K:
    def __init__(self, name, grid, block, lds, vgpr, sgpr=102):
        self.name, self.grid, self.block, self.lds, self.vgpr, self.sgpr = name, grid, block, lds, vgpr, sgpr
        self.lines = []
        self.uid = 0
    def e(self, s):
        for l in s.strip("\n").split("\n"):
            l = l.strip()
            if not l: continue
            if l.endswith(":") or l.startswith(".") or l.startswith(";"):
                self.lines.append(l)
            else:
                self.lines.append("    " + l)
    def L(self, n): return f"L_{self.name}_{n}"
    def label(self, n): self.lines.append(self.L(n) + ":")
    def srd(self, dst, ptr, nbytes, add=0):
        if add:
            self.e(f"s_add_u32 s{dst}, s{ptr}, {add}\ns_addc_u32 s{dst+1}, s{ptr+1}, 0")
        else:
            if dst != ptr:
                self.e(f"s_mov_b32 s{dst}, s{ptr}\ns_mov_b32 s{dst+1}, s{ptr+1}")
        self.e(f"s_mov_b32 s{dst+2}, {nbytes}\ns_mov_b32 s{dst+3}, 0x00020000")
    def launch_line(self):
        return f"; @launch kernel={self.name} grid=({self.grid},1,1) block=({self.block},1,1) lds={self.lds}"
    def text(self):
        acc = (self.vgpr + 3)//4*4
        return (f".text\n.globl {self.name}\n.p2align 8\n.type {self.name},@function\n{self.name}:\n" + "\n".join(self.lines) + "\n")
    def desc(self):
        acc = (self.vgpr + 3)//4*4
        return f""".p2align 6
.amdhsa_kernel {self.name}
  .amdhsa_next_free_vgpr {self.vgpr}
  .amdhsa_next_free_sgpr {self.sgpr}
  .amdhsa_accum_offset {acc}
  .amdhsa_group_segment_fixed_size 0
  .amdhsa_kernarg_size 88
  .amdhsa_user_sgpr_count 2
  .amdhsa_user_sgpr_kernarg_segment_ptr 1
  .amdhsa_system_sgpr_workgroup_id_x 1
.end_amdhsa_kernel
"""

def f2u(x):
    import struct
    return "0x%08x" % struct.unpack("<I", struct.pack("<f", x))[0]

def assemble_file(kernels, header_comment="", single=False):
    out = []
    out.append(header_comment.rstrip("\n")) if header_comment else None
    if len(kernels) == 1 and single:
        k = kernels[0]; out.append(f"; @launch grid=({k.grid},1,1) block=({k.block},1,1) lds={k.lds}")
    else:
        for k in kernels: out.append(k.launch_line())
    out.append('.amdgcn_target "amdgcn-amd-amdhsa--gfx950"')
    seen = []
    for k in kernels:
        if k not in seen:
            out.append(k.text()); seen.append(k)
    out.append('.section .rodata,"a"')
    for k in seen: out.append(k.desc())
    return "\n".join(out)

def stamp(k, idx, sreg):
    k.e(f"s_memrealtime s[{sreg}:{sreg+1}]")

def unit_src_voff(k, dst, lane, pitch, t0, gap=16):
    k.e(f"""v_bfe_u32 v{t0}, v{lane}, 3, 2
v_bfe_u32 v{t0+1}, v{lane}, 5, 1
v_mul_u32_u24 v{t0+1}, {gap}, v{t0+1}
v_add_u32 v{t0}, v{t0}, v{t0+1}
v_mul_u32_u24 v{dst}, {pitch}, v{t0}
v_bfe_u32 v{t0}, v{lane}, 4, 1
v_lshlrev_b32 v{t0}, 2, v{t0}
v_and_b32 v{t0+1}, 7, v{lane}
v_xor_b32 v{t0}, v{t0}, v{t0+1}
v_lshl_add_u32 v{dst}, v{t0}, 4, v{dst}""")

def unit_tr_addr(k, dst, lane, t0):
    k.e(f"""v_bfe_u32 v{t0}, v{lane}, 2, 2
v_lshlrev_b32 v{dst}, 7, v{t0}
v_lshrrev_b32 v{t0+1}, 4, v{lane}
v_lshlrev_b32 v{t0+1}, 1, v{t0+1}
v_bfe_u32 v{t0}, v{lane}, 1, 1
v_add_u32 v{t0+1}, v{t0+1}, v{t0}
v_bfe_u32 v{t0}, v{lane}, 3, 1
v_lshlrev_b32 v{t0}, 2, v{t0}
v_xor_b32 v{t0+1}, v{t0+1}, v{t0}
v_lshl_add_u32 v{dst}, v{t0+1}, 4, v{dst}
v_and_b32 v{t0}, 1, v{lane}
v_lshl_add_u32 v{dst}, v{t0}, 3, v{dst}""")

def code_touch(k, start, end, first_s, vt, lane=1, sp=38, n=1):
    u = k.uid; k.uid += 1
    k.e(f"s_getpc_b64 s[{sp}:{sp+1}]")
    k.label(f'pc{u}')
    k.e(f"""s_add_u32 s{sp}, s{sp}, {start}-{k.L(f'pc{u}')}
s_addc_u32 s{sp+1}, s{sp+1}, 0""")
    out = []
    for j in range(n):
        k.e(f"""v_add_u32 v{vt+2*j}, {first_s}, v{lane}
v_add_u32 v{vt+2*j}, {64*j}, v{vt+2*j}
v_lshlrev_b32 v{vt+2*j}, 7, v{vt+2*j}
v_min_u32 v{vt+2*j}, {end}-{start}-4, v{vt+2*j}
v_mov_b32 v{vt+2*j+1}, s{sp+1}
v_add_co_u32 v{vt+2*j}, vcc, s{sp}, v{vt+2*j}
s_nop 1
v_addc_co_u32 v{vt+2*j+1}, vcc, 0, v{vt+2*j+1}, vcc""")
        out.append(f"global_load_dword v{vt+2*j}, v[{vt+2*j}:{vt+2*j+1}], off")
    return out
```

```python
from common import *
from ts import *
import math

def phaseA(k, TS, DONE, CNT, SPIN, SPS=120):
    STAT = 131072
    L = lambda n: k.L('a_' + n)
    label = lambda n: k.label('a_' + n)
    mk = lambda i: f"s_memrealtime s[{84+2*i}:{85+2*i}]" if TS else ""
    ts_begin(k, TS)
    k.e(f"""s_cmp_ge_u32 s2, 256
s_cbranch_scc1 {k.L('end')}
s_load_dwordx4 s[4:7], s[0:1], {KA['x']}
s_load_dwordx2 s[12:13], s[0:1], {KA['ws']}
s_load_dwordx2 s[40:41], s[0:1], {KA['wo']}
s_load_dwordx2 s[44:45], s[0:1], {KA['dbg']}
v_lshrrev_b32 v2, 6, v0
v_and_b32 v1, 63, v0
v_readfirstlane_b32 s18, v2
s_and_b32 s20, s2, 7
s_lshr_b32 s21, s2, 3
s_lshr_b32 s22, s20, 1
s_lshl_b32 s22, s22, 2
s_and_b32 s23, s21, 3
s_add_u32 s22, s22, s23
s_lshl_b32 s16, s22, 7
s_lshr_b32 s23, s21, 2
s_and_b32 s24, s20, 1
s_lshl_b32 s24, s24, 3
s_add_u32 s19, s23, s24
s_lshl_b32 s17, s19, 7
; first K chunk c0 = (rt + ct) % 10
s_add_u32 s35, s22, s19
s_mul_i32 s36, s35, 26
s_lshr_b32 s36, s36, 8
s_mul_i32 s36, s36, 10
s_sub_u32 s35, s35, s36
s_cmp_eq_u32 s19, 15
s_cbranch_scc1 {L('spare')}
s_cmp_lt_u32 s18, 4
s_cbranch_scc1 {L('compute')}""")
    def addr_regs(xrow_s, wblk_s):
        k.e(f"""v_add_u32 v4, {xrow_s}, v10
v_lshlrev_b32 v4, 7, v4
v_lshrrev_b32 v5, 1, v10
v_and_b32 v5, 7, v5
v_xor_b32 v5, v5, v11
v_lshl_add_u32 v12, v5, 4, v4
v_xor_b32 v13, 32, v12
v_xor_b32 v14, 64, v12
v_xor_b32 v15, 96, v12
v_bfe_u32 v4, v1, 2, 2
v_lshl_add_u32 v5, v11, 3, v4
v_lshlrev_b32 v5, 8, v5
v_bfe_u32 v6, v1, 4, 1
v_lshlrev_b32 v6, 1, v6
v_bfe_u32 v7, v1, 1, 1
v_add_u32 v6, v6, v7
v_add_u32 v6, {wblk_s}, v6
v_lshlrev_b32 v4, 2, v4
v_xor_b32 v6, v6, v4
v_lshl_add_u32 v5, v6, 4, v5
v_and_b32 v6, 1, v1
v_lshl_add_u32 v5, v6, 3, v5
v_add_u32 v16, 16384, v5""")
    def halves():
        k.e("""v_mov_b32 v28, v26
v_mov_b32 v29, v27
v_mov_b32 v31, v30
s_nop 1
v_permlane32_swap_b32 v26, v28
v_permlane32_swap_b32 v27, v29
v_permlane32_swap_b32 v30, v31
s_nop 1
v_pk_add_f32 v[26:27], v[26:27], v[28:29]
v_add_f32 v30, v30, v31""")
    k.e(f"""s_sub_u32 s25, s18, 4
; vX = (row0 + 8j + l/8)*1280 + ((l%8) ^ ((4j + l/16)&7))*16
v_lshrrev_b32 v2, 3, v1
s_lshl_b32 s26, s25, 3
s_add_u32 s26, s26, s16
v_add_u32 v2, s26, v2
v_mul_u32_u24 v2, 1280, v2
v_lshrrev_b32 v4, 4, v1
s_lshl_b32 s26, s25, 2
v_add_u32 v5, s26, v4
v_and_b32 v6, 7, v5
v_and_b32 v7, 7, v1
v_xor_b32 v6, v6, v7
v_lshl_add_u32 v2, v6, 4, v2
; vW = (4j + l/16)*3840 + col0*2 + ((l%16) ^ ((l/16)<<2))*16
v_mul_u32_u24 v3, 3840, v5
v_and_b32 v6, 15, v1
v_lshlrev_b32 v7, 2, v4
v_xor_b32 v6, v6, v7
v_lshl_add_u32 v3, v6, 4, v3
s_lshl_b32 s26, s17, 1
v_add_u32 v3, s26, v3
s_lshl_b32 s30, s25, 10
s_lshl_b32 s28, s35, 7
s_mul_i32 s29, s35, {64*3840}
s_mov_b32 s33, 0
s_waitcnt lgkmcnt(0)
s_mov_b32 s8, s6
s_mov_b32 s9, s7""")
    k.srd(4, 4, SZ['x']); k.srd(8, 8, SZ['wqkv'])
    q = []
    def issue(c):
        for i in range(4):
            k.e(f"""s_add_u32 m0, s30, {i*4096}
s_add_u32 s32, s28, {i*40960}
buffer_load_dwordx4 v2, s[4:7], s32 offen lds
s_add_u32 m0, s30, {16384 + i*4096}
s_add_u32 s32, s29, {i*61440}
buffer_load_dwordx4 v3, s[8:11], s32 offen lds""")
        k.e(f"""s_add_u32 s28, s28, 128
s_add_u32 s29, s29, {64*3840}
s_cmp_eq_u32 s28, 1280
s_cselect_b32 s28, 0, s28
s_cselect_b32 s29, 0, s29
s_add_u32 s30, s30, 32768
s_and_b32 s30, s30, 0x1ffff""")
        if c is not None: q.extend([c]*8)
    def wait(*names):
        last = max(i for i, n in enumerate(q) if n in names)
        k.e(f"s_waitcnt vmcnt({len(q)-1-last})")
        del q[:last+1]
    label('pro')
    issue(None)
    k.e(f"s_add_u32 s33, s33, 1\ns_cmp_lt_u32 s33, 3\ns_cbranch_scc1 {L('pro')}")
    q.extend([0]*8 + [1]*8 + [2]*8)
    k.srd(12, 12, WS_SIZE); k.srd(44, 44, 256)
    k.e("v_and_b32 v10, 31, v1\nv_lshrrev_b32 v11, 5, v1\ns_lshl_b32 s26, s25, 5\ns_lshl_b32 s27, s25, 2")
    addr_regs("s26", "s27")
    for v in range(31): assert (v*26) >> 8 == v//10
    k.e(f"""v_mov_b32 v24, 0x3f803f80
v_mov_b32 v26, 0
v_mov_b32 v27, 0
v_mov_b32 v28, 0
v_mov_b32 v29, 0
v_mov_b32 v30, 0
v_mov_b32 v31, 0
v_mov_b32 v22, 0
v_add_u32 v8, s26, v10
v_lshlrev_b32 v18, 4, v8
v_lshlrev_b32 v19, 3, v8
s_mul_i32 s48, s22, 20480
s_add_u32 s48, s48, {WS_PX}
s_mul_i32 s49, s19, 10240
s_add_u32 s49, s49, {WS_PW}
s_lshl_b32 s50, s35, 11
s_add_u32 s50, s50, s48
s_lshl_b32 s51, s35, 10
s_add_u32 s51, s51, s49
s_mov_b32 s33, {SPIN}""")
    wait(0); k.e("s_barrier")
    for ks in range(4):
        k.e(f"ds_read_b128 v[{32+4*ks}:{35+4*ks}], v{12+ks}")
    for t in range(8):
        k.e(f"ds_read_b64_tr_b16 v[{48+2*t}:{49+2*t}], v16 offset:{(16*(t//2)+4*(t%2))*256}")
    k.e("buffer_load_dword v23, v22, s[44:47], 0 offen sc1"); q.append('tag')
    issue(3)
    wait(1); k.e("s_waitcnt lgkmcnt(0)\ns_barrier")
    issue(4)
    for r in range(32, 48):
        k.e(f"v_dot2c_f32_bf16 v{26+2*(r&1)}, v{r}, v24\nv_dot2c_f32_bf16 v{27+2*(r&1)}, v{r}, v{r}")
    wait(2); k.e("s_barrier")
    issue(5)
    for d in range(16):
        k.e(f"v_dot2c_f32_bf16 v{30+(d&1)}, v{48+d}, v24")
    k.e("""v_pk_add_f32 v[26:27], v[26:27], v[28:29]
s_nop 2
v_add_f32 v30, v30, v31""")
    halves()
    wait('tag')
    k.e(f"v_cmp_eq_u32 vcc, 0, v23\ns_cbranch_vccnz {L('tw')}")
    label('tgot')
    stubs = [f"{L('tw')}:", "buffer_load_dword v23, v22, s[44:47], 0 offen sc1", "s_sub_u32 s33, s33, 1", "s_waitcnt vmcnt(0)", "v_cmp_eq_u32 vcc, 0, v23",
             "s_cmp_lt_i32 s33, 1", f"s_cbranch_scc1 {L('tgot')}", f"s_cbranch_vccnz {L('tw')}", f"s_branch {L('tgot')}"]
    k.e(f"""{mk(1)}
v_mov_b32 v28, v23
v_mov_b32 v29, v23
v_mov_b32 v31, v23
s_mov_b32 exec_hi, 0
buffer_store_dwordx4 v[26:29], v18, s[12:15], s50 offen sc0 sc1
buffer_store_dwordx2 v[30:31], v19, s[12:15], s51 offen sc0 sc1
s_mov_b32 exec_hi, -1
v_mul_u32_u24 v21, 10240, v11
v_add_u32 v18, v18, v21
v_lshrrev_b32 v21, 1, v21
v_add_u32 v19, v19, v21
s_add_u32 s50, s48, 4096
s_add_u32 s51, s48, 8192
s_add_u32 s52, s49, 4096""")
    q.extend(['pub']*2)
    for c in range(3, 7):
        wait(c); k.e("s_barrier"); issue(c+3)
    gather = ([f"buffer_load_dwordx4 v[{32+4*n}:{35+4*n}], v18, s[12:15], s{(48,48,50,50,51)[n]} offen offset:{(n%2)*2048} sc1" for n in range(5)] +
              [f"buffer_load_dwordx2 v[{52+2*n}:{53+2*n}], v19, s[12:15], s{(49,49,49,49,52)[n]} offen offset:{(n%4)*1024} sc1" for n in range(5)])
    wait(7); k.e("s_barrier")
    k.e(mk(2))
    for x in gather: k.e(x)
    q.extend(['g']*10)
    wait(8); k.e("s_barrier")
    wait(9); k.e("s_barrier")
    k.e(mk(3))
    label('poll')
    k.e("s_waitcnt vmcnt(0)\nv_xor_b32 v20, v23, v34")
    for r in (38, 42, 46, 50, 53, 55, 57, 59, 61):
        k.e(f"v_xor_b32 v21, v23, v{r}\nv_or_b32 v20, v20, v21")
    k.e(f"v_cmp_ne_u32 vcc, 0, v20\ns_cbranch_vccnz {L('gw')}")
    label('got')
    stubs += [f"{L('gw')}:", "s_sub_u32 s33, s33, 1", "s_cmp_lt_i32 s33, 1", f"s_cbranch_scc1 {L('got')}", "s_sleep 4"] + gather + [f"s_branch {L('poll')}"]
    csc = (DH ** -0.5) * math.log2(math.e)
    k.e(f"""{mk(4)}
v_pk_add_f32 v[32:33], v[32:33], v[36:37]
v_pk_add_f32 v[40:41], v[40:41], v[44:45]
v_add_f32 v52, v52, v54
v_add_f32 v56, v56, v58
v_pk_add_f32 v[32:33], v[32:33], v[48:49]
v_add_f32 v52, v52, v60
v_pk_add_f32 v[26:27], v[32:33], v[40:41]
v_add_f32 v30, v52, v56""")
    halves()
    k.e(f"""v_mul_f32 v26, {f2u(-1.0/D)}, v26
v_mul_f32 v28, {f2u(1.0/D)}, v27
v_fma_f32 v28, -v26, v26, v28
v_max_f32 v28, 0, v28
v_add_f32 v28, {f2u(1e-5)}, v28
v_rsq_f32 v27, v28
s_cmp_lt_u32 s19, 5
s_cselect_b32 s27, {f2u(csc)}, 1.0
v_mul_f32 v27, s27, v27
v_lshlrev_b32 v5, 2, v8
v_add_u32 v5, {STAT}, v5
v_lshlrev_b32 v6, 3, v8
v_add_u32 v6, {STAT}, v6
ds_write_b32 v5, v27
ds_write_b32 v5, v26 offset:512
ds_write_b32 v5, v30 offset:1024
ds_write_b64 v6, v[26:27] offset:2048
s_waitcnt lgkmcnt(0)
s_barrier""")
    k.e(f"s_branch {DONE}")
    for x in stubs: k.e(x)
    def cntinit():
        k.e(f"v_mov_b32 v8, {CNT}\nv_mov_b32 v40, 0\nv_mov_b32 v41, 0\nv_mov_b32 v42, 0\nv_mov_b32 v43, 0\nds_write_b128 v8, v[40:43]\nds_write_b128 v8, v[40:43] offset:16")
    label('spare')
    unit_src_voff(k, 2, 1, 1280, 4, gap=8)
    unit_src_voff(k, 6, 1, 1280, 4, gap=80)
    unit_tr_addr(k, 3, 1, 4)
    for n in range(40): assert (n*52) >> 8 == n//5
    k.e(f"s_mul_i32 s23, s18, 5120\nv_add_u32 v3, s23, v3\ns_mov_b32 s37, s18\ns_waitcnt lgkmcnt(0)")
    k.srd(12, 12, WS_SIZE); k.srd(40, 40, SZ['wo']); k.srd(44, 44, 256)
    cntinit()
    label('spl')
    k.e(f"""v_lshrrev_b32 v4, 4, v1
s_lshl_b32 s20, s37, 2
v_add_u32 v4, s20, v4
v_mul_u32_u24 v5, 52, v4
v_lshrrev_b32 v5, 8, v5
s_mov_b32 s21, {102400 - 5120}
v_lshlrev_b32 v4, 10, v4
v_mad_u32_u24 v4, v5, s21, v4
v_and_b32 v5, 15, v1
v_lshl_add_u32 v4, v5, 4, v4
s_mul_i32 s24, s22, 5
s_lshl_b32 s25, s37, 7""")
    for m in range(5):
        k.e(f"""s_add_u32 s26, s24, {m}
s_lshr_b32 s27, s26, 2
s_and_b32 s36, s26, 3
s_lshr_b32 s28, s26, 1
s_mul_i32 s28, s28, 20
s_and_b32 s29, s26, 1
s_lshl_b32 s29, s29, 2
s_add_u32 s28, s28, s29
s_sub_u32 s29, s27, 16
s_lshl_b32 s29, s29, 3
s_add_u32 s29, s29, s36
s_mul_i32 s29, s29, 20
s_add_u32 s29, s29, 16
s_cmp_lt_u32 s26, 64
s_cselect_b32 s28, s28, s29
s_cselect_b64 vcc, -1, 0
s_mul_i32 s28, s28, 1280
s_add_u32 s28, s28, s25
v_cndmask_b32 v7, v6, v2, vcc
s_add_u32 m0, s23, {m*1024}
s_mul_i32 s27, s27, 5120
buffer_load_dwordx4 v7, s[40:43], s28 offen lds
s_lshl_b32 s36, s36, 8
s_add_u32 s27, s27, s36
s_add_u32 s{30+m}, s27, {WS_WO}""")
    k.e("s_waitcnt vmcnt(0)")
    for m in range(5):
        k.e(f"ds_read_b64_tr_b16 v[{16+4*m}:{17+4*m}], v3 offset:{m*1024}\nds_read_b64_tr_b16 v[{18+4*m}:{19+4*m}], v3 offset:{m*1024+512}")
    k.e("s_waitcnt lgkmcnt(0)")
    for m in range(5):
        k.e(f"buffer_store_dwordx4 v[{16+4*m}:{19+4*m}], v4, s[12:15], s{30+m} offen sc0 sc1")
    k.e(f"s_add_u32 s37, s37, 8\ns_cmp_lt_u32 s37, 10\ns_cbranch_scc1 {L('spl')}\ns_waitcnt vmcnt(0)\ns_barrier\ns_cmp_lt_u32 s18, 4\ns_cbranch_scc1 {DONE}\ns_sleep {SPS}\ns_branch {DONE}")
    label('compute')
    k.e("v_and_b32 v10, 31, v1\nv_lshrrev_b32 v11, 5, v1\ns_waitcnt lgkmcnt(0)")
    k.srd(12, 12, WS_SIZE); k.srd(44, 44, 256)
    k.e(f"s_cmp_lg_u32 s18, 0\ns_cbranch_scc1 {L('notag')}")
    k.e("s_lshl_b32 s26, s21, 4\ns_mov_b64 exec, 0xffff")
    for x in code_touch(k, L('notag'), k.L('last'), "s26", 4): k.e(x.replace("dword v4", "dword v255"))
    k.e(f"""s_mov_b64 exec, -1
s_cmp_lg_u32 s2, 0
s_cbranch_scc1 {L('notag')}
v_mov_b32 v22, 0
s_memrealtime s[36:37]
s_waitcnt lgkmcnt(0)
s_lshl_b32 s36, s36, 2
s_or_b32 s36, s36, 1
v_mov_b32 v23, s36
s_mov_b64 exec, 1
buffer_store_dword v23, v22, s[44:47], 0 offen sc0 sc1
s_mov_b64 exec, -1""")
    label('notag')
    cntinit()
    k.e(f"""s_lshl_b32 s26, s19, 4
s_add_u32 s26, s26, s22
s_lshl_b32 s26, s26, 7
s_add_u32 s26, s26, {WS_FQ}
s_cmp_eq_u32 s18, 1
s_cselect_b32 s26, s26, 0x80000000
v_lshlrev_b32 v9, 4, v1
s_mov_b64 exec, 0xff
buffer_store_dwordx4 v[40:43], v9, s[12:15], s26 offen sc0 sc1
s_mov_b64 exec, -1""")
    k.e("s_setprio 2\ns_lshr_b32 s25, s18, 1\ns_and_b32 s26, s18, 1\ns_lshl_b32 s27, s25, 6\ns_lshl_b32 s28, s26, 3")
    addr_regs("s27", "s28")
    k.e("v_xor_b32 v17, 64, v16")
    ACC = 96; FR = 32
    for r in range(64): k.e(f"v_mov_b32 v{ACC+r}, 0")
    def reads(ks):
        b = FR + 16*ks
        return [f"ds_read_b128 v[{b}:{b+3}], v{18+ks}",
                f"ds_read_b64_tr_b16 v[{b+8}:{b+9}], v22 offset:{16*ks*256}",
                f"ds_read_b64_tr_b16 v[{b+10}:{b+11}], v22 offset:{(16*ks+4)*256}",
                f"ds_read_b128 v[{b+4}:{b+7}], v{18+ks} offset:4096",
                f"ds_read_b64_tr_b16 v[{b+12}:{b+13}], v23 offset:{16*ks*256}",
                f"ds_read_b64_tr_b16 v[{b+14}:{b+15}], v23 offset:{(16*ks+4)*256}"]
    def mfmas(ks, vmode):
        b = FR + 16*ks
        out = []
        for (mb, nb) in ((0,0),(1,0),(0,1),(1,1)):
            a = ACC + (mb*2+nb)*16
            X = f"v[{b+4*mb}:{b+4*mb+3}]"; W = f"v[{b+8+4*nb}:{b+8+4*nb+3}]"
            A, B = (X, W) if vmode else (W, X)
            out.append(f"v_mfma_f32_32x32x16_bf16 v[{a}:{a+15}], {A}, {B}, v[{a}:{a+15}]")
        return out
    k.e("s_mov_b32 s33, 0\ns_mov_b32 s34, 0")
    for t in range(6): k.e(f"v_mov_b32 v{18+t}, v{12+t}")
    ts_mark(k, TS, 0)
    k.e("s_waitcnt lgkmcnt(0)\ns_barrier")
    ts_mark(k, TS, 1); ts_cyc(k, TS, 4)
    if TS: k.e("s_waitcnt lgkmcnt(0)")
    for r in reads(0) + reads(1): k.e(r)
    k.e(f"""s_cmp_ge_u32 s19, 10
s_cbranch_scc1 {L('cloopV')}""")
    for vmode in (0, 1):
        label('cloopV' if vmode else 'cloopQ')
        for ks in range(4):
            rd = reads((ks+2) % 4); mf = mfmas(ks, vmode)
            if ks == 2:
                k.e("s_waitcnt lgkmcnt(6)"); k.e(mf[0])
                k.e("s_add_u32 s34, s34, 32768\ns_and_b32 s34, s34, 0x1ffff")
                for t in range(6): k.e(f"v_add_u32 v{18+t}, s34, v{12+t}")
                k.e(mf[1]); k.e("s_waitcnt lgkmcnt(0)\ns_barrier")
                k.e(rd[0]); k.e(rd[1]); k.e(mf[2]); k.e(rd[2]); k.e(rd[3]); k.e(mf[3]); k.e(rd[4]); k.e(rd[5])
            else:
                if ks != 3: k.e("s_waitcnt lgkmcnt(6)")
                k.e(mf[0]); k.e(rd[0]); k.e(rd[1])
                k.e(mf[1]); k.e(rd[2]); k.e(rd[3])
                k.e(mf[2]); k.e(rd[4]); k.e(rd[5])
                if ks == 3: k.e("s_add_u32 s33, s33, 1\ns_cmp_lt_u32 s33, 10")
                k.e(mf[3])
        k.e(f"""s_cbranch_scc1 {L('cloopV' if vmode else 'cloopQ')}
s_waitcnt lgkmcnt(0)""")
        ts_mark(k, TS, 2); ts_cyc(k, TS, 5)
        if TS: k.e("s_waitcnt lgkmcnt(0)")
        E0 = 32
        if not vmode:
            k.e(f"""s_lshl_b32 s27, s26, 8
v_lshlrev_b32 v4, 4, v11
v_add_u32 v4, s27, v4
v_add_u32 v4, {STAT+1024}, v4
s_lshl_b32 s27, s25, 6
v_add_u32 v6, s27, v10
v_lshlrev_b32 v5, 3, v6
v_add_u32 v5, {STAT+2048}, v5
ds_read_b64 v[{E0+32}:{E0+33}], v5
ds_read_b64 v[{E0+34}:{E0+35}], v5 offset:256""")
            for nb in range(2):
                for g in range(4):
                    r = E0 + nb*16 + g*4
                    k.e(f"ds_read_b128 v[{r}:{r+3}], v4 offset:{nb*128 + g*32}")
            k.e(f"""v_add_u32 v6, s16, v6
v_lshlrev_b32 v6, 4, v6
v_lshl_add_u32 v6, v11, 15, v6
s_lshl_b32 s27, s19, 4
s_lshl_b32 s28, s26, 3
s_add_u32 s27, s27, s28
s_lshl_b32 s27, s27, 15""")
            assert WS_KP == WS_QP + 80*32768 and WS_QP == 0
            n = 0
            for nb in range(2):
                for gp in range(2):
                    k.e(f"s_add_u32 s28, s27, {(nb*4+gp*2)*32768}")
                    k.e(f"s_waitcnt lgkmcnt({6 - nb*4 - gp*2})")
                    for mb in range(2):
                        a = ACC + (mb*2+nb)*16 + gp*8
                        c = E0 + nb*16 + gp*8
                        m = E0 + 32 + 2*mb
                        o = E0 + 36 + 4*(n % 3); n += 1
                        for p in range(0, 8, 2):
                            k.e(f"v_pk_fma_f32 v[{a+p}:{a+p+1}], v[{c+p}:{c+p+1}], v[{m}:{m+1}], v[{a+p}:{a+p+1}] op_sel_hi:[1,0,1]")
                        for p in range(0, 8, 2):
                            k.e(f"v_pk_mul_f32 v[{a+p}:{a+p+1}], v[{a+p}:{a+p+1}], v[{m}:{m+1}] op_sel:[0,1] op_sel_hi:[1,1]")
                        for p in (0, 4, 2, 6):
                            k.e(f"v_cvt_pk_bf16_f32 v{o+p//2}, v{a+p}, v{a+p+1}")
                        k.e(f"s_nop 0\nv_permlane32_swap_b32 v{o}, v{o+2}\nv_permlane32_swap_b32 v{o+1}, v{o+3}")
                        k.e(f"buffer_store_dwordx4 v[{o}:{o+3}], v6, s[12:15], s28 offen offset:{mb*512} sc0 sc1")
            ts_mark(k, TS, 3)
            k.e(f"s_branch {DONE}")
        else:
            for nv in range(640): assert (nv*3277) >> 16 == nv//20
            k.e(f"""s_lshl_b32 s27, s25, 8
v_lshlrev_b32 v4, 4, v11
v_add_u32 v4, s27, v4
v_add_u32 v4, {STAT}, v4
s_lshl_b32 s27, s26, 6
v_add_u32 v6, s27, v10
v_lshlrev_b32 v5, 2, v6
v_add_u32 v5, {STAT+1024}, v5
ds_read_b32 v24, v5
ds_read_b32 v26, v5 offset:128""")
            for mb in range(2):
                for g in range(4):
                    b = E0 + mb*32
                    k.e(f"ds_read_b128 v[{b+g*4}:{b+g*4+3}], v4 offset:{mb*128 + g*32}")
                    k.e(f"ds_read_b128 v[{b+16+g*4}:{b+16+g*4+3}], v4 offset:{512 + mb*128 + g*32}")
                if mb == 0:
                    k.e(f"""s_sub_u32 s27, s17, 1280
v_add_u32 v6, s27, v6
v_mul_u32_u24 v7, 320, v11
v_add_u32 v7, {WS_VP}, v7
s_mov_b32 s28, 81920""")
                    for nb in range(2):
                        if nb: k.e("v_add_u32 v6, 32, v6")
                        k.e(f"""v_mul_u32_u24 v8, 3277, v6
v_lshrrev_b32 v8, 16, v8
v_mul_u32_u24 v9, 20, v8
v_sub_u32 v9, v6, v9
v_lshl_add_u32 v9, v9, 4, v7
v_mad_u32_u24 v{18+nb}, v8, s28, v9""")
                    k.e(f"""s_lshr_b32 s27, s16, 5
s_lshl_b32 s28, s25, 1
s_add_u32 s27, s27, s28
s_mul_i32 s27, s27, 1280
s_waitcnt lgkmcnt(4)""")
            n = 0
            for mb in range(2):
                k.e(f"s_waitcnt lgkmcnt({8 - 8*mb})")
                b = E0 + mb*32
                for nb in range(2):
                    cs = 24 + 2*nb
                    for aa in range(2):
                        a = ACC + (mb*2+nb)*16 + aa*8
                        o = 160 + 4*(n % 2); n += 1
                        for p in range(0, 8, 2):
                            k.e(f"v_pk_fma_f32 v[{a+p}:{a+p+1}], v[{b+16+aa*8+p}:{b+16+aa*8+p+1}], v[{cs}:{cs+1}], v[{a+p}:{a+p+1}] op_sel_hi:[1,0,1]")
                        for p in range(0, 8, 2):
                            k.e(f"v_pk_mul_f32 v[{a+p}:{a+p+1}], v[{a+p}:{a+p+1}], v[{b+aa*8+p}:{b+aa*8+p+1}]")
                        for p in range(0, 8, 2):
                            k.e(f"v_cvt_pk_bf16_f32 v{o+p//2}, v{a+p}, v{a+p+1}")
                        k.e(f"buffer_store_dwordx4 v[{o}:{o+3}], v{18+nb}, s[12:15], s27 offen offset:{mb*1280 + aa*640} sc0 sc1")
            ts_mark(k, TS, 3)
            k.e(f"s_branch {DONE}")
```

```python
from common import *
from ts import *
from kT import tail, SPIN, tile_map
from kA2 import phaseA

OOB = 0x80000000

def kernel_M(TS=False, force_slow=False, T={}, LOCAL=False, AN0='merge', TCH=(0, 3, 7, 11), FILL=(20, 22, 21), SLA=8, SLAP=6):
    GCH = 12288; SLOT = 2*GCH
    ONES = 4*SLOT; FLAG = ONES + 5120
    MRG = 104448
    WOX = MRG + 24576
    CNT = 160*1024 - 64
    NE1, NE2 = 14, 19
    assert WOX + 32768 <= CNT
    k = K(NAME + "_kernel", 256, 512, 160*1024, 256)
    k.L = lambda n: "L_" + n
    L = k.L
    Q = 12; KF = [22, 28]; VF = [36, 44]; P = 52; O = 68; SB = [100, 132]
    vD = 5
    aK1 = [2, 3]; aK2 = [8, 9]; aV = [4, 10, 11, 164]
    vR = [165, 166, 167]
    oA, oB, vTag, vZ = 168, 169, 170, 171
    XREG = 172
    PRE = 184
    uS1, uS2, uT, uD1, uD2, vX = 190, 191, 192, 193, 194, 195
    uR = 200; vF = 212; t0 = 230; uT2 = 196; vC = 216; vP1 = 218; vP2 = 219; vM = 220
    AMAP = "s_lshr_b32 s16, s2, 3\ns_and_b32 s17, s2, 7\ns_lshl_b32 s17, s17, 8" if LOCAL else """s_and_b32 s20, s2, 7
s_lshr_b32 s21, s2, 3
s_lshl_b32 s16, s20, 2
s_lshr_b32 s22, s21, 3
s_add_u32 s16, s16, s22
s_and_b32 s17, s21, 7
s_lshl_b32 s17, s17, 8"""
    L = k.L
    phaseA(k, TS, L('adone'), CNT, SPIN)
    k.label('adone')
    if TS:
        ts_end(k, TS, 0, 12, 240, wait=False); k.e("s_mov_b64 exec, -1"); ts_begin(k, TS)
    k.e(f"""s_setprio 0
s_load_dwordx2 s[60:61], s[0:1], {KA['w1']}
s_load_dwordx2 s[64:65], s[0:1], {KA['w2']}
s_load_dwordx2 s[68:69], s[0:1], {KA['x']}
v_mov_b32 v{vZ}, 0
buffer_load_dword v{vTag}, v{vZ}, s[44:47], 0 offen sc1
s_mov_b32 s4, s44
s_mov_b32 s5, s45
s_lshl_b32 s58, s19, 4
s_add_u32 s58, s58, s22
s_lshl_b32 s58, s58, 7
s_add_u32 s58, s58, {WS_FQ}
{AMAP}
s_lshr_b32 s22, s16, 1
s_and_b32 s23, s16, 1
s_mul_i32 s24, s22, 5
s_add_u32 s25, s24, 2
s_mul_i32 s26, s23, 3
s_add_u32 s24, s24, s26
s_lshl_b32 s24, s24, 15
s_lshl_b32 s25, s25, 15
s_lshl_b32 s23, s23, 3
s_and_b32 s19, s18, 3
s_lshr_b32 s20, s18, 2
v_and_b32 v6, 31, v1
v_lshrrev_b32 v7, 5, v1
v_lshlrev_b32 v{vD}, 4, v1
s_lshl_b32 s21, s20, 14
s_add_u32 s21, s21, {WS_KP}
s_add_u32 s26, s24, s21
s_add_u32 s27, s25, s21
s_mul_i32 s28, s16, 81920
s_mul_i32 s29, s20, 40960
s_add_u32 s28, s28, s29
s_add_u32 s28, s28, {WS_VP}
s_mov_b32 s46, s26
s_mov_b32 s47, s26
s_add_u32 s48, s26, {32768-2048}
s_cmp_eq_u32 s19, 1
s_cbranch_scc0 {L('nj1')}
s_add_u32 s46, s26, {32768+1024}
s_sub_u32 s47, s27, 1024
s_mov_b32 s48, s47""")
    k.label('nj1')
    k.e(f"""s_mov_b32 s49, 2048
s_cmp_ge_u32 s19, 2
s_cbranch_scc0 {L('nj2')}
s_sub_u32 s29, s19, 2
s_mul_i32 s29, s29, 3072
s_add_u32 s46, s28, s29
s_mov_b32 s47, s46
s_mov_b32 s48, s46
s_mov_b32 s49, 5120""")
    k.label('nj2')
    k.e(f"""v_add_u32 v{vR[0]}, s46, v{vD}
v_add_u32 v{vR[1]}, s47, v{vD}
v_add_u32 v{vR[2]}, s48, v{vD}
s_mul_i32 s50, s18, 3072
s_lshl_b32 s29, s19, 6
s_add_u32 s17, s17, s29
s_lshl_b32 s29, s17, 4
s_add_u32 s30, s24, s29
s_add_u32 s31, s25, s29
s_add_u32 s31, s31, s23
v_lshlrev_b32 v35, 4, v6
v_lshl_add_u32 v34, v7, 15, v35
s_mov_b32 s37, 0
s_waitcnt lgkmcnt(0)""")
    assert WS_QP == 0
    q = []
    def ring(c):
        if c < 8:
            return ([f"s_add_u32 m0, s50, {(c%4)*SLOT}", "s_mov_b32 s52, 0" if c == 0 else "s_add_u32 s52, s52, s49"] +
                    [f"buffer_load_dwordx4 v{vR[i]}, s[12:15], s52 offen offset:{i*1024} lds ;D{c}" for i in range(3)])
        return ([f"s_add_u32 m0, s50, {(c%4)*SLOT}", f"s_add_u32 s52, s79, {(c-8)*SLOT}"] +
                [f"buffer_load_dwordx4 v{vD}, s[12:15], s52 offen offset:{i*1024} lds ;D{c}" for i in range(3)])
    def emit(x):
        if x.startswith("!"): return k.e(x[1:])
        if x.startswith("buffer_") or x.startswith("global_"): q.append(x.split(";")[1] if ";" in x else "-")
        k.e(x.split(";")[0])
    def need(*names):
        last = max([i for i, n in enumerate(q) if n in names] + [-1])
        n = len(q) - 1 - last
        del q[:last+1]
        return min(n, 63)
    k.srd(4, 4, 256)
    k.e(f"""s_mul_i32 s29, s20, {GCH}
v_lshl_add_u32 v{aK1[0]}, v7, 11, v35
v_add_u32 v{aK1[0]}, s29, v{aK1[0]}
v_add_u32 v{aK1[1]}, {2*SLOT}, v{aK1[0]}
s_add_u32 s21, s29, 4096
s_add_u32 s21, s21, s23
v_add_u32 v{aK2[0]}, s21, v35
v_add_u32 v{aK2[1]}, {2*SLOT}, v{aK2[0]}
v_mul_u32_u24 v{t0+1}, 320, v7
v_add_u32 v{t0+1}, v{t0+1}, v35
s_add_u32 s21, s29, 6144
v_add_u32 v{t0+1}, s21, v{t0+1}
v_cmp_gt_u32 vcc, 20, v6
v_cmp_eq_u32 s[40:41], 20, v6
v_mov_b32 v{t0+2}, {ONES+16}
v_mov_b32 v{t0+3}, {ONES}
v_cndmask_b32 v{t0+2}, v{t0+2}, v{t0+3}, s[40:41]""")
    for sl in range(4):
        if sl: k.e(f"v_add_u32 v{t0+1}, {SLOT}, v{t0+1}")
        k.e(f"v_cndmask_b32 v{aV[sl]}, v{t0+2}, v{t0+1}, vcc")
    k.e(f"""v_and_b32 v{t0+1}, 7, v1
v_cmp_gt_u32 vcc, 4, v{t0+1}
v_mov_b32 v{t0+2}, 0x3f803f80
v_lshrrev_b32 v{t0+3}, 3, v1
v_cndmask_b32 v{t0+2}, 0, v{t0+2}, vcc
v_mul_u32_u24 v{t0+3}, 640, v{t0+3}
v_lshl_add_u32 v{t0+1}, v{t0+1}, 2, v{t0+3}
v_add_u32 v{t0+1}, {ONES}, v{t0+1}
ds_write_b32 v{t0+1}, v{t0+2}
v_mov_b32 v{t0+4}, {FLAG}
ds_write_b32 v{t0+4}, v{vZ}""")
    k.srd(60, 60, SZ['w1']); k.srd(64, 64, SZ['w2']); k.srd(68, 68, SZ['x'])
    unit_src_voff(k, uS1, 1, 3072, t0+6)
    unit_src_voff(k, uS2, 1, 4096, t0+6)
    unit_tr_addr(k, uT, 1, t0+6)
    k.e(f"""s_add_u32 s75, s50, {MRG}
s_lshl_b32 s54, s18, 12
s_add_u32 s54, s54, {WOX}
v_add_u32 v{uT2}, s75, v{uT}
v_add_u32 v{uT}, s54, v{uT}
v_lshrrev_b32 v{t0+6}, 4, v1
v_and_b32 v{t0+7}, 15, v1
v_lshlrev_b32 v{t0+8}, 4, v{t0+7}
v_lshl_add_u32 v{uD1}, v{t0+6}, 16, v{t0+8}
v_mul_u32_u24 v{uD2}, 49152, v{t0+6}
v_add_u32 v{uD2}, v{uD2}, v{t0+8}
v_mul_u32_u24 v{vX}, 1280, v{t0+7}
v_lshl_add_u32 v{vX}, v{t0+6}, 3, v{vX}
s_lshr_b32 s26, s2, 2
s_and_b32 s27, s2, 3
s_mul_i32 s72, s26, {32*3072}
s_mul_i32 s28, s27, {4*3072}
s_add_u32 s72, s72, s28
s_mul_i32 s28, s18, 384
s_add_u32 s72, s72, s28
s_mul_i32 s78, s18, {12*65536}
s_lshl_b32 s28, s2, 8
s_add_u32 s78, s78, s28
s_add_u32 s78, s78, {WS_W1}
; w2 units: column block gw%32, (kk,g) = 3*(gw/32) + it
s_lshl_b32 s26, s2, 3
s_add_u32 s26, s26, s18
s_and_b32 s27, s26, 31
s_lshr_b32 s26, s26, 5
s_mul_i32 s26, s26, 3
s_mul_i32 s77, s27, {4*49152}
s_lshl_b32 s28, s26, 8
s_add_u32 s77, s77, s28
s_add_u32 s77, s77, {WS_W2}
s_lshl_b32 s27, s27, 7""")
    for it, sr_ in enumerate((73, 74, 76)):
        k.e(f"""s_lshr_b32 s28, s26, 2
s_lshl_b32 s{sr_}, s28, 17
s_and_b32 s28, s26, 3
s_lshl_b32 s28, s28, 14
s_add_u32 s{sr_}, s{sr_}, s28
s_add_u32 s{sr_}, s{sr_}, s27
s_add_u32 s26, s26, 1""")
    k.e(f"""; tail tiles of this workgroup: token block s26, d block s27
{tile_map(26, 27, LOCAL)}
s_mul_i32 s79, s27, 102400
s_add_u32 s79, s79, {WS_WO}
s_lshl_b32 s28, s18, 12
s_add_u32 s53, s79, s28
s_add_u32 s53, s53, 73728
s_add_u32 s79, s79, s50
s_mul_i32 s28, s27, 5
s_add_u32 s28, s28, s18
s_lshl_b32 s28, s28, 16
s_lshl_b32 s29, s26, 11
s_add_u32 s28, s28, s29
s_add_u32 s28, s28, {WS_HN}
s_cmp_lt_u32 s18, 5
s_cselect_b32 s80, s28, {OOB}
s_lshl_b32 s28, s26, 2
s_add_u32 s28, s28, s19
s_lshl_b32 s28, s28, 11
s_lshl_b32 s29, s27, 8
s_add_u32 s28, s28, s29
s_add_u32 s28, s28, {WS_ST}
s_lshl_b32 s29, s2, 7
s_mul_i32 s59, s18, {WS_FD - WS_FC}
s_add_u32 s59, s59, s29
s_add_u32 s59, s59, {WS_FC}
s_cmp_ge_u32 s18, 4
s_cselect_b32 s59, s28, s59
s_cmp_eq_u32 s18, 2
s_cselect_b32 s59, {OOB}, s59
s_lshl_b32 s28, s26, 2
s_add_u32 s28, s28, s19
s_mul_i32 s28, s28, {16*1280}
s_mul_i32 s29, s27, 160
s_add_u32 s28, s28, s29
s_cmp_ge_u32 s18, 4
s_cselect_b32 s82, s28, {OOB}
s_lshl_b32 s44, s26, 2
s_and_b32 s28, s18, 2
s_add_u32 s44, s44, s28
s_mul_i32 s44, s44, 49152
s_and_b32 s28, s18, 1
s_lshl_b32 s28, s28, 11
s_add_u32 s44, s44, s28
s_add_u32 s44, s44, {WS_W2 + (NE2//2)*4096}
s_add_u32 s45, s44, 49152
; u marks: fragment (4 dblk + w/2, 2 fblk + w%2)
s_mul_i32 s26, s21, 43
s_lshr_b32 s26, s26, 8
s_mul_i32 s27, s26, 6
s_sub_u32 s27, s21, s27
s_and_b32 s22, s2, 1
s_mul_i32 s22, s22, 5
s_add_u32 s26, s26, s22
s_bfe_u32 s22, s2, 0x20001
s_mul_i32 s22, s22, 6
s_add_u32 s27, s27, s22
s_lshl_b32 s28, s27, 1
s_and_b32 s29, s18, 1
s_add_u32 s28, s28, s29
s_lshl_b32 s28, s28, 17
s_and_b32 s29, s18, 2
s_lshl_b32 s29, s29, 10
s_add_u32 s28, s28, s29
s_add_u32 s28, s28, {WS_W1}
s_add_u32 s29, s2, 1
s_lshl_b32 s29, s29, 13
s_mul_i32 s29, s29, {1 if T.get('ROT', False) else 0}
s_add_u32 s29, s29, {(NE1//2)*4096}
s_and_b32 s29, s29, 0xffff
s_cmp_lt_u32 s18, 4
s_cselect_b32 s46, s28, s44
s_cselect_b32 s47, s29, 0
s_mov_b32 s48, 49152
s_cselect_b32 s48, 65536, s48
s_add_u32 s44, s46, s47
s_add_u32 s45, s44, s48
s_lshl_b32 s26, s26, 2
s_lshr_b32 s28, s18, 1
s_add_u32 s26, s26, s28
s_mul_i32 s26, s26, 48
s_lshl_b32 s27, s27, 1
s_add_u32 s26, s26, s27
s_and_b32 s28, s18, 1
s_add_u32 s26, s26, s28
s_lshl_b32 s26, s26, 10
s_add_u32 s26, s26, {WS_UI}
s_cmp_lt_u32 s21, 30
s_cselect_b32 s81, s26, {OOB}
s_lshl_b32 s26, s2, 2
s_add_u32 s26, s26, {WS_FB}
s_cmp_eq_u32 s18, 0
s_cselect_b32 s83, s26, {OOB}
s_lshr_b32 s26, s17, 8
s_lshl_b32 s26, s26, 5
s_add_u32 s26, s26, s16
s_lshl_b32 s26, s26, 7
s_add_u32 s26, s26, {WS_FA}
s_cmp_eq_u32 s18, 0
s_cselect_b32 s51, s26, {OOB}
s_lshl_b32 s27, s20, 5
s_add_u32 s27, s27, s17
v_add_u32 v{t0+6}, s27, v6
v_lshrrev_b32 v{t0+6}, 4, v{t0+6}
v_mul_u32_u24 v{t0+6}, 20480, v{t0+6}
s_lshl_b32 s27, s16, 9
s_add_u32 s27, s27, {WS_OI}
v_add_u32 v{oA}, s27, v{t0+6}
v_add_u32 v{oA}, v{oA}, v{t0+8}
v_lshl_add_u32 v{oA}, v7, 8, v{oA}
s_lshl_b32 s27, s16, 7
s_add_u32 s27, s27, {WS_OI + 16384}
v_add_u32 v{oB}, s27, v{t0+6}
v_lshl_add_u32 v{oB}, v{t0+7}, 3, v{oB}""")
    k.e(f"""v_and_b32 v{t0}, 3, v1
v_bfe_u32 v{t0+1}, v1, 2, 1
v_lshl_add_u32 v{t0}, v{t0+1}, 4, v{t0}
v_lshrrev_b32 v{t0+1}, 3, v1
v_mul_u32_u24 v{vP1}, 3072, v{t0}
v_lshl_add_u32 v{vP1}, v{t0+1}, 7, v{vP1}
v_mov_b32 v{t0+2}, s73
v_mov_b32 v{t0+3}, s74
v_cmp_eq_u32 vcc, 1, v{t0+1}
v_mov_b32 v{t0+4}, s76
v_cmp_eq_u32 s[40:41], 2, v{t0+1}
v_cndmask_b32 v{t0+2}, v{t0+2}, v{t0+3}, vcc
s_nop 0
v_cndmask_b32 v{t0+2}, v{t0+2}, v{t0+4}, s[40:41]
v_lshl_add_u32 v{vP2}, v{t0}, 12, v{t0+2}""")
    for r in range(4): k.e(f"v_mov_b32 v{vM+r}, -1")
    def m2b(kf, s, c="0"):  return f"v_mfma_f32_32x32x4_2b_bf16 v[{s}:{s+31}], v[{kf+4}:{kf+5}], v[{Q+8}:{Q+9}], {c}"
    def k16(kf, b, s): return f"v_mfma_f32_32x32x16_bf16 v[{s+16*b}:{s+16*b+15}], v[{kf}:{kf+3}], v[{Q+4*b}:{Q+4*b+3}], v[{s+16*b}:{s+16*b+15}]"
    def pv(vf, b, a, first=False):
        o = O + 16*b; p = P + 8*b + 4*a
        return f"v_mfma_f32_32x32x16_bf16 v[{o}:{o+15}], v[{vf+4*a}:{vf+4*a+3}], v[{p}:{p+3}], " + ("0" if first else f"v[{o}:{o+15}]")
    def group(s, gi):
        b = s + 8*gi; p = P + 4*gi
        E = lambda i: f"v_exp_f32 v{b+i}, v{b+i}"
        C = lambda i: f"v_cvt_pk_bf16_f32 v{p+i}, v{b+2*i}, v{b+2*i+1}"
        return [E(0), E(1), E(2), C(0), E(3), E(4), C(1), E(5), E(6), C(2), E(7)], C(3)
    def rdK(kf, n):
        sl = (n//4) % 4; off = (sl % 2)*SLOT + (n % 4)*512
        return [f"ds_read_b128 v[{kf}:{kf+3}], v{aK1[sl//2]} offset:{off}", f"ds_read_b64 v[{kf+4}:{kf+5}], v{aK2[sl//2]} offset:{off}"]
    def rdV(vf, n):
        sl = (n//4) % 4; off = (n % 4)*1280
        return [f"ds_read_b128 v[{vf}:{vf+3}], v{aV[sl]} offset:{off}", f"ds_read_b128 v[{vf+4}:{vf+7}], v{aV[sl]} offset:{off+640}"]
    def U(n):
        if n < 3: return [f"s_add_u32 m0, s54, {n*1024 - n*128}", f"buffer_load_dwordx4 v{uS1}, s[60:63], s72 offen offset:{n*128} lds ;U"]
        return [f"s_add_u32 m0, s{54 if n < 4 else 75}, {(n%4)*1024}", f"buffer_load_dwordx4 v{uS2}, s[64:67], s{(73,74,76)[n-3]} offen lds ;U"]
    def St(n):
        r = uR + 4*(n % 3)
        if n < 3: return [f"s_add_u32 s26, s78, {n*4*65536}", f"buffer_store_dwordx4 v[{r}:{r+3}], v{uD1}, s[12:15], s26 offen sc0 sc1 ;S"]
        return [f"buffer_store_dwordx4 v[{r}:{r+3}], v{uD2}, s[12:15], s77 offen offset:{(n-3)*256} sc0 sc1 ;S"]
    def Tr(n):
        r = uR + 4*(n % 3)
        return [f"ds_read_b64_tr_b16 v[{r+2*j}:{r+2*j+1}], v{uT if n < 4 else uT2} offset:{(n%4)*1024 + j*512}" for j in range(2)]
    early = []
    for e in range(9):
        for ft in range(2):
            r = PRE + 8*e + 4*ft
            early.append([f"buffer_load_dwordx4 v[{r}:{r+3}], v{vD}, s[12:15], s{44+ft} offen offset:{(e%2)*1024} ;W"] +
                         (["s_add_u32 s47, s47, 4096", "s_and_b32 s47, s47, 0xffff", "s_add_u32 s44, s46, s47", "s_add_u32 s45, s44, s48"] if e % 2 and ft else []))
    k.e(f"s_mov_b32 s33, {SPIN}")
    k.label('tg')
    k.e(f"""s_waitcnt vmcnt(0)
v_readfirstlane_b32 s55, v{vTag}
s_sub_u32 s33, s33, 1
s_cmp_lg_u32 s55, 0
s_cbranch_scc1 {L('tgd')}
s_cmp_lt_i32 s33, 1
s_cbranch_scc1 {L('tgd')}
buffer_load_dword v{vTag}, v{vZ}, s[4:7], 0 offen sc1
s_branch {L('tg')}""")
    k.label('tgd')
    k.e(f"""v_mov_b32 v{t0}, {CNT}
s_cmp_ge_u32 s18, 4
s_cbranch_scc1 {L('hy')}
v_mov_b32 v{t0+1}, 1
s_mov_b64 exec, 1
ds_add_rtn_u32 v{t0+1}, v{t0}, v{t0+1} offset:20
s_waitcnt lgkmcnt(0)
v_readfirstlane_b32 s32, v{t0+1}
s_mov_b64 exec, -1
s_cmp_lg_u32 s32, 3
s_cbranch_scc1 {L('hd')}
v_lshlrev_b32 v{t0}, 2, v1
s_mov_b32 exec_hi, 0
buffer_store_dword v{vTag}, v{t0}, s[12:15], s58 offen sc0 sc1
s_mov_b32 exec_hi, -1
s_branch {L('hd')}""")
    k.label('hy')
    k.e(f"""s_cmp_ge_u32 s18, 6
s_cbranch_scc1 {L('hd')}
s_mul_i32 s26, s16, 20
v_bfe_u32 v{t0+2}, v1, 4, 1
v_mul_u32_u24 v{t0+2}, 19, v{t0+2}
v_add_u32 v{t0+2}, s26, v{t0+2}
v_lshrrev_b32 v{t0+2}, 7, v{t0+2}
v_and_b32 v{t0+3}, 15, v1
v_mad_u32_u24 v{t0+4}, v7, 5, 5
v_add_u32 v{t0+4}, v{t0+4}, v{t0+2}
s_cmp_eq_u32 s18, 4
s_cbranch_scc1 {L('h4')}
s_lshr_b32 s27, s17, 8
s_lshl_b32 s27, s27, 1
v_and_b32 v{t0+5}, 1, v1
v_add_u32 v{t0+5}, s27, v{t0+5}
v_cmp_eq_u32 vcc, 0, v7
v_mov_b32 v{t0+4}, 15
s_nop 0
v_cndmask_b32 v{t0+4}, v{t0+4}, v{t0+2}, vcc
v_cndmask_b32 v{t0+3}, v{t0+3}, v{t0+5}, vcc""")
    k.label('h4')
    k.e(f"""v_lshl_add_u32 v{t0+3}, v{t0+4}, 4, v{t0+3}
v_lshlrev_b32 v{t0+3}, 7, v{t0+3}
v_add_u32 v{t0+3}, {WS_FQ}, v{t0+3}
s_mov_b32 s33, {SPIN*16}""")
    k.label('hc')
    k.e(f"""ds_read_b32 v{t0+1}, v{t0} offset:20
s_sub_u32 s33, s33, 1
s_waitcnt lgkmcnt(0)
v_readfirstlane_b32 s32, v{t0+1}
s_cmp_lt_i32 s33, 1
s_cbranch_scc1 {L('hcd')}
s_cmp_lt_u32 s32, 4
s_cbranch_scc1 {L('hc')}""")
    k.label('hcd')
    k.e(f"s_mov_b32 s33, {SPIN}\ns_sleep {SLA}")
    k.label('hp')
    k.e(f"""buffer_load_dword v{t0+1}, v{t0+3}, s[12:15], 0 offen sc1
s_sub_u32 s33, s33, 1
s_waitcnt vmcnt(0)
v_cmp_ne_u32 vcc, s55, v{t0+1}
s_cbranch_vccz {L('hd')}
s_cmp_lt_i32 s33, 1
s_cbranch_scc1 {L('hd')}
s_sleep {SLAP}
s_branch {L('hp')}""")
    k.label('hd')
    ts_mark(k, TS, 3)
    k.e("s_barrier")
    for x in ring(0): k.e(x.split(";")[0])
    k.e(f"""buffer_load_dwordx4 v[{Q}:{Q+3}], v34, s[12:15], s30 offen
buffer_load_dwordx4 v[{Q+4}:{Q+7}], v34, s[12:15], s30 offen offset:512
buffer_load_dwordx2 v[{Q+8}:{Q+9}], v{vD}, s[12:15], s31 offen""")
    k.e("s_waitcnt vmcnt(0) lgkmcnt(0)")
    ts_mark(k, TS, 0)
    k.e("s_barrier")
    ts_mark(k, TS, 1); ts_cyc(k, TS, 4)
    for s_ in rdK(KF[0], 0) + rdK(KF[1], 1) + rdV(VF[0], 0): k.e(s_)
    for x in ring(1): emit(x)
    k.e("s_waitcnt lgkmcnt(4)" if not TS else "s_waitcnt lgkmcnt(0)")
    k.e(m2b(KF[0], SB[0]))
    for x in ring(2): emit(x)
    k.e("s_nop 13")
    k.e(k16(KF[0], 0, SB[0])); k.e(k16(KF[0], 1, SB[0])); k.e("s_nop 7")
    cost = lambda x: 8 if "v_exp" in x else 4
    stubs = []
    for n in range(32):
        c, t = n//4, n % 4
        cur, nxt = SB[n & 1], SB[(n+1) & 1]
        kf = KF[(n+1) & 1]; kn = KF[n & 1]
        vf = VF[n & 1]; vn = VF[(n+1) & 1]
        G = [group(cur, i) for i in range(4)]
        V = ([group(nxt, 3)[1]] if n else []) + G[0][0] + G[1][0][:1] + [G[0][1]] + G[1][0][1:] + G[2][0][:1] + [G[1][1]] + G[2][0][1:] + G[3][0][:1] + [G[2][1]] + G[3][0][1:]
        rk = rdK(kn, n+2) if n+2 < 32 else [None, None]
        rv = rdV(vn, n+1) if n+1 < 32 else [None, None]
        qk = n+1 < 32
        seq = []
        if t == 2:
            names = [f"D{c+1}"] if c < 7 else []
            if c in (3, 4): names += ["U"]
            if c == 4: names += ["S"]
            if c == 6: names += ["S", "fill"]
            seq += [f"s_waitcnt vmcnt({need(*names)}) lgkmcnt(0)", "s_barrier"]
        elif n == 24: seq += [f"s_waitcnt vmcnt({need('poll')}) lgkmcnt(0)"]
        else: seq += ["s_waitcnt lgkmcnt(0)"]
        seq += [f"s_setprio {3 - (t+2) % 4}"]
        ev = [(4 if n else 0, [m2b(kf, nxt) if qk else None, rk[0]]), (76, [pv(vn, 1, 1) if n else None, rk[1]]), (116, [pv(vf, 0, 0, n == 0), rv[0]]),
              (156, [k16(kf, 0, nxt) if qk else None, rv[1]]), (196, [pv(vf, 0, 1)]), (236, [k16(kf, 1, nxt) if qk else None]), (280, [pv(vf, 1, 0, n == 0)])]
        if t == 2:
            r = ring(c+3)
            ev[3][1].extend(r[0:2]); ev[4][1].append(r[2]); ev[5][1].append(r[3]); ev[6][1].append(r[4])
            if 3 <= c <= 4:
                tr = Tr(3*c-9) + Tr(3*c-8) + Tr(3*c-7)
                for i in range(6): ev[i][1].insert(2 if i < 4 else 1, tr[i])
            if c == 4:
                ev[2][1].extend(["s_mov_b64 exec, 1", f"buffer_store_dword v{vTag}, v{vZ}, s[12:15], s83 offen sc0 sc1 ;flag", "s_mov_b64 exec, -1"])
            if c == 6:
                ev[2][1].extend(["s_mov_b64 exec, 1", f"buffer_store_dword v{vTag}, v{vZ}, s[12:15], s83 offen offset:1024 sc0 sc1 ;flag", "s_mov_b64 exec, -1"])
            if c == 5:
                ev[0][1].extend([f"s_mov_b32 s26, {WS_FB}", f"buffer_load_dwordx4 v[{vF}:{vF+3}], v{vD}, s[12:15], s26 offen sc1 ;poll", f"s_mov_b32 s33, {SPIN}"])
        if t == 3:
            ex = []
            if 3 <= c <= 4: ex += [St(3*c-9), St(3*c-8), St(3*c-7)]
            if c == 1:
                ex += [[f"buffer_load_dwordx2 v[{XREG+2*i}:{XREG+2*i+1}], v{vX}, s[68:71], s82 offen offset:{32*i} ;x"] for i in range(5)]
            if c == 5:
                ex += [["s_mov_b32 m0, s54"]] + [[f"buffer_load_dwordx4 v{vD}, s[12:15], s53 offen offset:{i*1024} lds ;wox"] for i in range(4)]
            assert len(ex) <= 7
            for i, x in enumerate(ex): ev[i][1].extend(x)
            if c in (2, 3):
                for i in range(3):
                    u = U(3*c-6+i); ev[3+i][1].append(u[0]); ev[4+i][1].append(u[1])
        f = f"buffer_store_dwordx4 v[{vM}:{vM+3}], "
        assert WS_FB - WS_FD == WS_FD - WS_FC == WS_FA - WS_FB
        fl = {FILL[0]: [[f + f"v{oA}, s[12:15], 0 offen sc0 sc1 ;fill"],
                        ["s_mov_b32 exec_hi, 0", f"buffer_store_dwordx2 v[{vM}:{vM+1}], v{oB}, s[12:15], 0 offen sc0 sc1 ;fill", "s_cmp_ge_u32 s18, 4", "s_movk_i32 s26, 0xff",
                         "s_cselect_b32 exec_lo, 0xffff, s26", f + f"v{vD}, s[12:15], s59 offen sc0 sc1 ;fill", "s_mov_b64 exec, -1"]],
              FILL[1]: [[f + f"v{vD}, s[12:15], s81 offen sc0 sc1 ;fill"]],
              FILL[2]: [[f + f"v{vD}, s[12:15], s80 offen sc0 sc1 ;fill"], [f + f"v{vD}, s[12:15], s80 offen offset:1024 sc0 sc1 ;fill"]]}.get(n, [])
        for i, x in enumerate(fl): ev[(1 if t == 2 else 4)+i][1].extend(x)
        if n in TCH:
            i = TCH.index(n)
            ld = f"buffer_load_dword v{vP1}, v{vP1}, s[60:63], s72 offen" if i < 2 else f"buffer_load_dword v{vP2}, v{vP2}, s[64:67], 0 offen"
            ev[6][1].extend([f"s_cmp_lg_u32 s20, {i & 1}", f"s_cbranch_scc1 {L(f'nt{i}')}", "s_mov_b64 exec, 0xffffff", "!" + ld, "s_mov_b64 exec, -1", f"{L(f'nt{i}')}:"])
        if n == 30:
            ev[0][1].extend([f"s_mov_b32 s26, {WS_FB + 1024}", f"buffer_load_dwordx4 v[{KF[0]}:{KF[0]+3}], v{vD}, s[12:15], s26 offen sc1 ;poll2"])
        if n == 24:
            ev[0][1].extend([f"{L('f1')}:"] + [f"v_xor_b32 v{vF+i}, s55, v{vF+i}" for i in range(4)] +
                            [f"v_or3_b32 v{vF}, v{vF}, v{vF+1}, v{vF+2}", f"v_or_b32 v{vF}, v{vF}, v{vF+3}", f"v_cmp_ne_u32 vcc, 0, v{vF}",
                             f"s_cbranch_vccnz {L('f1r')}", f"{L('f1d')}:"])
            stubs += [f"{L('f1r')}:", "s_sub_u32 s33, s33, 1", "s_cmp_lt_i32 s33, 1", f"s_cbranch_scc1 {L('f1d')}", "s_sleep 8",
                      f"buffer_load_dwordx4 v[{vF}:{vF+3}], v{vD}, s[12:15], s26 offen sc1", "s_waitcnt vmcnt(0)", f"s_branch {L('f1')}"]
        if n >= 24:
            slots = {24: (4, 6), 25: (4,), 26: (0,), 27: (1, 3, 5), 28: (4, 6)}.get(n, ())
            for i in slots:
                e = early.pop(0) + early.pop(0)
                ev[i][1].extend(["s_cmp_lg_u32 s20, 0", f"s_cbranch_scc1 {L(f'ne{n}_{i}')}"] + ["!" + x.split(";")[0] for x in e] + [f"{L(f'ne{n}_{i}')}:"])
        tm = 0
        for v in V:
            while ev and ev[0][0] <= tm: seq += [x for x in ev.pop(0)[1] if x]
            seq.append(v); tm += cost(v)
        assert not ev
        if qk: assert seq.index(k16(kf, 0, nxt)) - seq.index(m2b(kf, nxt)) > 18
        for (b_, a_, c_) in ((0, 0, G[0][1]), (0, 1, G[1][1]), (1, 0, G[2][1])):
            assert seq.index(pv(vf, b_, a_, n == 0 and a_ == 0)) - seq.index(c_) > 2
        for s_ in seq: emit(s_)
    assert not early
    k.e("s_setprio 3"); k.e(group(SB[1], 3)[1]); k.e("s_nop 1")
    k.e(pv(VF[1], 1, 1))
    k.label('merge')
    ts_mark(k, TS, 2); ts_cyc(k, TS, 5)
    Tm = SB[0]; KP = SB[1]
    ANN = f"""v_lshlrev_b32 v{Tm+18}, 2, v1
s_mov_b32 exec_hi, 0
buffer_store_dword v{vTag}, v{Tm+18}, s[12:15], s51 offen sc0 sc1
s_mov_b32 exec_hi, -1"""
    k.e(f"""v_add_u32 v{Tm+16}, s75, v{vD}
s_xor_b32 s21, s18, 4
s_mul_i32 s21, s21, 3072
s_add_u32 s21, s21, {MRG}
v_add_u32 v{Tm+17}, s21, v{vD}
s_mov_b32 s38, {f2u(2.0**-30)}
s_mov_b32 s39, {f2u(2.0**99)}
v_mul_f32 v{Tm+14}, 0, v{O}""")
    for r in range(1, 12): k.e(f"v_fmac_f32 v{Tm+14}, 0, v{O+r}")
    k.e(f"s_cmp_eq_u32 s20, 0\ns_cbranch_scc1 {L('keep0')}")
    for g in range(3): k.e(f"ds_write_b128 v{Tm+16}, v[{O+4*g}:{O+4*g+3}] offset:{g*1024}")
    for r in range(12): k.e(f"v_mov_b32 v{KP+r}, v{O+16+r}")
    k.e(f"s_branch {L('kept')}")
    k.label('keep0')
    for g in range(3): k.e(f"ds_write_b128 v{Tm+16}, v[{O+16+4*g}:{O+16+4*g+3}] offset:{g*1024}")
    for r in range(12): k.e(f"v_mov_b32 v{KP+r}, v{O+r}")
    k.label('kept')
    for r in range(0, 12): k.e(f"v_fmac_f32 v{Tm+14}, 0, v{O+16+r}")
    k.e(f"""v_min_f32 v{Tm+12}, v{O+8}, v{O+24}
v_max_f32 v{Tm+13}, v{O+8}, v{O+24}
v_cmp_u_f32 vcc, v{Tm+14}, v{Tm+14}
v_cmp_nge_f32 s[40:41], v{Tm+12}, s38
v_cmp_nle_f32 s[42:43], v{Tm+13}, s39
v_mov_b32 v{Tm+12}, {FLAG}
v_mov_b32 v{Tm+13}, 1
s_or_b32 s41, s41, s43
s_or_b32 s40, vcc_lo, vcc_hi
s_or_b32 s40, s40, s41""")
    if force_slow: k.e("s_cmp_eq_u32 s37, 0")
    k.e(f"""s_cbranch_scc0 {L('noflag')}
ds_write_b32 v{Tm+12}, v{Tm+13}""")
    k.label('noflag')
    F2 = KF[0]
    k.e(f"s_mov_b32 s33, {SPIN}\ns_cmp_lg_u32 s37, 0\ns_waitcnt vmcnt(0)\ns_cbranch_scc1 {L('g2d')}")
    k.label('g2')
    for i in range(4): k.e(f"v_xor_b32 v{F2+i}, s55, v{F2+i}")
    k.e(f"""v_or3_b32 v{F2}, v{F2}, v{F2+1}, v{F2+2}
v_or_b32 v{F2}, v{F2}, v{F2+3}
v_cmp_ne_u32 vcc, 0, v{F2}
s_cbranch_vccnz {L('g2r')}""")
    k.label('g2d')
    stubs += [f"{L('g2r')}:", "s_sub_u32 s33, s33, 1", "s_cmp_lt_i32 s33, 1", f"s_cbranch_scc1 {L('g2d')}", "s_sleep 8",
              f"buffer_load_dwordx4 v[{F2}:{F2+3}], v{vD}, s[12:15], s26 offen sc1", "s_waitcnt vmcnt(0)", f"s_branch {L('g2')}"]
    k.e("s_waitcnt lgkmcnt(0)\ns_barrier")
    k.e(f"ds_read_b32 v{Tm+19}, v{Tm+12}")
    for g in (2, 0, 1): k.e(f"ds_read_b128 v[{Tm+4*g}:{Tm+4*g+3}], v{Tm+17} offset:{g*1024}")
    k.e(f"""s_waitcnt lgkmcnt(2)
v_readfirstlane_b32 s38, v{Tm+19}
v_pk_add_f32 v[{Tm+8}:{Tm+9}], v[{Tm+8}:{Tm+9}], v[{KP+8}:{KP+9}]
v_pk_add_f32 v[{Tm+10}:{Tm+11}], v[{Tm+10}:{Tm+11}], v[{KP+10}:{KP+11}]
v_mov_b32 v{Tm+13}, v{Tm+8}
v_mov_b32 v{Tm+12}, v{Tm+8}
s_cmp_gt_u32 s38, s37
s_waitcnt lgkmcnt(0)
s_cbranch_scc1 {L('slow')}
{ANN if AN0 == 'merge' else ''}
v_permlane32_swap_b32 v{Tm+13}, v{Tm+12}
v_pk_add_f32 v[{Tm}:{Tm+1}], v[{Tm}:{Tm+1}], v[{KP}:{KP+1}]
v_rcp_f32 v{Tm+14}, v{Tm+12}
v_pk_add_f32 v[{Tm+2}:{Tm+3}], v[{Tm+2}:{Tm+3}], v[{KP+2}:{KP+3}]
v_pk_add_f32 v[{Tm+4}:{Tm+5}], v[{Tm+4}:{Tm+5}], v[{KP+4}:{KP+5}]
v_pk_add_f32 v[{Tm+6}:{Tm+7}], v[{Tm+6}:{Tm+7}], v[{KP+6}:{KP+7}]""")
    for r in range(0, 12, 2): k.e(f"v_pk_mul_f32 v[{Tm+r}:{Tm+r+1}], v[{Tm+r}:{Tm+r+1}], v[{Tm+14}:{Tm+15}] op_sel_hi:[1,0]")
    for r in range(6): k.e(f"v_cvt_pk_bf16_f32 v{Tm+24+r}, v{Tm+2*r}, v{Tm+2*r+1}")
    for r in range(6): k.e(f"v_min_u32 v{Tm+24+r}, -2, v{Tm+24+r}")
    k.e(f"""buffer_store_dwordx4 v[{Tm+24}:{Tm+27}], v{oA}, s[12:15], 0 offen sc0 sc1
s_mov_b32 exec_hi, 0
buffer_store_dwordx2 v[{Tm+28}:{Tm+29}], v{oB}, s[12:15], 0 offen sc0 sc1
s_mov_b32 exec_hi, -1
{ANN if AN0 == 'after' else ''}""")
    if TS:
        ts_end(k, TS, 1, 12, 52, wait=False)
        k.e("s_mov_b64 exec, -1")
        ts_begin(k, TS)
    tail(k, TS, WOX, XREG, NE1, NE2, PRE, LOCAL, **T)
    k.label('end')
    k.e("s_endpgm")
    for x in stubs: k.e(x)
    k.label('slow')
    S0 = SB[0]; MX = P; kf = KF[0]
    k.e(f"""s_mov_b32 s37, 1
s_barrier
v_mov_b32 v{MX}, 0xff800000
v_mov_b32 v{MX+1}, 0xff800000
s_add_u32 s56, s24, {WS_KP}
s_add_u32 s57, s25, {WS_KP}
s_add_u32 s57, s57, s23
s_mov_b32 s36, 0""")
    k.label('mloop')
    k.e(f"""buffer_load_dwordx4 v[{kf}:{kf+3}], v34, s[12:15], s56 offen
buffer_load_dwordx2 v[{kf+4}:{kf+5}], v35, s[12:15], s57 offen
s_add_u32 s56, s56, 512
s_add_u32 s57, s57, 512
s_waitcnt vmcnt(0)""")
    k.e(m2b(kf, S0)); k.e("s_nop 15\ns_nop 3")
    k.e(k16(kf, 0, S0)); k.e(k16(kf, 1, S0)); k.e("s_nop 11")
    for b in range(2):
        for r in range(0, 16, 2):
            k.e(f"v_max3_f32 v{MX+b}, v{S0+16*b+r}, v{S0+16*b+r+1}, v{MX+b}")
    k.e(f"""s_add_u32 s36, s36, 1
s_cmp_lt_u32 s36, 64
s_cbranch_scc1 {L('mloop')}
v_mov_b32 v{MX+2}, v{MX}
v_mov_b32 v{MX+3}, v{MX+1}
s_nop 1
v_permlane32_swap_b32 v{MX}, v{MX+2}
v_permlane32_swap_b32 v{MX+1}, v{MX+3}
s_nop 1
v_max_f32 v{MX}, v{MX}, v{MX+2}
v_max_f32 v{MX+1}, v{MX+1}, v{MX+3}""")
    CM = SB[1]; vf = VF[0]
    for b in range(2):
        for r in range(16): k.e(f"v_sub_f32 v{CM+16*b+r}, 0, v{MX+b}")
    for r in range(32): k.e(f"v_mov_b32 v{O+r}, 0")
    k.e(f"""v_cmp_eq_u32 vcc, 20, v6
v_mov_b32 v{VF[1]}, 0x3f803f80
v_mul_u32_u24 v{VF[1]+1}, 320, v7
v_add_u32 v{VF[1]+1}, v{VF[1]+1}, v35""")
    for r in range(8): k.e(f"v_cndmask_b32 v{vf+r}, 0, v{VF[1]}, vcc")
    k.e(f"""s_lshl_b32 s21, s20, 14
s_add_u32 s21, s21, {WS_KP}
s_add_u32 s56, s24, s21
s_add_u32 s57, s25, s21
s_add_u32 s57, s57, s23
s_mul_i32 s58, s16, 81920
s_mul_i32 s21, s20, 40960
s_add_u32 s58, s58, s21
s_add_u32 s58, s58, {WS_VP}
s_mov_b32 s36, 0""")
    k.label('sloop')
    k.e(f"""buffer_load_dwordx4 v[{kf}:{kf+3}], v34, s[12:15], s56 offen
buffer_load_dwordx2 v[{kf+4}:{kf+5}], v35, s[12:15], s57 offen
s_mov_b32 exec_lo, 0xfffff
s_mov_b32 exec_hi, 0xfffff
buffer_load_dwordx4 v[{vf}:{vf+3}], v{VF[1]+1}, s[12:15], s58 offen
buffer_load_dwordx4 v[{vf+4}:{vf+7}], v{VF[1]+1}, s[12:15], s58 offen offset:640
s_mov_b64 exec, -1
s_add_u32 s56, s56, 512
s_add_u32 s57, s57, 512
s_add_u32 s58, s58, 1280
s_waitcnt vmcnt(0)""")
    k.e(m2b(kf, S0, f"v[{CM}:{CM+31}]")); k.e("s_nop 15\ns_nop 3")
    k.e(k16(kf, 0, S0)); k.e(k16(kf, 1, S0)); k.e("s_nop 11")
    for gi in range(4):
        g, c = group(S0, gi)
        for x in g: k.e(x)
        k.e("s_nop 0"); k.e(c)
    k.e("s_nop 1")
    for b in range(2):
        k.e(pv(vf, b, 0)); k.e(pv(vf, b, 1))
    k.e(f"""s_add_u32 s36, s36, 1
s_cmp_lt_u32 s36, 32
s_cbranch_scc1 {L('sloop')}
s_nop 7
s_branch {L('merge')}""")
    k.label('last')
    return k
```
